```python
import torch

def _softmax(x, axis=-1):
    return torch.softmax(x, dim=axis)
def _gelu(x):
    return torch.nn.functional.gelu(x, approximate="tanh")
def _silu(x):
    return torch.nn.functional.silu(x)
def _sigmoid(x):
    return torch.sigmoid(x)
def _layernorm(x, axis=-1, eps=1e-5):
    m = x.mean(dim=axis, keepdim=True)
    v = x.var(dim=axis, keepdim=True, unbiased=False)
    return (x - m) / torch.sqrt(v + eps)
def _scatter_add(tgt, idx, src, axis=0):
    return tgt.clone().index_add_(axis, idx, src)
def _segment_sum(src, seg, n):
    out = torch.zeros((n,) + src.shape[1:], dtype=src.dtype)
    return out.index_add_(0, seg, src)
def _pad(x, pw):
    flat = tuple(v for pair in reversed(pw) for v in pair)
    return torch.nn.functional.pad(x, flat)

kernel_name = 'concat_heads__ssm_conv_s4__mha_block__prompt'

def setup_inputs():

    _w = (lambda a: (lambda t: t.to(torch.bfloat16) if t.is_floating_point() else t)(torch.as_tensor(a)))
    def _A_setup():
        B, L, D, N = 1, 2048, 512, 128
        A_re = -(lambda _x: torch.exp(torch.as_tensor(_x)))((lambda *s: torch.randn(*s, dtype=torch.bfloat16) * 6.4)(D, N))
        A_im = torch.pi * (lambda *s: torch.randn(*s, dtype=torch.bfloat16) * 0.1)(D, N)
        B_re = (lambda *s: torch.randn(*s, dtype=torch.bfloat16) * 0.2)(D, N)
        B_im = (lambda *s: torch.randn(*s, dtype=torch.bfloat16) * 0.2)(D, N)
        C_re = (lambda *s: torch.randn(*s, dtype=torch.bfloat16) * 0.2)(D, N)
        C_im = (lambda *s: torch.randn(*s, dtype=torch.bfloat16) * 0.2)(D, N)
        log_dt = (lambda *s: torch.randn(*s, dtype=torch.bfloat16) * 0.1)(D) * 0.5 - 4.0
        Dskip = (lambda *s: torch.randn(*s, dtype=torch.bfloat16) * 0.1)(D)
        return {
            "u": _w((lambda *s: torch.randn(*s, dtype=torch.bfloat16) * 0.05)(B, L, D)),
            "A_re": _w(A_re),
            "A_im": _w(A_im),
            "B_re": _w(B_re),
            "B_im": _w(B_im),
            "C_re": _w(C_re),
            "C_im": _w(C_im),
            "log_dt": _w(log_dt),
            "Dskip": _w(Dskip),
        }
    _A_in = _A_setup()

    def _B_setup():
        B, S, D, H = 1, 2048, 512, 32
        return {
            "x": _w((lambda *s: torch.randn(*s, dtype=torch.bfloat16) * 0.2)(B, S, D)),
            "wqkv": _w((lambda *s: torch.randn(*s, dtype=torch.bfloat16) * 0.2)(D, 3 * D)),
            "wo": _w((lambda *s: torch.randn(*s, dtype=torch.bfloat16) * 0.05)(D, D)),
        }
    _B_in = _B_setup()

    return {
        "A_u": _A_in["u"],
        "A_A_re": _A_in["A_re"],
        "A_A_im": _A_in["A_im"],
        "A_B_re": _A_in["B_re"],
        "A_B_im": _A_in["B_im"],
        "A_C_re": _A_in["C_re"],
        "A_C_im": _A_in["C_im"],
        "A_log_dt": _A_in["log_dt"],
        "A_Dskip": _A_in["Dskip"],
        "B_x": _B_in["x"],
        "B_wqkv": _B_in["wqkv"],
        "B_wo": _B_in["wo"],
    }

def reference(A_u, A_A_re, A_A_im, A_B_re, A_B_im, A_C_re, A_C_im, A_log_dt, A_Dskip, B_x, B_wqkv, B_wo):
    def _A_ref(u, A_re, A_im, B_re, B_im, C_re, C_im, log_dt, Dskip):
        Bsz, L, D = u.shape
        dt = torch.exp(log_dt)[:, None]
        A = A_re + 1j * A_im
        Bc = B_re + 1j * B_im
        Cc = C_re + 1j * C_im
        logdA = dt * A
        dB = dt * Bc
        l = (lambda x, dt: x.to(dt))(torch.arange(L), A_re.dtype)
        P = torch.exp(logdA[:, :, None] * l[None, None, :])
        K = torch.einsum("dn,dnl,dn->dl", Cc, P, dB).real
        L2 = 2 * L
        Kp = _pad(K, ((0, 0), (0, L)))
        up = (lambda x, *d: x.permute(*d))(u, 0, 2, 1)
        up = _pad(up, ((0, 0), (0, 0), (0, L)))
        Kf = (lambda x, axes=(-2,-1): torch.fft.rfft2(x.float(), dim=axes))(Kp[:, None, :], axes=(-2, -1))
        Uf = (lambda x, axes=(-2,-1): torch.fft.rfft2(x.float(), dim=axes))(up[:, :, None, :], axes=(-2, -1))
        Yf = Uf * Kf[None, :, :, :]
        y = (lambda x, s, axes=(-2,-1): torch.fft.irfft2(x, s=s, dim=axes).to(torch.bfloat16))(Yf, (1, L2), axes=(-2, -1))[:, :, 0, :L]
        y = (lambda x, *d: x.permute(*d))(y, 0, 2, 1) + u * Dskip[None, None, :]
        return y

    def _B_ref(x, wqkv, wo):
        B, S, D = x.shape
        H = 32
        Dh = D // H
        qkv = (lambda x, *d: x.permute(*d))((x @ wqkv).reshape(B, S, 3, H, Dh), 2, 0, 3, 1, 4)
        q, k, v = qkv[0], qkv[1], qkv[2]
        scores = torch.einsum("bhqd,bhkd->bhqk", q, k) * (Dh ** -0.5)
        p = _softmax(scores, axis=-1)
        o = torch.einsum("bhqk,bhkd->bhqd", p, v)
        return (lambda x, *d: x.permute(*d))(o, 0, 2, 1, 3).reshape(B, S, D) @ wo

    a = _A_ref(A_u, A_A_re, A_A_im, A_B_re, A_B_im, A_C_re, A_C_im, A_log_dt, A_Dskip)
    b = _B_ref(B_x, B_wqkv, B_wo)
    return torch.concatenate([a, b], axis=-1)
```

```python
import re

TRANS = ("v_exp_f32", "v_log_f32", "v_rcp_f32", "v_rsq_f32", "v_sqrt_f32", "v_sin_f32", "v_cos_f32",
         "v_exp_f16", "v_rcp_iflag_f32")

def _regs(tok):
    tok = tok.strip()
    tok = tok.lstrip("-")
    if tok.startswith("|") and tok.endswith("|"):
        tok = tok[1:-1]
    if tok.startswith("abs(") or tok.startswith("neg("):
        tok = tok[4:-1]
    m = re.fullmatch(r"([vsa])(\d+)", tok)
    if m:
        return {(m.group(1), int(m.group(2)))}
    m = re.fullmatch(r"([vsa])\[(\d+):(\d+)\]", tok)
    if m:
        return {(m.group(1), i) for i in range(int(m.group(2)), int(m.group(3)) + 1)}
    if tok in ("vcc", "vcc_lo", "vcc_hi"):
        return {("vcc", 0)}
    if tok in ("exec", "exec_lo", "exec_hi"):
        return {("exec", 0)}
    if tok == "m0":
        return {("m0", 0)}
    return set()

class Ins:
    __slots__ = ("text", "op", "dst", "src", "cls", "passes", "srcA", "srcB", "srcC", "ws", "wide_data", "islabel", "target", "dpp")
    def __init__(self, text):
        self.text = text
        self.dst = set(); self.src = set(); self.cls = None; self.passes = 0
        self.srcA = set(); self.srcB = set(); self.srcC = set(); self.ws = 1
        self.wide_data = set(); self.islabel = False; self.target = None; self.op = ""; self.dpp = False
        t = text.split(";")[0].strip()
        if not t or t.startswith("."):
            self.ws = 0; self.cls = "none"; return
        if t.endswith(":"):
            self.islabel = True; self.ws = 0; self.cls = "label"; self.op = t[:-1]; return
        parts = t.split(None, 1)
        op = parts[0]; self.op = op
        rest = parts[1] if len(parts) > 1 else ""
        ops = []; depth = 0; cur = ""
        for ch in rest:
            if ch == "[": depth += 1
            if ch == "]": depth -= 1
            if ch == "," and depth == 0:
                ops.append(cur.strip()); cur = ""
            else:
                cur += ch
        mods = ""
        if cur.strip():
            lp = cur.strip().split(None, 1)
            ops.append(lp[0]); mods = lp[1] if len(lp) > 1 else ""
        R = [_regs(o) for o in ops]
        def U(lst):
            s = set()
            for x in lst: s |= x
            return s
        if op == "s_nop":
            self.cls = "salu"; self.ws = int(ops[0], 0) + 1
        elif op.startswith("v_mfma"):
            self.cls = "mfma"
            self.passes = 8 if "32x32" in op else 4
            self.dst = R[0]; self.srcA = R[1]; self.srcB = R[2]; self.srcC = R[3]
            self.src = R[1] | R[2] | R[3]
        elif op.startswith("v_"):
            self.cls = "valu"
            base = op.replace("_e32", "").replace("_e64", "").replace("_dpp", "").replace("_sdwa", "")
            if "row_" in mods or "quad_perm" in mods or "wave_" in mods or op.endswith("_dpp"):
                self.dpp = True
            if base.startswith("v_cmp"):
                self.dst = R[0]; self.src = U(R[1:])
                if base.startswith("v_cmpx"): self.dst |= {("exec", 0)}
            elif base.startswith("v_permlane"):
                self.dst = R[0] | R[1]; self.src = R[0] | R[1]
            elif "_co_" in base:
                self.dst = R[0] | R[1]; self.src = U(R[2:])
            elif base == "v_nop":
                pass
            else:
                self.dst = R[0]; self.src = U(R[1:])
                if base.startswith("v_fmac") or base.startswith("v_mac") or base.startswith("v_writelane") or base.startswith("v_pk_fmac"):
                    self.src |= R[0]
                if base == "v_cndmask_b32" and len(ops) == 3:
                    self.src |= {("vcc", 0)}
            self.op = base
        elif op.startswith("ds_"):
            self.cls = "ds"
            if op.startswith("ds_read") or op.startswith("ds_bpermute") or op.startswith("ds_permute") or op.startswith("ds_swizzle") or "_rtn" in op:
                self.dst = R[0]; self.src = U(R[1:])
                if "d16" in op: self.src |= R[0]
            else:
                self.src = U(R)
            if "addtid" in op: self.cls = "dma"; self.src |= {("m0", 0)}
        elif op.startswith("buffer_") or op.startswith("global_"):
            self.cls = "vmem"
            is_lds = bool(re.search(r"\blds\b", mods)) or "_lds_" in op
            if "load" in op:
                if is_lds:
                    self.src = U(R) | {("m0", 0)}; self.cls = "dma"
                else:
                    self.dst = R[0]; self.src = U(R[1:])
            else:
                self.src = U(R)
                if "x3" in op or "x4" in op:
                    self.wide_data = R[0] if op.startswith("buffer_") else R[1]
        elif op.startswith("s_"):
            self.cls = "salu"
            if op.startswith("s_cbranch") or op == "s_branch":
                self.target = ops[0]
            elif op.startswith("s_cmp") or op.startswith("s_bitcmp") or op in ("s_waitcnt", "s_barrier", "s_endpgm", "s_setprio", "s_sleep"):
                self.src = U(R)
            else:
                if R:
                    self.dst = R[0]; self.src = U(R[1:])
        else:
            raise ValueError("unknown op: " + text)

def need(p, c):
    n = 0
    pv = {r for r in p.dst if r[0] == "v"}
    ps = {r for r in p.dst if r[0] in ("s", "vcc")}
    if p.cls == "valu":
        if c.cls == "mfma" and pv & c.src: n = max(n, 2)
        if p.op in TRANS and c.cls in ("valu", "ds", "vmem", "dma") and (pv & c.src): n = max(n, 1)
        if c.cls == "valu" and ps & c.src:
            n = max(n, 4 if c.op in ("v_readlane_b32", "v_writelane_b32") else 2)
        if c.cls in ("vmem", "dma") and ps & c.src: n = max(n, 5)
        if c.cls == "valu" and c.op in ("v_readlane_b32", "v_readfirstlane_b32") and pv & c.src: n = max(n, 1)
        if c.cls == "valu" and (c.dpp or c.op.startswith("v_permlane")) and pv & c.src: n = max(n, 2)
        if ("exec", 0) in p.dst and c.cls in ("mfma", "valu"): n = max(n, 5)
    if p.cls == "mfma":
        big = 12 if p.passes == 8 else 8
        if c.cls in ("valu", "ds", "vmem", "dma") and (p.dst & (c.src | c.dst)): n = max(n, big)
        if c.cls == "mfma":
            if p.dst & (c.srcA | c.srcB): n = max(n, big)
            if p.dst & c.srcC and not (p.dst == c.srcC and p.passes == c.passes): n = max(n, big - 2)
            if p.dst & c.dst and not (p.dst == c.srcC): n = max(n, big - 2) if not (p.dst == c.dst) else max(n, 0)
        if c.cls == "valu" and (p.srcC & c.dst): n = max(n, 7 if p.passes == 8 else 3)
    if p.cls == "salu" and ("m0", 0) in p.dst and (c.cls == "dma" or c.op.startswith("s_movrel")): n = max(n, 1)
    if p.wide_data and (p.wide_data & c.dst): n = max(n, 2)
    return n

WINDOW = 14

def pad(lines, verbose=False):
    out = []
    for text in lines:
        c = Ins(text)
        if c.ws > 0:
            dist = 0; req = 0
            for p in reversed(out):
                if dist >= WINDOW: break
                if p.ws == 0: continue
                r = need(p, c) - dist
                if r > req: req = r
                dist += p.ws
            while req > 0:
                k = min(req, 16)
                out.append(Ins(f"s_nop {k-1}"))
                if verbose: print("pad", k, "before", text)
                req -= k
        out.append(c)
    labels = {x.op: i for i, x in enumerate(out) if x.islabel}
    errs = []
    for i, b in enumerate(out):
        if b.target and b.target in labels:
            pre = [x for x in out[max(0, i - 40):i + 1] if x.ws > 0]
            j = labels[b.target]
            post = [x for x in out[j:j + 40] if x.ws > 0]
            dpost = 0
            for c in post:
                if dpost >= WINDOW: break
                dist = dpost
                for p in reversed(pre):
                    if dist >= WINDOW: break
                    if need(p, c) > dist:
                        errs.append(f"edge hazard: '{p.text}' -> '{c.text}' via {b.text} dist {dist}")
                    dist += p.ws
                dpost += c.ws
    if errs:
        raise RuntimeError("\n".join(errs))
    return [x.text for x in out]

class Asm:
    def __init__(self):
        self.l = []
    def __call__(self, s):
        for ln in s.split("\n"):
            ln = ln.strip()
            if ln: self.l.append(ln)
    def label(self, n):
        self.l.append(n + ":")

def vr(a, n=1):
    return f"v{a}" if n == 1 else f"v[{a}:{a+n-1}]"
def sr(a, n=1):
    return f"s{a}" if n == 1 else f"s[{a}:{a+n-1}]"

def merge(*seqs):
    seqs = [list(s) for s in seqs if s]
    total = sum(len(s) for s in seqs)
    pos = [0] * len(seqs); out = []
    for _ in range(total):
        best = min(range(len(seqs)), key=lambda k: (pos[k] + 0.5) / len(seqs[k]) if pos[k] < len(seqs[k]) else 9)
        out.append(seqs[best][pos[best]]); pos[best] += 1
    return out
```

```python
import sys, struct, math
sys.path.insert(0, "gen")
from asmlib import *

NAME = "concat_heads__ssm_conv_s4__mha_block__prompt"
QF = 0x000000; KV = 0x200000; OF = 0x600000; KC = 0x800000; WS_SIZE = 0xA00000
LOG2E = 1.4426950408889634
def f32(x): return struct.unpack("<I", struct.pack("<f", x))[0]
def hx(x): return "0x%08x" % (x & 0xffffffff)
def swap23(m): return (m & ~12) | ((m & 4) << 1) | ((m & 8) >> 1)
MF = "v_mfma_f32_32x32x16_bf16"
OPT = dict(st_k1="", st_k2="", st_k3="")

def srd(a, base, koff, size):
    a(f"s_load_dwordx2 s[{base}:{base+1}], s[0:1], {koff}")
def srd_fin(a, base, size):
    a(f"s_mov_b32 s{base+2}, {hx(size)}")
    a(f"s_mov_b32 s{base+3}, 0x00020000")

def cmul(dst, x, y, t):
    return [f"v_pk_mul_f32 {vr(t,2)}, {vr(x,2)}, {vr(y,2)} op_sel:[0,0] op_sel_hi:[0,1]",
            f"v_pk_fma_f32 {vr(dst,2)}, {vr(x,2)}, {vr(y,2)}, {vr(t,2)} op_sel:[1,1,0] op_sel_hi:[1,0,1] neg_lo:[0,1,0]"]

K1_SLOT = 28672; K1_KT = 3 * K1_SLOT; K1_KTW = 59 * 272; K1_LDS = K1_KT + 4 * K1_KTW
def slot_base(s): return s * K1_SLOT

def gen_k1():
    a = Asm()
    SX, SW, SWS, SP0, SLD = 4, 8, 12, 16, 40
    sWV, sTB, sHP, sXO, sWO, sM0, sT, sT2, sD, sMH = 44, 45, 46, 47, 48, 49, 50, 51, 52, 53
    sKT, sC0, sMASK = 54, 56, 58
    sTAB = 60
    a("s_cmp_ge_u32 s2, 256")
    a("s_cbranch_scc1 L_k1_end")
    srd(a, SX, 72, 0); srd(a, SW, 80, 0); srd(a, SWS, 112, 0)
    for i in range(6): srd(a, SP0 + 4 * i, 8 + 8 * i, 0)
    srd(a, SLD, 56, 0)
    srd_fin(a, SX, 2048 * 512 * 2); srd_fin(a, SW, 512 * 1536 * 2); srd_fin(a, SWS, WS_SIZE)
    for i in range(6): srd_fin(a, SP0 + 4 * i, 512 * 128 * 2)
    srd_fin(a, SLD, 1024)
    vL = 1; vX = 2; vW = 6; vT0 = 7; vXA = 8; vWA = 20; vT1 = 23
    ACC = 24; BUF = [72, 136]
    a(f"v_and_b32 v{vL}, 63, v0")
    a(f"v_lshrrev_b32 v{vT0}, 6, v0")
    a(f"v_readfirstlane_b32 s{sWV}, v{vT0}")
    PA, PB, PC, PLD = 72, 74, 76, 78
    for r in range(72, 79): a(f"v_mov_b32 v{r}, 0")
    a(f"v_lshlrev_b32 v{vT0}, 1, v0")
    a(f"s_lshl_b32 s{sT}, s2, 9")
    a(f"s_and_b32 s{sT2}, s2, 7")
    a(f"s_lshr_b32 s{sTB}, s{sT2}, 1")
    a(f"s_lshl_b32 s{sTB}, s{sTB}, 2")
    a(f"s_and_b32 s{sHP}, s{sT2}, 1")
    a(f"s_lshl_b32 s{sHP}, s{sHP}, 3")
    a(f"s_lshr_b32 s{sT2}, s2, 3")
    a(f"s_and_b32 s{sD}, s{sT2}, 3")
    a(f"s_add_u32 s{sTB}, s{sTB}, s{sD}")
    a(f"s_lshr_b32 s{sT2}, s{sT2}, 2")
    a(f"s_add_u32 s{sHP}, s{sHP}, s{sT2}")
    a(f"s_lshr_b32 s{sD}, s{sWV}, 1")
    a(f"s_lshl_b32 s{sT2}, s2, 1")
    a(f"s_add_u32 s{sD}, s{sD}, s{sT2}")
    a(f"s_and_b32 s{sMH}, s{sWV}, 1")
    a(f"s_lshl_b32 s{sT2}, s{sD}, 1")
    a("s_waitcnt lgkmcnt(0)")
    for i in range(6):
        a(f"buffer_load_short_d16_hi v{72+i}, v{vT0}, s[{SP0+4*i}:{SP0+4*i+3}], s{sT} offen")
    a(f"buffer_load_short_d16_hi v{PLD}, off, s[{SLD}:{SLD+3}], s{sT2}")
    a(f"v_lshrrev_b32 v{vT0}, 4, v{vL}")
    a(f"v_and_b32 v{vT1}, 7, v{vL}")
    a(f"v_xor_b32 v{vT0}, v{vT0}, v{vT1}")
    a(f"v_lshlrev_b32 v{vT0}, 4, v{vT0}")
    a(f"v_lshrrev_b32 v{vT1}, 3, v{vL}")
    a(f"v_lshl_add_u32 v{vX}, v{vT1}, 10, v{vT0}")
    a(f"v_xor_b32 v{vT0}, 64, v{vX}")
    a(f"v_add_u32 v{vX+1}, 7168, v{vT0}")
    a(f"v_add_u32 v{vX+2}, {2*7168}, v{vX}")
    a(f"v_add_u32 v{vX+3}, {3*7168}, v{vT0}")
    a(f"v_lshrrev_b32 v{vT0}, 2, v{vL}")
    a(f"v_mul_u32_u24 v{vT0}, 3072, v{vT0}")
    a(f"v_and_b32 v{vT1}, 3, v{vL}")
    a(f"v_lshl_add_u32 v{vW}, v{vT1}, 4, v{vT0}")
    a(f"s_lshl_b32 s{sXO}, s{sTB}, 2")
    a(f"s_add_u32 s{sXO}, s{sXO}, s{sWV}")
    a(f"s_mov_b32 s{sTB}, s{sXO}")
    a(f"s_lshl_b32 s{sXO}, s{sXO}, 15")
    a(f"s_mul_i32 s{sWO}, s{sWV}, {16*3072}")
    a(f"s_lshl_b32 s{sT}, s{sHP}, 6")
    a(f"s_add_u32 s{sWO}, s{sWO}, s{sT}")
    a(f"s_mul_i32 s{sM0}, s{sWV}, 7168")
    def dma(c):
        s = c % 5
        o = []
        o.append(f"s_add_u32 m0, s{sM0}, {slot_base(s)}")
        o.append(f"s_add_u32 s{sT}, s{sXO}, {c*128}")
        for q in range(4):
            o.append(f"buffer_load_dwordx4 v{vX+q}, s[{SX}:{SX+3}], s{sT} offen offset:{q*1024} lds")
        o.append(f"s_add_u32 m0, s{sM0}, {slot_base(s)+4096}")
        o.append(f"s_add_u32 s{sT}, s{sWO}, {c*64*3072}")
        for st in range(3):
            o.append(f"buffer_load_dwordx4 v{vW}, s[{SW}:{SW+3}], s{sT} offen offset:{st*1024} lds")
        return o
    for c in range(3):
        for x in dma(c): a(x)
    a(f"v_and_b32 v{vT0}, 31, v{vL}")
    a(f"v_bfe_u32 v{vT1}, v{vL}, 1, 3")
    a(f"v_lshrrev_b32 v{vXA}, 5, v{vL}")
    a(f"v_xor_b32 v{vT1}, v{vT1}, v{vXA}")
    a(f"v_lshlrev_b32 v{vT1}, 4, v{vT1}")
    a(f"v_lshl_add_u32 v{vT0}, v{vT0}, 7, v{vT1}")
    for s in range(4):
        a(f"v_xor_b32 v{vT1}, {32*s}, v{vT0}")
        a(f"v_add_u32 v{vXA+s}, s{sM0}, v{vT1}")
        a(f"v_add_u32 v{vXA+4+s}, {2*K1_SLOT}, v{vXA+s}")
        a(f"v_add_u32 v{vXA+8+s}, {4*K1_SLOT}, v{vXA+s}")
    a(f"v_lshrrev_b32 v{vT0}, 5, v{vL}")
    a(f"v_lshlrev_b32 v{vT0}, 9, v{vT0}")
    a(f"v_bfe_u32 v{vT1}, v{vL}, 2, 2")
    a(f"v_lshl_add_u32 v{vT0}, v{vT1}, 6, v{vT0}")
    a(f"v_bfe_u32 v{vT1}, v{vL}, 4, 1")
    a(f"v_lshl_add_u32 v{vT0}, v{vT1}, 5, v{vT0}")
    a(f"v_and_b32 v{vT1}, 1, v{vL}")
    a(f"v_lshl_add_u32 v{vT0}, v{vT1}, 4, v{vT0}")
    a(f"v_bfe_u32 v{vT1}, v{vL}, 1, 1")
    a(f"v_lshl_add_u32 v{vT0}, v{vT1}, 3, v{vT0}")
    a(f"v_add_u32 v{vWA}, 4096, v{vT0}")
    a(f"v_add_u32 v{vWA+1}, {4096+2*K1_SLOT}, v{vT0}")
    a(f"v_add_u32 v{vWA+2}, {4096+4*K1_SLOT}, v{vT0}")
    vKW, vKB, vKA0, vKA1, vKX, vKP = 56, 57, 58, 59, 60, 61
    a(f"s_mul_i32 s{sKT}, s{sWV}, {K1_KTW}")
    a(f"s_add_u32 s{sKT}, s{sKT}, {K1_KT}")
    a(f"v_lshl_add_u32 v{vKW}, v{vL}, 2, s{sKT}")
    a(f"v_lshl_add_u32 v{vKX}, v{vL}, 4, s{sKT}")
    a(f"s_xor_b32 s{sT}, s{sWV}, 1")
    a(f"s_mul_i32 s{sT}, s{sT}, {K1_KTW}")
    a(f"s_add_u32 s{sT}, s{sT}, {K1_KT}")
    a(f"v_lshl_add_u32 v{vKP}, v{vL}, 4, s{sT}")
    a(f"v_lshrrev_b32 v{vT0}, 5, v{vL}")
    a(f"v_lshl_add_u32 v62, v{vT0}, 4, s{sKT}")
    a(f"v_and_b32 v{vT0}, 31, v{vL}")
    a(f"v_mad_u32_u24 v{vKB}, v{vT0}, v63, v62") if False else None
    a(f"v_mul_u32_u24 v{vT1}, 272, v{vT0}")
    a(f"v_add_u32 v{vKB}, v{vT1}, v62")
    def hrow(tile, m):
        c = swap23(m); al = c >> 3; i = c & 7; aa = 4 * tile + al
        if aa == 0: return i
        if aa == 1: return 8 + [0, 0, 1, 2, 2, 2, 3, 4][i]
        if aa in (2, 3): return 13 + 3 * (aa - 2) + [0, 0, 0, 1, 1, 1, 2, 2][i]
        return 19 + 2 * (aa - 4) + (1 if i >= 5 else 0)
    bases = {(0, 0): 0, (0, 1): 13, (1, 0): 19, (1, 1): 19}
    k = 0
    for tile in range(2):
        for hi in range(2):
            val = 0
            for m in range(16):
                n = hrow(tile, 16 * hi + m) - bases[(tile, hi)]
                assert 0 <= n < 16
                val |= n << (4 * m)
            a(f"s_mov_b32 s{sTAB+k}, {hx(val)}")
            a(f"s_mov_b32 s{sTAB+k+1}, {hx(val >> 32)}")
            k += 2
    a(f"v_and_b32 v{vT1}, 15, v{vL}")
    a(f"v_lshlrev_b32 v{vT1}, 2, v{vT1}")
    a(f"v_cmp_lt_u32 vcc, 15, v{vT0}")
    for tile in range(2):
        a(f"v_lshrrev_b64 v[64:65], v{vT1}, s[{sTAB+4*tile}:{sTAB+4*tile+1}]")
        a(f"v_lshrrev_b64 v[66:67], v{vT1}, s[{sTAB+4*tile+2}:{sTAB+4*tile+3}]")
        a(f"v_and_b32 v64, 15, v64")
        a(f"v_and_b32 v66, 15, v66")
        a(f"v_add_u32 v64, {32+bases[(tile,0)]}, v64")
        a(f"v_add_u32 v66, {32+bases[(tile,1)]}, v66")
        a(f"v_cndmask_b32 v64, v64, v66, vcc")
        a(f"v_mul_u32_u24 v64, 272, v64")
        a(f"v_add_u32 v{68+tile}, v64, v62")
    a(f"s_cmp_eq_u32 s{sMH}, 1")
    a(f"s_cselect_b64 vcc, -1, 0")
    a(f"s_cselect_b32 s{sMASK}, 0xaaaaaaaa, 0")
    a(f"s_cselect_b32 s{sMASK+1}, 0xaaaaaaaa, 0")
    a(f"v_cndmask_b32 v{vKA0}, v68, v69, vcc")
    a(f"v_cndmask_b32 v{vKA1}, v69, v68, vcc")
    DT, Z, W_, E1, E8, E128, G1 = 79, 80, 82, 84, 86, 88, 90
    E = {1: E1, 8: E8}
    for i in range(2, 8): E[i] = 92 + 2 * (i - 2)
    G = {1: G1}
    for i in range(2, 8): G[i] = 104 + 2 * (i - 2)
    CA, CB = 116, 118
    TA, TB_, TH, HX = 120, 122, 124, 126
    CV = [128, 129, 130, 131, 132, 133]
    a("s_waitcnt vmcnt(21)")
    l2e_hi = struct.unpack("<f", struct.pack("<f", LOG2E))[0]
    a(f"s_mov_b32 s{sC0}, {hx(f32(LOG2E))}")
    a(f"s_mov_b32 s{sC0+1}, {hx(f32(LOG2E - l2e_hi))}")
    a(f"v_mul_f32 v120, s{sC0}, v{PLD}")
    a(f"v_fma_f32 v121, v{PLD}, s{sC0}, -v120")
    a(f"v_exp_f32 v122, v120")
    a(f"v_fma_f32 v121, v{PLD}, s{sC0+1}, v121")
    a(f"v_mul_f32 v121, {hx(f32(math.log(2.0)))}, v121")
    a(f"v_fma_f32 v122, v122, v121, v122")
    a(f"v_cvt_pk_bf16_f32 v122, v122, v122")
    a(f"v_lshlrev_b32 v{DT}, 16, v122")
    a(f"v_mul_f32 v{Z}, v{DT}, v{PA}")
    a(f"v_mul_f32 v{Z+1}, v{DT}, v{PA+1}")
    a(f"v_mul_f32 v{PB}, v{DT}, v{PB}")
    a(f"v_mul_f32 v{PB+1}, v{DT}, v{PB+1}")
    a(f"v_mul_f32 v{Z}, s{sC0}, v{Z}")
    a(f"v_mul_f32 v{Z+1}, {hx(f32(1.0/(2*math.pi)))}, v{Z+1}")
    for x in cmul(W_, PC, PB, TA): a(x)
    def direct(dst, v, t):
        o = []
        if v == 1:
            o.append(f"v_exp_f32 v{t}, v{Z}")
            o.append(f"v_fract_f32 v{t+1}, v{Z+1}")
        else:
            o.append(f"v_mul_f32 v{t}, {hx(f32(float(v)))}, v{Z}")
            o.append(f"v_mul_f32 v{t+1}, {hx(f32(float(v)))}, v{Z+1}")
            o.append(f"v_exp_f32 v{t}, v{t}")
            o.append(f"v_fract_f32 v{t+1}, v{t+1}")
        o.append(f"v_cos_f32 v{dst}, v{t+1}")
        o.append(f"v_sin_f32 v{dst+1}, v{t+1}")
        o.append(f"v_pk_mul_f32 {vr(dst,2)}, {vr(dst,2)}, {vr(t,2)} op_sel:[0,0] op_sel_hi:[1,0]")
        return o
    for x in merge(direct(E8, 8, 120), direct(E128, 128, 122), direct(E1, 1, 124), direct(G1, 256, 126)): a(x)
    cvi = [0]
    def put(row, src, negim):
        r = CV[cvi[0] % len(CV)]; cvi[0] += 1
        return [f"v_cvt_pk_bf16_f32 v{r}, v{src}, {'-' if negim else ''}v{src+1}",
                f"ds_write_b32 v{vKW}, v{r} offset:{row*272}"]
    def putr(row, src, negim, regs, cnt):
        r = regs[cnt[0] % len(regs)]; cnt[0] += 1
        return [f"v_cvt_pk_bf16_f32 v{r}, v{src}, {'-' if negim else ''}v{src+1}",
                f"ds_write_b32 v{vKW}, v{r} offset:{row*272}"]
    ca = [0]; cb = [0]; ch = [0]
    sA = putr(0, W_, False, CV[0:2], ca) + cmul(CA, W_, E8, TA)
    for j in range(1, 16):
        sA += putr(j, CA, False, CV[0:2], ca)
        if j < 15: sA += cmul(CA, CA, E8, TA)
    sB = cmul(CB, W_, E128, TB_)
    for j in range(16, 32):
        sB += putr(j, CB, False, CV[2:4], cb)
        if j < 31: sB += cmul(CB, CB, E8, TB_)
    H0 = 32
    sH = [f"v_mov_b32 v{CV[4]}, 0x3f80", f"ds_write_b32 v{vKW}, v{CV[4]} offset:{H0*272}"]
    ch[0] = 1
    P = lambda row, src: putr(H0 + row, src, True, CV[4:6], ch)
    sH += cmul(E[2], E1, E1, TH) + P(1, E1) + cmul(G[2], G1, G1, TH) + P(8, G1)
    sH += cmul(E[3], E[2], E1, TH) + P(2, E[2]) + cmul(E[4], E[2], E[2], TH) + P(13, G[2])
    sH += cmul(G[3], G[2], G1, TH) + P(3, E[3]) + cmul(G[4], G[2], G[2], TH) + P(4, E[4])
    sH += cmul(E[5], E[4], E1, TH) + P(16, G[3]) + cmul(E[6], E[4], E[2], TH) + P(19, G[4])
    sH += cmul(E[7], E[4], E[3], TH) + P(5, E[5]) + cmul(G[5], G[4], G1, TH) + P(6, E[6])
    sH += cmul(G[6], G[4], G[2], TH) + P(7, E[7]) + cmul(G[7], G[4], G[3], TH) + P(21, G[5])
    sH += P(23, G[6]) + P(25, G[7])
    prods = [(9, 1, 2), (10, 1, 4), (11, 1, 6), (12, 1, 8), (14, 2, 4), (15, 2, 8), (17, 3, 4), (18, 3, 8),
             (20, 4, 8), (22, 5, 8), (24, 6, 8), (26, 7, 8)]
    HXs = [126, 134]
    for n, (row, g, e) in enumerate(prods):
        sH += cmul(HXs[n & 1], G[g], E[e], TH)
        if n > 0: sH += P(prods[n-1][0], HXs[(n-1) & 1])
    sH += P(prods[-1][0], HXs[(len(prods)-1) & 1])
    for x in merge(sA, sB, sH): a(x)
    D0, D1 = 24, 40
    FR = 72
    for ks in range(8):
        a(f"ds_read_b128 {vr(FR+12*ks,4)}, v{vKB} offset:{32*ks}")
        a(f"ds_read_b128 {vr(FR+12*ks+4,4)}, v{vKA1} offset:{32*ks}")
        a(f"ds_read_b128 {vr(FR+12*ks+8,4)}, v{vKA0} offset:{32*ks}")
    for ks in range(8):
        a(f"s_waitcnt lgkmcnt({min(15, 21-3*ks)})")
        c1 = "0" if ks == 0 else vr(D1, 16); c0 = "0" if ks == 0 else vr(D0, 16)
        a(f"{MF} {vr(D1,16)}, {vr(FR+12*ks+4,4)}, {vr(FR+12*ks,4)}, {c1}")
        a(f"{MF} {vr(D0,16)}, {vr(FR+12*ks+8,4)}, {vr(FR+12*ks,4)}, {c0}")
    for k in range(4):
        a(f"ds_write_b128 v{vKX}, {vr(D1+4*k,4)} offset:{1024*k}")
    a("s_waitcnt lgkmcnt(0)")
    a("s_barrier")
    for k in range(4):
        a(f"ds_read_b128 {vr(D1+4*k,4)}, v{vKP} offset:{1024*k}")
    a(f"s_lshl_b32 s{sT}, s{sD}, 12")
    a(f"s_lshl_b32 s{sT2}, s{sMH}, 11")
    a(f"s_add_u32 s{sT2}, s{sT2}, s{sT}")
    a(f"s_add_u32 s{sT2}, s{sT2}, {KC}")
    a(f"v_lshlrev_b32 v{vT0}, 4, v{vL}")
    a("s_waitcnt lgkmcnt(0) vmcnt(14)")
    a("s_barrier")
    def reads(c):
        s = c % 5; g = s // 2; off = slot_base(s) - 2 * g * K1_SLOT
        b = BUF[c & 1]
        o = []
        for ks in range(4):
            o.append(f"ds_read_b128 {vr(b+16*ks,4)}, v{vXA+4*g+ks} offset:{off}")
            for st in range(3):
                for h in range(2):
                    o.append(f"ds_read_b64_tr_b16 {vr(b+16*ks+4+4*st+2*h,2)}, v{vWA+g} offset:{off+ks*7168+st*1024+h*256}")
        return o
    def mfmas(c):
        b = BUF[c & 1]; o = []
        for ks in range(4):
            x = vr(b + 16 * ks, 4)
            for st in range(3):
                w = vr(b + 16 * ks + 4 + 4 * st, 4); d = vr(ACC + 16 * st, 16)
                cc = "0" if (c == 0 and ks == 0) else d
                o.append(f"{MF} {d}, {w}, {x}, {cc}" if st < 2 else f"{MF} {d}, {x}, {w}, {cc}")
        return o
    for x in dma(3) + dma(4): a(x)
    for x in reads(0): a(x)
    for k in range(8):
        a(f"v_pk_add_f32 {vr(D0+2*k,2)}, {vr(D0+2*k,2)}, {vr(D1+2*k,2)}")
    a(f"v_cndmask_b32 v{D0+4}, v{D0+4}, v{D0+5}, s[{sMASK}:{sMASK+1}]")
    a(f"v_cndmask_b32 v{D0+12}, v{D0+12}, v{D0+13}, s[{sMASK}:{sMASK+1}]")
    KO = 200
    for k in range(8):
        a(f"v_cvt_pk_bf16_f32 v{KO+k}, v{D0+2*k}, v{D0+2*k+1}")
    a(f"buffer_store_dwordx4 {vr(KO,4)}, v{vT0}, s[{SWS}:{SWS+3}], s{sT2} offen {OPT['st_k1']}")
    a(f"buffer_store_dwordx4 {vr(KO+4,4)}, v{vT0}, s[{SWS}:{SWS+3}], s{sT2} offen offset:1024 {OPT['st_k1']}")
    issued = 5
    for c in range(8):
        if c < 7:
            younger = (issued - (c + 2)) * 7
            a(f"s_waitcnt lgkmcnt(0) vmcnt({younger})")
            a("s_barrier")
            extra = []
            if issued < 8:
                extra = dma(issued); issued += 1
            for x in merge(mfmas(c), reads(c + 1) + extra): a(x)
        else:
            a("s_waitcnt lgkmcnt(0)")
            for x in mfmas(c): a(x)
    a(f"s_mov_b32 s{sC0}, {hx(f32(0.25*LOG2E))}")
    a(f"s_mov_b32 s{sC0+1}, {hx(f32(0.25*LOG2E))}")
    a(f"v_bfe_u32 v{vT1}, v{vL}, 4, 1")
    a(f"v_lshlrev_b32 v{vT1}, 17, v{vT1}")
    a(f"v_lshrrev_b32 v2, 5, v{vL}")
    a(f"v_lshl_add_u32 v{vT1}, v2, 8, v{vT1}")
    a(f"v_and_b32 v2, 15, v{vL}")
    a(f"v_lshl_add_u32 v{vT1}, v2, 4, v{vT1}")
    a(f"s_lshl_b32 s{sT}, s{sHP}, 17")
    a(f"s_lshl_b32 s{sT2}, s{sTB}, 10")
    a(f"s_add_u32 s{sXO}, s{sT}, s{sT2}")
    a(f"s_add_u32 s{sWO}, s{sXO}, 65536")
    a(f"s_lshl_b32 s{sT}, s{sXO}, 1")
    a(f"s_add_u32 s{sT}, s{sT}, {KV}")
    a(f"s_add_u32 s{sT2}, s{sT}, 131072")
    O = 72
    for k in range(8):
        a(f"v_pk_mul_f32 {vr(ACC+2*k,2)}, {vr(ACC+2*k,2)}, s[{sC0}:{sC0+1}]")
    for k in range(8):
        a(f"v_cvt_pk_bf16_f32 v{O+k}, v{ACC+2*k}, v{ACC+2*k+1}")
    a(f"buffer_store_dwordx4 {vr(O,4)}, v{vT0}, s[{SWS}:{SWS+3}], s{sXO} offen {OPT['st_k1']}")
    a(f"buffer_store_dwordx4 {vr(O+4,4)}, v{vT0}, s[{SWS}:{SWS+3}], s{sWO} offen {OPT['st_k1']}")
    for k in range(8):
        a(f"v_cvt_pk_bf16_f32 v{O+8+k}, v{ACC+16+2*k}, v{ACC+16+2*k+1}")
    a(f"buffer_store_dwordx4 {vr(O+8,4)}, v{vT0}, s[{SWS}:{SWS+3}], s{sT} offen {OPT['st_k1']}")
    a(f"buffer_store_dwordx4 {vr(O+12,4)}, v{vT0}, s[{SWS}:{SWS+3}], s{sT2} offen {OPT['st_k1']}")
    for k in range(8):
        a(f"v_cvt_pk_bf16_f32 v{O+16+k}, v{ACC+32+2*k}, v{ACC+32+2*k+1}")
    a(f"buffer_store_dwordx4 {vr(O+16,4)}, v{vT1}, s[{SWS}:{SWS+3}], s{sT} offen offset:1024 {OPT['st_k1']}")
    a(f"buffer_store_dwordx4 {vr(O+20,4)}, v{vT1}, s[{SWS}:{SWS+3}], s{sT} offen offset:1536 {OPT['st_k1']}")
    a.label("L_k1_end")
    a("s_endpgm")
    return a.l, 208

K2_LDS = 163840
CA0 = 131072; CH = 13600
EOFF = 64; OOFF = 64 + 4096 + 64; UOFF = OOFF + 4096
BAR_ITERS = dict(B1=2, B2=5, B3=10, B4=11)

def gen_k2():
    a = Asm()
    SWS, SU, SO = 4, 8, 12
    sWV, sH, sQB, sT, sT2, sIT, sBM, sPASS, sD0 = 16, 17, 18, 19, 20, 21, 22, 23, 24
    sVM = 26
    sDS = 28
    sDV = 30
    sA, sB, sC, sE = 32, 33, 34, 35
    a("s_cmp_ge_u32 s2, 256")
    a("s_cbranch_scc1 L_k2_end")
    srd(a, SWS, 112, 0); srd(a, SU, 0, 0); srd(a, SO, 96, 0)
    a(f"s_load_dwordx2 s[{sDS}:{sDS+1}], s[0:1], 64")
    srd_fin(a, SWS, WS_SIZE); srd_fin(a, SU, 2048 * 512 * 2); srd_fin(a, SO, 2048 * 1024 * 2)
    vL = 1; vL16 = 2
    a(f"v_and_b32 v{vL}, 63, v0")
    a(f"v_lshrrev_b32 v3, 6, v0")
    a(f"v_readfirstlane_b32 s{sWV}, v3")
    a(f"v_lshlrev_b32 v{vL16}, 4, v{vL}")
    a(f"s_and_b32 s{sT}, s2, 7")
    a(f"s_lshr_b32 s{sT2}, s2, 3")
    a(f"s_lshl_b32 s{sH}, s{sT}, 2")
    a(f"s_and_b32 s{sQB}, s{sT2}, 3")
    a(f"s_add_u32 s{sH}, s{sH}, s{sQB}")
    a(f"s_lshr_b32 s{sQB}, s{sT2}, 2")
    a(f"s_lshl_b32 s{sD0}, s{sT}, 5")
    a(f"s_add_u32 s{sD0}, s{sD0}, s{sT2}")
    a(f"s_cmp_ge_u32 s{sWV}, 8")
    a("s_cbranch_scc1 L_k2_conv")
    Q = 4; NM = 8; S = [24, 40]; P = 56; O = 64; KF = [80, 84]; VF = [88, 96]; vKA = 104; vVA = 105; vT = 106
    a(f"s_lshl_b32 s{sQB}, s{sQB}, 3")
    a(f"s_add_u32 s{sQB}, s{sQB}, s{sWV}")
    a(f"s_lshl_b32 s{sT}, s{sH}, 16")
    a(f"s_lshl_b32 s{sT2}, s{sQB}, 10")
    a(f"s_add_u32 s{sT}, s{sT}, s{sT2}")
    a(f"s_lshl_b32 s{sA}, s{sH}, 17")
    a(f"s_add_u32 s{sA}, s{sA}, {KV}")
    a(f"s_mul_i32 s{sB}, s{sWV}, 3072")
    a(f"s_add_u32 s{sC}, s{sA}, s{sB}")
    a(f"s_mov_b32 m0, s{sB}")
    a("s_waitcnt lgkmcnt(0)")
    a(f"buffer_load_dwordx4 {vr(Q,4)}, v{vL16}, s[{SWS}:{SWS+3}], s{sT} offen")
    for k in range(3):
        a(f"buffer_load_dwordx4 v{vL16}, s[{SWS}:{SWS+3}], s{sC} offen offset:{1024*k} lds")
    a(f"s_lshl_b32 s{sB}, s{sWV}, 12")
    for rnd in range(3):
        a(f"s_add_u32 s{sE}, s{sB}, {24576 + rnd*32768}")
        a(f"s_mov_b32 m0, s{sE}")
        a(f"s_add_u32 s{sC}, s{sA}, s{sE}")
        for k in range(4):
            a(f"buffer_load_dwordx4 v{vL16}, s[{SWS}:{SWS+3}], s{sC} offen offset:{1024*k} lds")
    a(f"s_lshl_b32 s{sB}, s{sWV}, 10")
    a(f"s_add_u32 s{sE}, s{sB}, {24576 + 3*32768}")
    a(f"s_mov_b32 m0, s{sE}")
    a(f"s_add_u32 s{sC}, s{sA}, s{sE}")
    a(f"buffer_load_dwordx4 v{vL16}, s[{SWS}:{SWS+3}], s{sC} offen lds")
    a(f"s_mov_b32 s{sVM}, 0x0000ffff")
    a(f"s_mov_b32 s{sVM+1}, 0x0000ffff")
    for r in range(16): a(f"v_mov_b32 v{NM+r}, 0")
    for r in range(16): a(f"v_mov_b32 v{VF[0]+r}, 0x3f803f80")
    bm = 0
    for k, v in BAR_ITERS.items(): bm |= 1 << v
    a(f"s_mov_b32 s{sBM}, {hx(bm)}")
    a(f"s_mov_b32 s{sPASS}, 0")
    a("s_waitcnt vmcnt(13)")
    a("s_barrier")
    a.label("L_k2_pass")
    a(f"v_lshrrev_b32 v{vT}, 5, v{vL}")
    a(f"v_lshlrev_b32 v{vT}, 8, v{vT}")
    a(f"v_and_b32 v{vVA}, 15, v{vL}")
    a(f"v_lshl_add_u32 v{vVA}, v{vVA}, 4, v{vT}")
    a(f"v_mov_b32 v{vKA}, v{vL16}")
    for r in range(16): a(f"v_mov_b32 v{O+r}, 0")
    a(f"s_mov_b32 s{sIT}, 0")
    def rdK(buf, t): return [f"ds_read_b128 {vr(KF[buf],4)}, v{vKA} offset:{2048*t}"]
    def rdV(buf, t): return [f"s_mov_b64 exec, s[{sVM}:{sVM+1}]",
                             f"ds_read_b128 {vr(VF[buf],4)}, v{vVA} offset:{2048*t+1024}",
                             f"ds_read_b128 {vr(VF[buf]+4,4)}, v{vVA} offset:{2048*t+1536}",
                             "s_mov_b64 exec, -1"]
    for x in rdK(0, 0) + rdK(1, 1) + rdV(0, 0): a(x)
    a("s_waitcnt lgkmcnt(3)")
    a(f"{MF} {vr(S[0],16)}, {vr(KF[0],4)}, {vr(Q,4)}, {vr(NM,16)}")
    a("s_nop 7")
    a.label("L_k2_loop")
    a(f"s_bitcmp1_b32 s{sBM}, s{sIT}")
    a("s_cbranch_scc0 L_k2_nobar")
    a("s_waitcnt vmcnt(0)")
    a("s_barrier")
    a.label("L_k2_nobar")
    for t in range(4):
        b = t & 1; nb = b ^ 1
        s = S[b]
        a("s_waitcnt lgkmcnt(2)")
        a(f"{MF} {vr(S[nb],16)}, {vr(KF[nb],4)}, {vr(Q,4)}, {vr(NM,16)}")
        for x in rdK(b, t + 2): a(x)
        for r in range(8): a(f"v_exp_f32 v{s+r}, v{s+r}")
        for r in range(4): a(f"v_cvt_pk_bf16_f32 v{P+r}, v{s+2*r}, v{s+2*r+1}")
        for r in range(8, 10): a(f"v_exp_f32 v{s+r}, v{s+r}")
        a("s_waitcnt lgkmcnt(1)")
        a(f"{MF} {vr(O,16)}, {vr(VF[b],4)}, {vr(P,4)}, {vr(O,16)}")
        for x in rdV(nb, t + 1): a(x)
        for r in range(10, 16): a(f"v_exp_f32 v{s+r}, v{s+r}")
        if t == 3:
            a(f"v_add_u32 v{vKA}, 8192, v{vKA}")
        for r in range(4, 8): a(f"v_cvt_pk_bf16_f32 v{P+r}, v{s+2*r}, v{s+2*r+1}")
        if t == 3:
            a(f"v_add_u32 v{vVA}, 8192, v{vVA}")
            a(f"s_add_u32 s{sIT}, s{sIT}, 1")
            a(f"s_cmp_lt_u32 s{sIT}, 16")
        a(f"{MF} {vr(O,16)}, {vr(VF[b]+4,4)}, {vr(P+4,4)}, {vr(O,16)}")
    a("s_cbranch_scc1 L_k2_loop")
    a("s_waitcnt lgkmcnt(0)")
    a(f"s_cmp_lg_u32 s{sPASS}, 0")
    a("s_cbranch_scc1 L_k2_fin")
    a("s_nop 7")
    a(f"v_mov_b32 v{vT}, v{O+8}")
    for r in range(8): a(f"v_fma_f32 v{vT}, v{O+r}, 0, v{vT}")
    a(f"s_mov_b32 s{sT}, {hx(f32(2.0**-40))}")
    a(f"s_mov_b32 s{sT2}, {hx(f32(2.0**40))}")
    a(f"v_cmp_nle_f32 vcc, s{sT}, v{vT}")
    a(f"v_cmp_nge_f32 s[{sA}:{sA+1}], s{sT2}, v{vT}")
    a("s_nop 3")
    a(f"s_or_b64 vcc, vcc, s[{sA}:{sA+1}]")
    a("s_cbranch_scc0 L_k2_fin")
    a(f"v_mov_b32 v{vKA}, v{vL16}")
    a(f"v_mov_b32 v{vT}, 0xff800000")
    a(f"s_mov_b32 s{sIT}, 0")
    a.label("L_k2_max")
    a(f"ds_read_b128 {vr(KF[0],4)}, v{vKA}")
    a(f"v_add_u32 v{vKA}, 2048, v{vKA}")
    a("s_waitcnt lgkmcnt(0)")
    a(f"{MF} {vr(S[0],16)}, {vr(KF[0],4)}, {vr(Q,4)}, 0")
    a(f"s_add_u32 s{sIT}, s{sIT}, 1")
    for r in range(8): a(f"v_max3_f32 v{vT}, v{S[0]+2*r}, v{S[0]+2*r+1}, v{vT}")
    a(f"s_cmp_lt_u32 s{sIT}, 64")
    a("s_cbranch_scc1 L_k2_max")
    a(f"v_xor_b32 v{vKA}, 32, v{vL}")
    a(f"v_lshlrev_b32 v{vKA}, 2, v{vKA}")
    a(f"ds_bpermute_b32 v{vVA}, v{vKA}, v{vT}")
    a("s_waitcnt lgkmcnt(0)")
    a(f"v_max_f32 v{vT}, v{vT}, v{vVA}")
    for r in range(16): a(f"v_sub_f32 v{NM+r}, 0, v{vT}")
    a(f"s_mov_b32 s{sBM}, 0")
    a(f"s_mov_b32 s{sPASS}, 1")
    a("s_branch L_k2_pass")
    a.label("L_k2_fin")
    a("s_nop 7")
    a("s_nop 3")
    a(f"v_rcp_f32 v{vT}, v{O+8}")
    a(f"s_lshl_b32 s{sT}, s{sQB}, 5")
    a(f"s_add_u32 s{sT}, s{sT}, s{sH}")
    a(f"s_lshl_b32 s{sT}, s{sT}, 10")
    a(f"s_add_u32 s{sT}, s{sT}, {OF}")
    for r in range(8): a(f"v_mul_f32 v{O+r}, v{O+r}, v{vT}")
    for r in range(4): a(f"v_cvt_pk_bf16_f32 v{P+r}, v{O+2*r}, v{O+2*r+1}")
    a(f"buffer_store_dwordx4 {vr(P,4)}, v{vL16}, s[{SWS}:{SWS+3}], s{sT} offen {OPT['st_k2']}")
    a("s_endpgm")
    a.label("L_k2_conv")
    sQ, sCC, sHW, sCB = 36, 37, 38, 39
    U = 4; Y0 = 12; Y1 = 28; FR = [44, 60]; vG = 76; vUW = 77; vZ = 78; vZA = 79; vFX = 80
    vAL, vAH, vB0, vB1, vJ, vHF, vT, vT2, vXW, vXR = 81, 82, 83, 84, 85, 86, 87, 88, 89, 90
    a(f"s_sub_u32 s{sQ}, s{sWV}, 8")
    a(f"s_lshr_b32 s{sCC}, s{sQ}, 1")
    a(f"s_and_b32 s{sHW}, s{sQ}, 1")
    a(f"s_mul_i32 s{sCB}, s{sCC}, {CH}")
    a(f"s_add_u32 s{sCB}, s{sCB}, {CA0}")
    a(f"v_and_b32 v{vJ}, 31, v{vL}")
    a(f"v_lshrrev_b32 v{vHF}, 5, v{vL}")
    a(f"s_lshl_b32 s{sT}, s{sD0}, 2")
    a("s_waitcnt lgkmcnt(0)")
    a(f"s_load_dword s{sDV}, s[{sDS}:{sDS+1}], s{sT}")
    a(f"v_lshlrev_b32 v{vT}, 12, v{vHF}")
    a(f"v_lshl_add_u32 v{vG}, v{vJ}, 15, v{vT}")
    a(f"s_lshl_b32 s{sA}, s{sCC}, 20")
    a(f"s_lshl_b32 s{sB}, s{sHW}, 14")
    a(f"s_add_u32 s{sA}, s{sA}, s{sB}")
    a(f"s_add_u32 s{sB}, s{sA}, s{sT}")
    a(f"s_add_u32 s{sC}, s{sB}, 8192")
    a(f"v_mul_u32_u24 v{vT}, 80, v{vJ}")
    a(f"v_lshl_add_u32 v{vT}, v{vHF}, 3, v{vT}")
    a(f"s_mul_i32 s{sE}, s{sCC}, {80*32}")
    a(f"s_lshl_b32 s{sT2}, s{sHW}, 5")
    a(f"s_add_u32 s{sE}, s{sE}, s{sT2}")
    a(f"s_sub_u32 s{sE}, {CA0+UOFF+80*63+62-22}, s{sE}")
    a(f"v_sub_u32 v{vUW}, s{sE}, v{vT}")
    a(f"s_mul_i32 s{sE}, s{sHW}, {OOFF-EOFF}")
    a(f"s_add_u32 s{sE}, s{sE}, s{sCB}")
    a(f"s_add_u32 s{sE}, s{sE}, {EOFF}")
    a(f"s_mul_i32 s{sT2}, s{sHW}, 80")
    a(f"s_add_u32 s{sT2}, s{sT2}, s{sCB}")
    a(f"s_add_u32 s{sT2}, s{sT2}, {UOFF+64*80-64}")
    a(f"v_min_u32 v{vT}, 35, v{vL}")
    a(f"v_lshl_add_u32 v{vZA}, v{vT}, 2, s{sT2}")
    a(f"s_sub_u32 s{sT2}, s{sE}, 64")
    a(f"v_lshl_add_u32 v{vT2}, v{vL}, 2, s{sT2}")
    a(f"v_cmp_gt_u32 vcc, 16, v{vL}")
    a(f"v_mov_b32 v{vZ}, 0")
    a(f"v_cndmask_b32 v{vZA}, v{vZA}, v{vT2}, vcc")
    a(f"ds_write_b32 v{vZA}, v{vZ}")
    a(f"s_lshl_b32 s{sT2}, s{sHW}, 1")
    a(f"s_add_u32 s{sT2}, s{sT2}, s{sE}")
    a(f"s_sub_u32 s{sT2}, s{sT2}, 2")
    a(f"v_mov_b32 v{vFX}, s{sT2}")
    a(f"s_lshl_b32 s{sT2}, s{sD0}, 1")
    a(f"s_add_u32 s{sT2}, s{sT2}, s{sCC}")
    a(f"s_lshl_b32 s{sT2}, s{sT2}, 12")
    a(f"s_add_u32 s{sT2}, s{sT2}, {KC}")
    a(f"s_lshl_b32 s{sIT}, s{sHW}, 1")
    a(f"s_sub_u32 s{sT2}, s{sT2}, s{sIT}")
    a(f"s_mov_b32 m0, s{sE}")
    a("s_barrier")
    for k in range(4):
        a(f"buffer_load_dwordx4 v{vL16}, s[{SWS}:{SWS+3}], s{sT2} offen offset:{1024*k} lds")
    for rr in range(8):
        a(f"buffer_load_dword v{U+rr}, v{vG}, s[{SU}:{SU+3}], s{sB if rr < 4 else sC} offen offset:{1024*(rr&3)}")
    a(f"v_and_b32 v{vT}, 1, v{vJ}")
    a(f"v_and_b32 v{vT2}, 30, v{vJ}")
    a(f"v_lshlrev_b32 v{vT2}, 1, v{vT2}")
    a(f"v_lshl_add_u32 v{vT2}, v{vHF}, 4, v{vT2}")
    a(f"v_mul_u32_u24 v{vT}, {OOFF-EOFF}, v{vT}")
    a(f"v_sub_u32 v{vT2}, v{vT2}, v{vT}")
    a(f"s_lshl_b32 s{sT2}, s{sHW}, 10")
    a(f"s_add_u32 s{sT2}, s{sT2}, s{sCB}")
    a(f"s_add_u32 s{sT2}, s{sT2}, {OOFF-60}")
    a(f"v_add_u32 v{vAL}, s{sT2}, v{vT2}")
    a(f"v_add_u32 v{vAH}, 2048, v{vAL}")
    a(f"v_mul_u32_u24 v{vT}, 80, v{vJ}")
    a(f"v_lshlrev_b32 v{vT2}, 4, v{vHF}")
    a(f"v_sub_u32 v{vT}, v{vT2}, v{vT}")
    a(f"s_mul_i32 s{sT2}, s{sHW}, {16*80}")
    a(f"s_add_u32 s{sT2}, s{sT2}, s{sCB}")
    a(f"s_add_u32 s{sT2}, s{sT2}, {UOFF+80*31}")
    a(f"v_add_u32 v{vB1}, s{sT2}, v{vT}")
    a(f"s_add_u32 s{sE}, s{sCB}, {UOFF+64*80}")
    a(f"v_add_u32 v{vB0}, {32*80}, v{vB1}")
    a(f"v_min_u32 v{vB0}, s{sE}, v{vB0}")
    a(f"s_lshl_b32 s{sT2}, s{sQ}, 11")
    a(f"s_add_u32 s{sT2}, s{sT2}, {CA0}")
    a(f"v_add_u32 v{vXW}, s{sT2}, v{vL16}")
    a(f"s_lshl_b32 s{sT2}, s{sQ}, 13")
    a(f"s_add_u32 s{sT2}, s{sT2}, {CA0}")
    a(f"v_add_u32 v{vXR}, s{sT2}, v{vL16}")
    for r in range(32): a(f"v_mov_b32 v{Y0+r}, 0")
    a("s_barrier")
    a("s_waitcnt vmcnt(8)")
    a(f"ds_write_b16 v{vFX}, v{vZ}")
    for rr in range(8):
        a(f"s_waitcnt vmcnt({7-rr})")
        off = 2 * (11 - ((rr & 3) + 8 * (rr >> 2)))
        a(f"ds_write_b16 v{vUW}, v{U+rr} offset:{off}")
        a(f"ds_write_b16_d16_hi v{vUW}, v{U+rr} offset:{off+CH}")
    a("s_waitcnt lgkmcnt(0)")
    a("s_barrier")
    def rd(buf, st):
        f = FR[buf]
        bo = (st >> 1) * 80 + (st & 1) * 32
        return [f"ds_read2_b32 {vr(f,2)}, v{vAL} offset0:{8*st} offset1:{8*st+1}",
                f"ds_read2_b32 {vr(f+2,2)}, v{vAL} offset0:{8*st+2} offset1:{8*st+3}",
                f"ds_read_b128 {vr(f+12,4)}, v{vB1} offset:{bo}",
                f"ds_read_b128 {vr(f+8,4)}, v{vB0} offset:{bo}",
                f"ds_read2_b32 {vr(f+4,2)}, v{vAH} offset0:{8*st} offset1:{8*st+1}",
                f"ds_read2_b32 {vr(f+6,2)}, v{vAH} offset0:{8*st+2} offset1:{8*st+3}"]
    for x in rd(0, 0): a(x)
    a(f"s_mov_b32 s{sIT}, 0")
    a.label("L_k2_cloop")
    for st in range(4):
        b = st & 1; f = FR[b]
        if st == 3:
            a(f"v_add_u32 v{vAL}, 128, v{vAL}")
            a(f"v_add_u32 v{vAH}, 128, v{vAH}")
            a(f"v_add_u32 v{vB1}, 160, v{vB1}")
            a(f"v_add_u32 v{vB0}, 160, v{vB0}")
            a(f"v_min_u32 v{vB0}, s{sE}, v{vB0}")
        for x in rd(b ^ 1, (st + 1) & 3): a(x)
        a("s_waitcnt lgkmcnt(6)")
        a(f"{MF} {vr(Y1,16)}, {vr(f,4)}, {vr(f+12,4)}, {vr(Y1,16)}")
        a(f"{MF} {vr(Y0,16)}, {vr(f,4)}, {vr(f+8,4)}, {vr(Y0,16)}")
        a(f"{MF} {vr(Y1,16)}, {vr(f+4,4)}, {vr(f+8,4)}, {vr(Y1,16)}")
    a(f"s_add_u32 s{sIT}, s{sIT}, 1")
    a(f"s_cmp_lt_u32 s{sIT}, 8")
    a("s_cbranch_scc1 L_k2_cloop")
    a("s_waitcnt lgkmcnt(0)")
    a("s_barrier")
    for qq in range(4):
        for hh in range(2):
            a(f"ds_write_b128 v{vXW}, {vr(Y0+8*qq+4*hh,4)} offset:{8192*qq+1024*hh}")
    a("s_waitcnt lgkmcnt(0)")
    a("s_barrier")
    X = 12
    for src in range(4):
        for hh in range(2):
            a(f"ds_read_b128 {vr(X+8*src+4*hh,4)}, v{vXR} offset:{2048*src+1024*hh}")
    a(f"s_and_b32 s{sDV+1}, s{sDV}, 0xffff0000")
    a(f"s_lshl_b32 s{sDV}, s{sDV}, 16")
    a(f"v_lshlrev_b32 v{vG}, 1, v{vG}")
    a(f"s_lshl_b32 s{sA}, s{sA}, 1")
    a(f"s_add_u32 s{sA}, s{sA}, s{sT}")
    a(f"s_add_u32 s{sB}, s{sA}, 4096")
    a(f"s_add_u32 s{sC}, s{sA}, 16384")
    a(f"s_add_u32 s{sE}, s{sA}, {16384+4096}")
    UU = 44
    for rr in range(8):
        a(f"v_lshlrev_b32 v{UU+2*rr}, 16, v{U+rr}")
        a(f"v_and_b32 v{UU+2*rr+1}, 0xffff0000, v{U+rr}")
    a("s_waitcnt lgkmcnt(0)")
    for k in range(4):
        a(f"v_pk_add_f32 {vr(X+2*k,2)}, {vr(X+2*k,2)}, {vr(X+8+2*k,2)}")
        a(f"v_pk_add_f32 {vr(X+16+2*k,2)}, {vr(X+16+2*k,2)}, {vr(X+24+2*k,2)}")
    so = [sA, sA, sB, sB, sC, sC, sE, sE]
    for rr in range(8):
        a(f"v_fma_f32 v{X+rr}, v{UU+2*rr}, s{sDV}, v{X+rr}")
        a(f"v_fma_f32 v{X+16+rr}, v{UU+2*rr+1}, s{sDV+1}, v{X+16+rr}")
        a(f"v_cvt_pk_bf16_f32 v{U+rr}, v{X+rr}, v{X+16+rr}")
        a(f"buffer_store_dword v{U+rr}, v{vG}, s[{SO}:{SO+3}], s{so[rr]} offen offset:{2048*(rr&1)} {OPT['st_k2']}")
    a.label("L_k2_end")
    a("s_endpgm")
    return a.l, 112

K3_LDS = 65536 + 16384
def gen_k3():
    a = Asm()
    SWS, SW, SO = 4, 8, 12
    sWV, sTT, sCB, sT, sT2, sTS, sKH, sOO, sWO, sM0 = 16, 17, 18, 19, 20, 21, 22, 23, 24, 25
    a("s_cmp_ge_u32 s2, 256")
    a("s_cbranch_scc1 L_k3_end")
    srd(a, SWS, 112, 0); srd(a, SW, 88, 0); srd(a, SO, 96, 0)
    srd_fin(a, SWS, WS_SIZE); srd_fin(a, SW, 512 * 512 * 2); srd_fin(a, SO, 2048 * 1024 * 2)
    vL, vL16, vW, vT, vT2, vA0, vA1, vXW, vXR, vST = 1, 2, 3, 4, 5, 6, 7, 8, 9, 10
    D = [12, 28]; OFR = 44; WF = 108
    a(f"v_and_b32 v{vL}, 63, v0")
    a(f"v_lshrrev_b32 v{vT}, 6, v0")
    a(f"v_readfirstlane_b32 s{sWV}, v{vT}")
    a(f"v_lshlrev_b32 v{vL16}, 4, v{vL}")
    a(f"s_and_b32 s{sT}, s2, 7")
    a(f"s_lshr_b32 s{sT2}, s2, 3")
    a(f"s_lshl_b32 s{sTT}, s{sT}, 2")
    a(f"s_and_b32 s{sT}, s{sT2}, 3")
    a(f"s_add_u32 s{sTT}, s{sTT}, s{sT}")
    a(f"s_lshr_b32 s{sCB}, s{sT2}, 2")
    a(f"s_and_b32 s{sTS}, s{sWV}, 1")
    a(f"s_lshr_b32 s{sKH}, s{sWV}, 1")
    a(f"s_lshl_b32 s{sTT}, s{sTT}, 1")
    a(f"s_add_u32 s{sTT}, s{sTT}, s{sTS}")
    a(f"s_lshl_b32 s{sOO}, s{sTT}, 15")
    a(f"s_lshl_b32 s{sT}, s{sKH}, 14")
    a(f"s_add_u32 s{sOO}, s{sOO}, s{sT}")
    a(f"s_add_u32 s{sOO}, s{sOO}, {OF}")
    a(f"v_bfe_u32 v{vT}, v{vL}, 4, 1")
    a(f"v_lshlrev_b32 v{vT}, 2, v{vT}")
    a(f"v_and_b32 v{vT2}, 7, v{vL}")
    a(f"v_xor_b32 v{vT}, v{vT}, v{vT2}")
    a(f"v_lshlrev_b32 v{vT}, 4, v{vT}")
    a(f"v_lshrrev_b32 v{vT2}, 3, v{vL}")
    a(f"v_lshl_add_u32 v{vW}, v{vT2}, 10, v{vT}")
    a(f"s_lshl_b32 s{sT}, s{sKH}, 8")
    a(f"s_lshl_b32 s{sT2}, s{sTS}, 5")
    a(f"s_add_u32 s{sT}, s{sT}, s{sT2}")
    a(f"s_lshl_b32 s{sM0}, s{sT}, 7")
    a(f"s_lshl_b32 s{sWO}, s{sT}, 10")
    a(f"s_lshl_b32 s{sT2}, s{sCB}, 7")
    a(f"s_add_u32 s{sWO}, s{sWO}, s{sT2}")
    a("s_waitcnt lgkmcnt(0)")
    for g in range(4):
        a(f"s_add_u32 m0, s{sM0}, {g*8192}")
        for q in range(4):
            a(f"s_add_u32 s{sT}, s{sWO}, {g*65536 + q*7168}")
            a(f"buffer_load_dwordx4 v{vW}, s[{SW}:{SW+3}], s{sT} offen offset:{1024*q} lds")
        a(f"s_add_u32 s{sT}, s{sOO}, {g*4096}")
        for q in range(4):
            a(f"buffer_load_dwordx4 {vr(OFR+16*g+4*q,4)}, v{vL16}, s[{SWS}:{SWS+3}], s{sT} offen offset:{1024*q}")
    a(f"v_lshrrev_b32 v{vT}, 5, v{vL}")
    a(f"v_lshlrev_b32 v{vT}, 10, v{vT}")
    a(f"v_bfe_u32 v{vT2}, v{vL}, 2, 2")
    a(f"v_lshl_add_u32 v{vT}, v{vT2}, 7, v{vT}")
    a(f"v_bfe_u32 v{vT2}, v{vL}, 3, 1")
    a(f"v_lshl_add_u32 v{vT}, v{vT2}, 6, v{vT}")
    a(f"v_bfe_u32 v{vT2}, v{vL}, 4, 1")
    a(f"v_lshl_add_u32 v{vT}, v{vT2}, 5, v{vT}")
    a(f"v_and_b32 v{vT2}, 1, v{vL}")
    a(f"v_lshl_add_u32 v{vT}, v{vT2}, 4, v{vT}")
    a(f"v_bfe_u32 v{vT2}, v{vL}, 1, 1")
    a(f"v_lshl_add_u32 v{vT}, v{vT2}, 3, v{vT}")
    a(f"s_mul_i32 s{sT}, s{sKH}, {32768+64}")
    a(f"v_xor_b32 v{vA0}, s{sT}, v{vT}")
    a(f"v_xor_b32 v{vA1}, 64, v{vA0}")
    a(f"s_lshl_b32 s{sT}, s{sWV}, 12")
    a(f"s_add_u32 s{sT}, s{sT}, 65536")
    a(f"v_add_u32 v{vXW}, s{sT}, v{vL16}")
    a(f"s_xor_b32 s{sT}, s{sT}, 8192")
    a(f"v_add_u32 v{vXR}, s{sT}, v{vL16}")
    a(f"v_and_b32 v{vT}, 31, v{vL}")
    a(f"v_lshlrev_b32 v{vT}, 11, v{vT}")
    a(f"v_lshrrev_b32 v{vT2}, 5, v{vL}")
    a(f"v_lshl_add_u32 v{vST}, v{vT2}, 4, v{vT}")
    a(f"s_lshl_b32 s{sOO}, s{sTT}, 16")
    a(f"s_lshl_b32 s{sT}, s{sCB}, 7")
    a(f"s_add_u32 s{sOO}, s{sOO}, s{sT}")
    a(f"s_lshl_b32 s{sT}, s{sKH}, 6")
    a(f"s_add_u32 s{sOO}, s{sOO}, s{sT}")
    def reads(g):
        o = []; b = WF + 32 * (g & 1)
        for ks in range(4):
            for ct, va in enumerate((vA0, vA1)):
                for h in range(2):
                    o.append(f"ds_read_b64_tr_b16 {vr(b+8*ks+4*ct+2*h,2)}, v{va} offset:{g*8192+ks*2048+h*512}")
        return o
    def mfmas(g):
        o = []; b = WF + 32 * (g & 1)
        for ks in range(4):
            for ct in (1, 0):
                cc = "0" if (g == 0 and ks == 0) else vr(D[ct], 16)
                o.append(f"{MF} {vr(D[ct],16)}, {vr(b+8*ks+4*ct,4)}, {vr(OFR+16*g+4*ks,4)}, {cc}")
        return o
    a("s_waitcnt vmcnt(24)")
    a("s_barrier")
    for x in reads(0): a(x)
    for g in range(4):
        if g < 3:
            a(f"s_waitcnt lgkmcnt(0) vmcnt({8*(2-g)})")
            a("s_barrier")
            for x in merge(mfmas(g), reads(g + 1)): a(x)
        else:
            a("s_waitcnt lgkmcnt(0)")
            for x in mfmas(g): a(x)
    for k in range(4):
        a(f"ds_write_b128 v{vXW}, {vr(D[1]+4*k,4)} offset:{1024*k}")
    a("s_waitcnt lgkmcnt(0)")
    a("s_barrier")
    for k in range(4):
        a(f"ds_read_b128 {vr(D[1]+4*k,4)}, v{vXR} offset:{1024*k}")
    a("s_waitcnt lgkmcnt(0)")
    for k in range(8):
        a(f"v_pk_add_f32 {vr(D[0]+2*k,2)}, {vr(D[0]+2*k,2)}, {vr(D[1]+2*k,2)}")
    for k in range(8):
        a(f"v_cvt_pk_bf16_f32 v{OFR+k}, v{D[0]+2*k}, v{D[0]+2*k+1}")
    a(f"buffer_store_dwordx4 {vr(OFR,4)}, v{vST}, s[{SO}:{SO+3}], s{sOO} offen offset:1024 {OPT['st_k3']}")
    a(f"buffer_store_dwordx4 {vr(OFR+4,4)}, v{vST}, s[{SO}:{SO+3}], s{sOO} offen offset:1056 {OPT['st_k3']}")
    a.label("L_k3_end")
    a("s_endpgm")
    return a.l, 172

def build(path, extra_empty=0):
    ref = open(f"cdna_kernels/{NAME}.s.ref").read().split("\n")
    head = [l for l in ref if l.startswith(";") and "@launch" not in l]
    ks = [("qkv_kgen_kernel", gen_k1, 256, K1_LDS), ("attn_conv_kernel", gen_k2, 768, K2_LDS), (f"{NAME}_kernel", gen_k3, 256, K3_LDS)]
    out = list(head)
    for n, g, blk, lds in ks:
        out.append(f"; @launch kernel={n} grid=(256,1,1) block=({blk},1,1) lds={lds}")
    for i in range(extra_empty):
        out.append(f"; @launch kernel=empty_kernel grid=(256,1,1) block=(256,1,1) lds=0")
    out += ['.amdgcn_target "amdgcn-amd-amdhsa--gfx950"', ".text"]
    kds = []
    if extra_empty:
        ks = ks + [("empty_kernel", lambda: (["s_endpgm"], 8), 256, 0)]
    for n, g, blk, lds in ks:
        lines, nv = g()
        lines = pad(lines)
        out += [f".globl {n}", ".p2align 8", f".type {n},@function", f"{n}:"]
        out += [l if l.endswith(":") else "    " + l for l in lines]
        nv4 = (nv + 7) // 8 * 8
        kds += [".p2align 6", f".amdhsa_kernel {n}", f"  .amdhsa_next_free_vgpr {nv4}", "  .amdhsa_next_free_sgpr 102",
                f"  .amdhsa_accum_offset {nv4}", "  .amdhsa_group_segment_fixed_size 0", "  .amdhsa_kernarg_size 120",
                "  .amdhsa_user_sgpr_count 2", "  .amdhsa_user_sgpr_kernarg_segment_ptr 1",
                "  .amdhsa_system_sgpr_workgroup_id_x 1", ".end_amdhsa_kernel"]
    out += ['.section .rodata,"a"'] + kds
    open(path, "w").write("\n".join(out) + "\n")

if __name__ == "__main__":
    build(f"cdna_kernels/{NAME}.s")
```

```python
import sys, struct, math
sys.path.insert(0, "gen")
from asmlib import *

NAME = "concat_heads__ssm_conv_s4__mha_block__prompt"
QF = 0x000000; KV = 0x200000; OF = 0x600000; KC = 0x800000; WS_SIZE = 0xA00000
PROF = False; PROF_OFF = 0xA00000
LOG2E = 1.4426950408889634
def f32(x): return struct.unpack("<I", struct.pack("<f", x))[0]
def hx(x): return "0x%08x" % (x & 0xffffffff)
def swap23(m): return (m & ~12) | ((m & 4) << 1) | ((m & 8) >> 1)
MF = "v_mfma_f32_32x32x16_bf16"
OPT = dict(st_k1="", st_k2="", st_k3="")

def srd(a, base, koff, size):
    a(f"s_load_dwordx2 s[{base}:{base+1}], s[0:1], {koff}")
def srd_fin(a, base, size):
    a(f"s_mov_b32 s{base+2}, {hx(size)}")
    a(f"s_mov_b32 s{base+3}, 0x00020000")

def wsz(): return WS_SIZE + (0x100000 if PROF else 0)
def stamp(a, i):
    if PROF: a(f"s_memrealtime s[{70+2*i}:{71+2*i}]")
def stampc(a, i):
    if PROF: a(f"s_memtime s[{70+2*i}:{71+2*i}]")
def stamp_init(a):
    if PROF:
        for i in range(70, 100): a(f"s_mov_b32 s{i}, 0")
        stamp(a, 0)
        a("s_memtime s[100:101]")
def stamp_out(a, kidx, sws, swv, wait=True):
    if not PROF: return
    if wait: a("s_waitcnt vmcnt(0)")
    stamp(a, 14)
    a("s_memtime s[68:69]")
    a("s_waitcnt lgkmcnt(0)")
    a("s_sub_u32 s69, s68, s100")
    a(f"s_lshl_b32 s68, s2, 4")
    a(f"s_add_u32 s68, s68, s{swv}")
    a(f"s_lshl_b32 s68, s68, 6")
    a(f"s_add_u32 s68, s68, {PROF_OFF + kidx*0x40000}")
    for i in range(15): a(f"v_mov_b32 v{4+i}, s{70+2*i}")
    a("v_mov_b32 v19, s69")
    for k in range(4): a(f"buffer_store_dwordx4 v[{4+4*k}:{7+4*k}], off, s[{sws}:{sws+3}], s68 offset:{16*k}")

def cmul(dst, x, y, t):
    return [f"v_pk_mul_f32 {vr(t,2)}, {vr(x,2)}, {vr(y,2)} op_sel:[0,0] op_sel_hi:[0,1]",
            f"v_pk_fma_f32 {vr(dst,2)}, {vr(x,2)}, {vr(y,2)}, {vr(t,2)} op_sel:[1,1,0] op_sel_hi:[1,0,1] neg_lo:[0,1,0]"]

K1_SLOT = 32768; K1_KT = 3 * K1_SLOT; K1_KTW = 59 * 272; K1_LDS = K1_KT + 4 * K1_KTW
K1_CUT = [0.25, 0.85]

def gen_k1():
    a = Asm()
    SX, SW, SWS = 4, 8, 12
    sWV, sTB, sHQ, sXO, sWO, sM0, sT, sT2, sC0R = 44, 45, 46, 47, 48, 49, 50, 51, 52
    sC0 = 56
    a("s_cmp_ge_u32 s2, 256")
    a("s_cbranch_scc1 L_k1_end")
    a(f"v_lshrrev_b32 v7, 6, v0")
    a(f"v_and_b32 v1, 63, v0")
    a(f"v_readfirstlane_b32 s{sWV}, v7")
    srd(a, SWS, 112, 0)
    a(f"s_mov_b32 s43, s{sWV}")
    a(f"s_cmp_lt_u32 s{sWV}, 4")
    a("s_cbranch_scc1 L_k1_gen")
    a(f"s_sub_u32 s{sWV}, s{sWV}, 4")
    srd(a, SX, 72, 0); srd(a, SW, 80, 0)
    stamp_init(a)
    srd_fin(a, SX, 2048 * 512 * 2); srd_fin(a, SW, 512 * 1536 * 2); srd_fin(a, SWS, wsz())
    vL = 1; vX = 2; vW = 4; vT0 = 7; vXA = 8; vWA = 16; vT1 = 23
    ACC = 24; BUF = [72, 136]
    a(f"s_bfe_u32 s{sTB}, s2, {1 | (2 << 16)}")
    a(f"s_lshl_b32 s{sTB}, s{sTB}, 3")
    a(f"s_bfe_u32 s{sT}, s2, {3 | (3 << 16)}")
    a(f"s_add_u32 s{sTB}, s{sTB}, s{sT}")
    a(f"s_and_b32 s{sHQ}, s2, 1")
    a(f"s_lshl_b32 s{sHQ}, s{sHQ}, 2")
    a(f"s_lshr_b32 s{sT2}, s2, 6")
    a(f"s_add_u32 s{sHQ}, s{sHQ}, s{sT2}")
    a(f"s_lshl_b32 s{sT2}, s{sT2}, 1")
    a(f"s_add_u32 s{sC0R}, s{sT}, s{sT2}")
    a(f"v_lshrrev_b32 v{vT0}, 4, v{vL}")
    a(f"v_and_b32 v{vT1}, 7, v{vL}")
    a(f"v_xor_b32 v{vT0}, v{vT0}, v{vT1}")
    a(f"v_lshlrev_b32 v{vT0}, 4, v{vT0}")
    a(f"v_lshrrev_b32 v5, 3, v{vL}")
    a(f"v_lshl_add_u32 v{vX}, v5, 10, v{vT0}")
    a(f"v_xor_b32 v{vT0}, 64, v{vX}")
    a(f"v_add_u32 v{vX+1}, 7168, v{vT0}")
    a(f"v_bfe_u32 v{vT0}, v{vL}, 4, 1")
    a(f"v_lshlrev_b32 v{vT0}, 2, v{vT0}")
    a(f"v_xor_b32 v{vT0}, v{vT0}, v{vT1}")
    a(f"v_mul_u32_u24 v5, 3072, v5")
    a(f"v_lshl_add_u32 v{vW}, v{vT0}, 4, v5")
    a(f"s_lshl_b32 s{sXO}, s{sTB}, 2")
    a(f"s_add_u32 s{sXO}, s{sXO}, s{sWV}")
    a(f"s_lshl_b32 s{sXO}, s{sXO}, 14")
    a(f"s_mul_i32 s{sWO}, s{sWV}, {16*3072}")
    a(f"s_lshl_b32 s{sT}, s{sHQ}, 7")
    a(f"s_add_u32 s{sWO}, s{sWO}, s{sT}")
    a(f"s_lshl_b32 s{sM0}, s{sWV}, 13")
    def dma(c):
        sb = (c % 3) * K1_SLOT
        o = []
        o.append(f"s_add_u32 s{sT2}, s{sC0R}, {c}")
        o.append(f"s_and_b32 s{sT2}, s{sT2}, 7")
        o.append(f"s_lshl_b32 s{sT}, s{sT2}, 7")
        o.append(f"s_add_u32 s{sT}, s{sT}, s{sXO}")
        o.append(f"s_add_u32 m0, s{sM0}, {sb}")
        o.append(f"s_mul_i32 s{sT2}, s{sT2}, {64*3072}")
        for q in range(2):
            o.append(f"buffer_load_dwordx4 v{vX+q}, s[{SX}:{SX+3}], s{sT} offen offset:{q*1024} lds")
        o.append(f"s_add_u32 m0, s{sM0}, {sb+2048}")
        o.append(f"s_add_u32 s{sT}, s{sT2}, s{sWO}")
        for st in range(3):
            o.append(f"buffer_load_dwordx4 v{vW}, s[{SW}:{SW+3}], s{sT} offen offset:{st*1024} lds")
        o.append(f"s_add_u32 m0, s{sM0}, {sb+5120}")
        o.append(f"s_add_u32 s{sT}, s{sT}, {8*3072}")
        for st in range(3):
            o.append(f"buffer_load_dwordx4 v{vW}, s[{SW}:{SW+3}], s{sT} offen offset:{st*1024} lds")
        return o
    a("s_waitcnt lgkmcnt(0)")
    stamp(a, 1)
    for x in dma(0): a(x)
    sTS, sHP = 53, 54
    a(f"s_and_b32 s{sTS}, s{sWV}, 1")
    a(f"s_lshr_b32 s{sHP}, s{sWV}, 1")
    a(f"v_and_b32 v{vT0}, 15, v{vL}")
    a(f"v_bfe_u32 v{vT1}, v{vL}, 1, 3")
    a(f"v_lshrrev_b32 v5, 5, v{vL}")
    a(f"v_xor_b32 v{vT1}, v{vT1}, v5")
    a(f"v_lshlrev_b32 v{vT1}, 4, v{vT1}")
    a(f"v_lshl_add_u32 v{vT0}, v{vT0}, 7, v{vT1}")
    a(f"v_bfe_u32 v{vT1}, v{vL}, 4, 1")
    a(f"v_lshl_add_u32 v{vT0}, v{vT1}, 13, v{vT0}")
    a(f"s_lshl_b32 s{sC0}, s{sTS}, 14")
    a(f"v_add_u32 v{vT0}, s{sC0}, v{vT0}")
    for s in range(4):
        a(f"v_xor_b32 v{vXA+s}, {32*s}, v{vT0}")
        a(f"v_add_u32 v{vXA+4+s}, {2*K1_SLOT}, v{vXA+s}")
    a(f"v_mul_u32_u24 v{vT0}, 3072, v5")
    a(f"v_bfe_u32 v{vT1}, v{vL}, 2, 2")
    a(f"v_lshl_add_u32 v{vT0}, v{vT1}, 7, v{vT0}")
    a(f"v_bfe_u32 v{vT1}, v{vL}, 3, 1")
    a(f"v_xor_b32 v{vT1}, s{sHP}, v{vT1}")
    a(f"v_lshl_add_u32 v{vT0}, v{vT1}, 6, v{vT0}")
    a(f"v_bfe_u32 v{vT1}, v{vL}, 4, 1")
    a(f"v_lshl_add_u32 v{vT0}, v{vT1}, 5, v{vT0}")
    a(f"v_and_b32 v{vT1}, 1, v{vL}")
    a(f"v_lshl_add_u32 v{vT0}, v{vT1}, 4, v{vT0}")
    a(f"v_bfe_u32 v{vT1}, v{vL}, 1, 1")
    a(f"v_lshl_add_u32 v{vT0}, v{vT1}, 3, v{vT0}")
    a(f"v_add_u32 v{vWA}, 2048, v{vT0}")
    a(f"v_add_u32 v{vWA+1}, {2048+2*K1_SLOT}, v{vT0}")
    vST, vSV = 18, 19
    a(f"v_lshlrev_b32 v{vST}, 4, v{vL}")
    a(f"v_bfe_u32 v{vT1}, v{vL}, 4, 1")
    a(f"v_lshlrev_b32 v{vT1}, 17, v{vT1}")
    a(f"v_lshl_add_u32 v{vT1}, v5, 9, v{vT1}")
    a(f"v_and_b32 v{vT0}, 15, v{vL}")
    a(f"v_lshl_add_u32 v{vSV}, v{vT0}, 4, v{vT1}")
    for x in dma(1): a(x)
    stamp(a, 2)
    def reads(c):
        s = c % 3; g = s // 2; off = s * K1_SLOT - 2 * g * K1_SLOT
        b = BUF[c & 1]
        o = []
        for ks in range(4):
            o.append(f"ds_read_b128 {vr(b+16*ks,4)}, v{vXA+4*g+ks} offset:{off}")
            for st in range(3):
                for h in range(2):
                    o.append(f"ds_read_b64_tr_b16 {vr(b+16*ks+4+4*st+2*h,2)}, v{vWA+g} offset:{off+ks*8192+st*1024+h*512}")
        return o
    def mfmas(c, kss=range(4)):
        b = BUF[c & 1]; o = []
        for ks in kss:
            x = vr(b + 16 * ks, 4)
            for st in range(3):
                w = vr(b + 16 * ks + 4 + 4 * st, 4); d = vr(ACC + 16 * st, 16)
                cc = "0" if (c == 0 and ks == 0) else d
                o.append(f"{MF} {d}, {w}, {x}, {cc}" if st < 2 else f"{MF} {d}, {x}, {w}, {cc}")
        return o
    for c in range(8):
        a(f"s_waitcnt lgkmcnt(0) vmcnt({8 if c < 7 else 0})")
        a("s_barrier")
        stamp(a, 3 + c)
        for x in merge(mfmas(c - 1) if c else [], reads(c) + (dma(c + 2) if c + 2 < 8 else [])): a(x)
    a(f"s_mov_b32 s{sC0}, {hx(f32(0.25*LOG2E))}")
    a(f"s_mov_b32 s{sC0+1}, {hx(f32(0.25*LOG2E))}")
    a(f"s_lshl_b32 s{sT}, s{sHQ}, 1")
    a(f"s_add_u32 s{sT}, s{sT}, s{sHP}")
    a(f"s_lshl_b32 s{sT}, s{sT}, 17")
    a(f"s_lshl_b32 s{sT2}, s{sTB}, 1")
    a(f"s_add_u32 s{sT2}, s{sT2}, s{sTS}")
    a(f"s_lshl_b32 s{sT2}, s{sT2}, 10")
    a(f"s_add_u32 s{sXO}, s{sT}, s{sT2}")
    a(f"s_add_u32 s{sWO}, s{sXO}, 65536")
    a(f"s_lshl_b32 s{sT}, s{sXO}, 1")
    a(f"s_add_u32 s{sT}, s{sT}, {KV}")
    a(f"s_add_u32 s{sT2}, s{sT}, 131072")
    a("s_waitcnt lgkmcnt(0)")
    for x in mfmas(7): a(x)
    stamp(a, 11)
    O = 72
    for k in range(8):
        a(f"v_pk_mul_f32 {vr(ACC+2*k,2)}, {vr(ACC+2*k,2)}, s[{sC0}:{sC0+1}]")
    for k in range(8):
        a(f"v_cvt_pk_bf16_f32 v{O+k}, v{ACC+2*k}, v{ACC+2*k+1}")
    a(f"buffer_store_dwordx4 {vr(O,4)}, v{vST}, s[{SWS}:{SWS+3}], s{sXO} offen {OPT['st_k1']}")
    a(f"buffer_store_dwordx4 {vr(O+4,4)}, v{vST}, s[{SWS}:{SWS+3}], s{sWO} offen {OPT['st_k1']}")
    for k in range(8):
        a(f"v_cvt_pk_bf16_f32 v{O+8+k}, v{ACC+16+2*k}, v{ACC+16+2*k+1}")
    a(f"buffer_store_dwordx4 {vr(O+8,4)}, v{vST}, s[{SWS}:{SWS+3}], s{sT} offen {OPT['st_k1']}")
    a(f"buffer_store_dwordx4 {vr(O+12,4)}, v{vST}, s[{SWS}:{SWS+3}], s{sT2} offen {OPT['st_k1']}")
    for k in range(8):
        a(f"v_cvt_pk_bf16_f32 v{O+16+k}, v{ACC+32+2*k}, v{ACC+32+2*k+1}")
    a(f"buffer_store_dwordx4 {vr(O+16,4)}, v{vSV}, s[{SWS}:{SWS+3}], s{sT} offen offset:1024 {OPT['st_k1']}")
    a(f"buffer_store_dwordx4 {vr(O+20,4)}, v{vSV}, s[{SWS}:{SWS+3}], s{sT} offen offset:1280 {OPT['st_k1']}")
    stamp(a, 12)
    stamp_out(a, 0, SWS, 43)
    a("s_endpgm")
    a.label("L_k1_gen")
    SP0, SLD, SDS = 16, 40, 4
    sD, sMH, sKT, sMASK, sTAB, sG = 52, 53, 54, 58, 60, 55
    for i in range(6): srd(a, SP0 + 4 * i, 8 + 8 * i, 0)
    srd(a, SLD, 56, 0); srd(a, SDS, 64, 0)
    stamp_init(a)
    srd_fin(a, SWS, wsz())
    for i in range(6): srd_fin(a, SP0 + 4 * i, 512 * 128 * 2)
    srd_fin(a, SLD, 1024); srd_fin(a, SDS, 1024)
    PA, PB, PC, PLD, PDS = 72, 74, 76, 78, 71
    for r in range(71, 79): a(f"v_mov_b32 v{r}, 0")
    a(f"v_and_b32 v{vT0}, 255, v0")
    a(f"v_lshlrev_b32 v{vT0}, 1, v{vT0}")
    a(f"v_and_b32 v{vT1}, 127, v0")
    a(f"v_lshlrev_b32 v{vT1}, 10, v{vT1}")
    a(f"s_lshl_b32 s{sT}, s2, 9")
    a(f"s_mov_b32 s{sG}, s{sWV}")
    a(f"s_lshr_b32 s{sD}, s{sG}, 1")
    a(f"s_lshl_b32 s{sT2}, s2, 1")
    a(f"s_add_u32 s{sD}, s{sD}, s{sT2}")
    a(f"s_and_b32 s{sMH}, s{sG}, 1")
    a(f"s_lshl_b32 s{sT2}, s{sD}, 1")
    a("s_waitcnt lgkmcnt(0)")
    a(f"buffer_load_short_d16_hi v{PLD}, off, s[{SLD}:{SLD+3}], s{sT2}")
    for i in range(6):
        a(f"buffer_load_short_d16_hi v{72+i}, v{vT0}, s[{SP0+4*i}:{SP0+4*i+3}], s{sT} offen")
    a(f"buffer_load_short_d16_hi v{PDS}, v{vT1}, s[{SDS}:{SDS+3}], s{sT2} offen")
    vKW, vKB, vKA0, vKA1, vKX, vKP = 56, 57, 58, 59, 60, 61
    a(f"s_mul_i32 s{sKT}, s{sG}, {K1_KTW}")
    a(f"s_add_u32 s{sKT}, s{sKT}, {K1_KT}")
    a(f"v_lshl_add_u32 v{vKW}, v{vL}, 2, s{sKT}")
    a(f"v_lshl_add_u32 v{vKX}, v{vL}, 4, s{sKT}")
    a(f"s_xor_b32 s{sT}, s{sG}, 1")
    a(f"s_mul_i32 s{sT}, s{sT}, {K1_KTW}")
    a(f"s_add_u32 s{sT}, s{sT}, {K1_KT}")
    a(f"v_lshl_add_u32 v{vKP}, v{vL}, 4, s{sT}")
    a(f"v_lshrrev_b32 v{vT0}, 5, v{vL}")
    a(f"v_lshl_add_u32 v62, v{vT0}, 4, s{sKT}")
    a(f"v_and_b32 v{vT0}, 31, v{vL}")
    a(f"v_mul_u32_u24 v{vT1}, 272, v{vT0}")
    a(f"v_add_u32 v{vKB}, v{vT1}, v62")
    def hrow(tile, m):
        c = swap23(m); al = c >> 3; i = c & 7; aa = 4 * tile + al
        if aa == 0: return i
        if aa == 1: return 8 + [0, 0, 1, 2, 2, 2, 3, 4][i]
        if aa in (2, 3): return 13 + 3 * (aa - 2) + [0, 0, 0, 1, 1, 1, 2, 2][i]
        return 19 + 2 * (aa - 4) + (1 if i >= 5 else 0)
    bases = {(0, 0): 0, (0, 1): 13, (1, 0): 19, (1, 1): 19}
    k = 0
    for tile in range(2):
        for hi in range(2):
            val = 0
            for m in range(16):
                n = hrow(tile, 16 * hi + m) - bases[(tile, hi)]
                assert 0 <= n < 16
                val |= n << (4 * m)
            a(f"s_mov_b32 s{sTAB+k}, {hx(val)}")
            a(f"s_mov_b32 s{sTAB+k+1}, {hx(val >> 32)}")
            k += 2
    a(f"v_and_b32 v{vT1}, 15, v{vL}")
    a(f"v_lshlrev_b32 v{vT1}, 2, v{vT1}")
    a(f"v_cmp_lt_u32 vcc, 15, v{vT0}")
    for tile in range(2):
        a(f"v_lshrrev_b64 v[64:65], v{vT1}, s[{sTAB+4*tile}:{sTAB+4*tile+1}]")
        a(f"v_lshrrev_b64 v[66:67], v{vT1}, s[{sTAB+4*tile+2}:{sTAB+4*tile+3}]")
        a(f"v_and_b32 v64, 15, v64")
        a(f"v_and_b32 v66, 15, v66")
        a(f"v_add_u32 v64, {32+bases[(tile,0)]}, v64")
        a(f"v_add_u32 v66, {32+bases[(tile,1)]}, v66")
        a(f"v_cndmask_b32 v64, v64, v66, vcc")
        a(f"v_mul_u32_u24 v64, 272, v64")
        a(f"v_add_u32 v{68+tile}, v64, v62")
    a(f"s_cmp_eq_u32 s{sMH}, 1")
    a(f"s_cselect_b64 vcc, -1, 0")
    a(f"s_cselect_b32 s{sMASK}, 0xaaaaaaaa, 0")
    a(f"s_cselect_b32 s{sMASK+1}, 0xaaaaaaaa, 0")
    a(f"v_cndmask_b32 v{vKA0}, v68, v69, vcc")
    a(f"v_cndmask_b32 v{vKA1}, v69, v68, vcc")
    a(f"s_lshl_b32 s{sT}, s{sD}, 12")
    a(f"s_lshl_b32 s{sT2}, s{sMH}, 11")
    a(f"s_add_u32 s{sT2}, s{sT2}, s{sT}")
    a(f"s_add_u32 s{sT2}, s{sT2}, {KC}")
    a(f"v_lshlrev_b32 v{vT0}, 4, v{vL}")
    DT, Z, W_, E1, E8, E128, G1 = 79, 80, 82, 84, 86, 88, 90
    E = {1: E1, 8: E8}
    for i in range(2, 8): E[i] = 92 + 2 * (i - 2)
    G = {1: G1}
    for i in range(2, 8): G[i] = 104 + 2 * (i - 2)
    CA, CB = 116, 118
    TA, TB_, TH = 120, 122, 124
    CV = [128, 129, 130, 131, 132, 133]
    l2e_hi = struct.unpack("<f", struct.pack("<f", LOG2E))[0]
    a(f"s_mov_b32 s{sC0}, {hx(f32(LOG2E))}")
    a(f"s_mov_b32 s{sC0+1}, {hx(f32(LOG2E - l2e_hi))}")
    stamp(a, 1)
    a("s_waitcnt vmcnt(1)")
    stamp(a, 2)
    m = []
    m.append(f"v_mul_f32 v120, s{sC0}, v{PLD}")
    m.append(f"v_fma_f32 v121, v{PLD}, s{sC0}, -v120")
    m.append(f"v_exp_f32 v122, v120")
    m.append(f"v_fma_f32 v121, v{PLD}, s{sC0+1}, v121")
    m.append(f"v_mul_f32 v121, {hx(f32(math.log(2.0)))}, v121")
    m.append(f"v_fma_f32 v122, v122, v121, v122")
    m.append(f"v_cvt_pk_bf16_f32 v122, v122, v122")
    m.append(f"v_lshlrev_b32 v{DT}, 16, v122")
    m.append(f"v_mul_f32 v{Z}, v{DT}, v{PA}")
    m.append(f"v_mul_f32 v{Z+1}, v{DT}, v{PA+1}")
    m.append(f"v_mul_f32 v{PB}, v{DT}, v{PB}")
    m.append(f"v_mul_f32 v{PB+1}, v{DT}, v{PB+1}")
    m.append(f"v_mul_f32 v{Z}, s{sC0}, v{Z}")
    m.append(f"v_mul_f32 v{Z+1}, {hx(f32(1.0/(2*math.pi)))}, v{Z+1}")
    m += cmul(W_, PC, PB, TA)
    def direct(dst, v, t):
        o = []
        if v == 1:
            o.append(f"v_exp_f32 v{t}, v{Z}")
            o.append(f"v_fract_f32 v{t+1}, v{Z+1}")
        else:
            o.append(f"v_mul_f32 v{t}, {hx(f32(float(v)))}, v{Z}")
            o.append(f"v_mul_f32 v{t+1}, {hx(f32(float(v)))}, v{Z+1}")
            o.append(f"v_exp_f32 v{t}, v{t}")
            o.append(f"v_fract_f32 v{t+1}, v{t+1}")
        o.append(f"v_cos_f32 v{dst}, v{t+1}")
        o.append(f"v_sin_f32 v{dst+1}, v{t+1}")
        o.append(f"v_pk_mul_f32 {vr(dst,2)}, {vr(dst,2)}, {vr(t,2)} op_sel:[0,0] op_sel_hi:[1,0]")
        return o
    m += merge(direct(E8, 8, 120), direct(E128, 128, 122), direct(E1, 1, 124), direct(G1, 256, 126))
    def putr(row, src, negim, regs, cnt):
        r = regs[cnt[0] % len(regs)]; cnt[0] += 1
        return [f"v_cvt_pk_bf16_f32 v{r}, v{src}, {'-' if negim else ''}v{src+1}",
                f"ds_write_b32 v{vKW}, v{r} offset:{row*272}"]
    ca = [0]; cb = [0]; ch = [0]
    sA = putr(0, W_, False, CV[0:2], ca) + cmul(CA, W_, E8, TA)
    for j in range(1, 16):
        sA += putr(j, CA, False, CV[0:2], ca)
        if j < 15: sA += cmul(CA, CA, E8, TA)
    sB = cmul(CB, W_, E128, TB_)
    for j in range(16, 32):
        sB += putr(j, CB, False, CV[2:4], cb)
        if j < 31: sB += cmul(CB, CB, E8, TB_)
    H0 = 32
    sH = [f"v_mov_b32 v{CV[4]}, 0x3f80", f"ds_write_b32 v{vKW}, v{CV[4]} offset:{H0*272}"]
    ch[0] = 1
    P = lambda row, src: putr(H0 + row, src, True, CV[4:6], ch)
    sH += cmul(E[2], E1, E1, TH) + P(1, E1) + cmul(G[2], G1, G1, TH) + P(8, G1)
    sH += cmul(E[3], E[2], E1, TH) + P(2, E[2]) + cmul(E[4], E[2], E[2], TH) + P(13, G[2])
    sH += cmul(G[3], G[2], G1, TH) + P(3, E[3]) + cmul(G[4], G[2], G[2], TH) + P(4, E[4])
    sH += cmul(E[5], E[4], E1, TH) + P(16, G[3]) + cmul(E[6], E[4], E[2], TH) + P(19, G[4])
    sH += cmul(E[7], E[4], E[3], TH) + P(5, E[5]) + cmul(G[5], G[4], G1, TH) + P(6, E[6])
    sH += cmul(G[6], G[4], G[2], TH) + P(7, E[7]) + cmul(G[7], G[4], G[3], TH) + P(21, G[5])
    sH += P(23, G[6]) + P(25, G[7])
    prods = [(9, 1, 2), (10, 1, 4), (11, 1, 6), (12, 1, 8), (14, 2, 4), (15, 2, 8), (17, 3, 4), (18, 3, 8),
             (20, 4, 8), (22, 5, 8), (24, 6, 8), (26, 7, 8)]
    HXs = [126, 134]
    for n, (row, g, e) in enumerate(prods):
        sH += cmul(HXs[n & 1], G[g], E[e], TH)
        if n > 0: sH += P(prods[n-1][0], HXs[(n-1) & 1])
    sH += P(prods[-1][0], HXs[(len(prods)-1) & 1])
    m += merge(sA, sB, sH)
    cuts = [int(len(m) * f) for f in OPT.get("k1cut", K1_CUT)]
    nb = 0
    for i, x in enumerate(m):
        while nb < len(cuts) and i == cuts[nb]:
            stamp(a, 3 + nb)
            a("s_barrier"); nb += 1
        a(x)
    while nb < len(cuts):
        a("s_barrier"); nb += 1
    stamp(a, 6)
    D0, D1 = 24, 40
    FR = 72 + 64
    for ks in range(8):
        a(f"ds_read_b128 {vr(FR+12*ks,4)}, v{vKB} offset:{32*ks}")
        a(f"ds_read_b128 {vr(FR+12*ks+4,4)}, v{vKA1} offset:{32*ks}")
        a(f"ds_read_b128 {vr(FR+12*ks+8,4)}, v{vKA0} offset:{32*ks}")
    a("s_barrier"); nb += 1
    stamp(a, 7)
    for ks in range(8):
        a(f"s_waitcnt lgkmcnt({min(15, 21-3*ks)})")
        c1 = "0" if ks == 0 else vr(D1, 16)
        a(f"{MF} {vr(D1,16)}, {vr(FR+12*ks+4,4)}, {vr(FR+12*ks,4)}, {c1}")
    for ks in range(8):
        c0 = "0" if ks == 0 else vr(D0, 16)
        a(f"{MF} {vr(D0,16)}, {vr(FR+12*ks+8,4)}, {vr(FR+12*ks,4)}, {c0}")
        if ks == 2:
            for k in range(4):
                a(f"ds_write_b128 v{vKX}, {vr(D1+4*k,4)} offset:{1024*k}")
            a("s_waitcnt lgkmcnt(0)")
            a("s_barrier"); nb += 1
            stamp(a, 8)
            for k in range(4):
                a(f"ds_read_b128 {vr(D1+4*k,4)}, v{vKP} offset:{1024*k}")
    assert nb <= 8
    a("s_waitcnt lgkmcnt(0) vmcnt(0)")
    a(f"v_add_f32 v{D1}, v{D1}, v{PDS}")
    for k in range(8):
        a(f"v_pk_add_f32 {vr(D0+2*k,2)}, {vr(D0+2*k,2)}, {vr(D1+2*k,2)}")
    a(f"v_cndmask_b32 v{D0+4}, v{D0+4}, v{D0+5}, s[{sMASK}:{sMASK+1}]")
    a(f"v_cndmask_b32 v{D0+12}, v{D0+12}, v{D0+13}, s[{sMASK}:{sMASK+1}]")
    KO = 72
    for k in range(8):
        a(f"v_cvt_pk_bf16_f32 v{KO+k}, v{D0+2*k}, v{D0+2*k+1}")
    a(f"buffer_store_dwordx4 {vr(KO,4)}, v{vT0}, s[{SWS}:{SWS+3}], s{sT2} offen {OPT.get('st_kc','sc1')}")
    a(f"buffer_store_dwordx4 {vr(KO+4,4)}, v{vT0}, s[{SWS}:{SWS+3}], s{sT2} offen offset:1024 {OPT.get('st_kc','sc1')}")
    stamp(a, 9)
    stamp_out(a, 0, SWS, sWV, wait=False)
    a.label("L_k1_end")
    a("s_endpgm")
    return a.l, 232

K2_LDS = 163840
CA0 = 131072; CH = 13600
EOFF = 64; OOFF = 64 + 4096 + 64; UOFF = OOFF + 4096
FLG = 163840 - 64
BAR_ITERS = dict()

def gen_k2():
    a = Asm()
    SWS, SU, SO, SWO = 4, 8, 12, 40
    sWV, sH, sQB, sT, sT2, sIT, sOFF, sPASS, sD0 = 16, 17, 18, 19, 20, 21, 22, 23, 24
    sVM = 26
    sA, sB, sC, sE = 32, 33, 34, 35
    a("s_cmp_ge_u32 s2, 256")
    a("s_cbranch_scc1 L_k2_end")
    srd(a, SWS, 112, 0); srd(a, SU, 0, 0); srd(a, SO, 96, 0); srd(a, SWO, 88, 0)
    stamp_init(a)
    vL = 1; vL16 = 2
    a(f"v_lshrrev_b32 v3, 6, v0")
    a(f"v_and_b32 v{vL}, 63, v0")
    a(f"v_readfirstlane_b32 s{sWV}, v3")
    a(f"v_lshlrev_b32 v{vL16}, 4, v{vL}")
    srd_fin(a, SWS, wsz())
    a(f"s_and_b32 s{sT}, s2, 7")
    a(f"s_lshr_b32 s{sT2}, s2, 3")
    a(f"s_lshl_b32 s{sH}, s{sT}, 2")
    a(f"s_and_b32 s{sQB}, s{sT2}, 3")
    a(f"s_add_u32 s{sH}, s{sH}, s{sQB}")
    a(f"s_lshr_b32 s{sQB}, s{sT2}, 2")
    a(f"s_lshl_b32 s{sA}, s{sH}, 17")
    a(f"s_add_u32 s{sA}, s{sA}, {KV}")
    a(f"s_cmp_ge_u32 s{sWV}, 8")
    a("s_cbranch_scc1 L_k2_conv")
    Q = 4; NM = 8; S = [24, 40]; P = 56; O = 64; KF = [80, 84]; VF = [88, 96]; vA = 104; vN = 105; vT = 106
    a(f"s_lshl_b32 s{sQB}, s{sQB}, 3")
    a(f"s_add_u32 s{sQB}, s{sQB}, s{sWV}")
    a(f"s_lshl_b32 s{sT}, s{sH}, 16")
    a(f"s_lshl_b32 s{sT2}, s{sQB}, 10")
    a(f"s_add_u32 s{sT}, s{sT}, s{sT2}")
    a(f"s_lshl_b32 s{sB}, s{sWV}, 13")
    a(f"s_add_u32 s{sC}, s{sA}, s{sB}")
    a(f"s_add_u32 s{sE}, s{sC}, 4096")
    a(f"s_mov_b32 m0, s{sB}")
    a("s_waitcnt lgkmcnt(0)")
    a(f"buffer_load_dwordx4 {vr(Q,4)}, v{vL16}, s[{SWS}:{SWS+3}], s{sT} offen")
    for k in range(4):
        a(f"buffer_load_dwordx4 v{vL16}, s[{SWS}:{SWS+3}], s{sC} offen offset:{1024*k} lds")
    a(f"s_add_u32 m0, s{sB}, 4096")
    for k in range(4):
        a(f"buffer_load_dwordx4 v{vL16}, s[{SWS}:{SWS+3}], s{sE} offen offset:{1024*k} lds")
    a(f"s_mov_b32 s{sVM}, 0x0000ffff")
    a(f"s_mov_b32 s{sVM+1}, 0x0000ffff")
    a(f"v_and_b32 v{vT}, 27, v{vL}")
    a(f"v_cmp_eq_u32 vcc, 16, v{vT}")
    a(f"v_mov_b32 v{vT}, 0x3f803f80")
    a(f"v_cndmask_b32 v{vT}, 0, v{vT}, vcc")
    for r in range(16): a(f"v_mov_b32 v{VF[0]+r}, v{vT}")
    def rdK(buf, t): return [f"ds_read_b128 {vr(KF[buf],4)}, v{vA if t < 4 else vN} offset:{2048*(t&3)}"]
    def rdV(buf, t):
        r = vA if t < 4 else vN
        return [f"ds_read_b128 {vr(VF[buf],4)}, v{r} offset:{2048*(t&3)+1024}",
                f"ds_read_b128 {vr(VF[buf]+4,4)}, v{r} offset:{2048*(t&3)+1280}"]
    X1 = f"s_mov_b64 exec, s[{sVM}:{sVM+1}]"; X2 = "s_mov_b64 exec, -1"
    def body(first):
        tag = "a" if first else "b"
        cc = "0" if first else vr(NM, 16)
        for r in range(16): a(f"v_mov_b32 v{O+r}, 0")
        for r in range(4, 8): a(f"v_mov_b32 v{P+r}, 0")
        a(f"v_add_u32 v{vA}, s{sB}, v{vL16}")
        a(f"s_mov_b32 s{sOFF}, s{sB}")
        a(f"s_mov_b32 s{sIT}, 0")
        if first:
            stamp(a, 1)
            a("s_waitcnt vmcnt(4)")
            stamp(a, 3)
            stampc(a, 12)
        for x in rdK(0, 0) + rdK(1, 1) + [X1] + rdV(0, 0) + [X2]: a(x)
        a("s_waitcnt lgkmcnt(3)")
        a(f"{MF} {vr(S[0],16)}, {vr(KF[0],4)}, {vr(Q,4)}, {cc}")
        if first: a("s_waitcnt vmcnt(0)")
        a("s_nop 7")
        a("s_nop 3")
        a(".p2align 6")
        a.label(f"L_k2_loop{tag}")
        for t in range(4):
            b = t & 1; nb = b ^ 1
            s = S[b]
            e = lambda r, w="": a(f"v_exp_f32{w} v{s+r}, v{s+r}")
            c = lambda r: a(f"v_cvt_pk_bf16_f32 v{P+r}, v{s+2*r}, v{s+2*r+1}")
            e(0); e(1)
            a(f"{MF} {vr(O,16)}, {vr(VF[nb]+4,4)}, {vr(P+4,4)}, {vr(O,16)}")
            if t == 0:
                a(f"s_add_u32 s{sOFF}, s{sOFF}, 8192")
                a(f"s_and_b32 s{sOFF}, s{sOFF}, 0x1ffff")
            if t == 1:
                a(f"v_add_u32 v{vN}, s{sOFF}, v{vL16}")
                a(f"s_add_u32 s{sIT}, s{sIT}, 1")
            if t == 2 and first:
                a(f"s_cmp_lg_u32 s{sIT}, 1")
                a(f"s_cbranch_scc1 L_k2_nobar")
                a("s_barrier")
                a("s_nop 0")
                a.label("L_k2_nobar")
            for r in range(2, 8): e(r)
            a("s_waitcnt lgkmcnt(0)")
            a(X1)
            for x in rdV(nb, t + 1): a(x)
            a(X2)
            e(8)
            a(f"{MF} {vr(S[nb],16)}, {vr(KF[nb],4)}, {vr(Q,4)}, {cc}")
            for x in rdK(b, t + 2): a(x)
            for r in range(4): c(r)
            for r in range(9, 13): e(r)
            a(f"{MF} {vr(O,16)}, {vr(VF[b],4)}, {vr(P,4)}, {vr(O,16)}")
            e(13); e(14)
            if t == 3:
                e(15)
                a(f"v_mov_b32 v{vA}, v{vN}")
            else:
                e(15, "_e64")
            for r in range(4, 8): c(r)
        a(f"s_cmp_lt_u32 s{sIT}, 16")
        a(f"s_cbranch_scc1 L_k2_loop{tag}")
        a(f"{MF} {vr(O,16)}, {vr(VF[1]+4,4)}, {vr(P+4,4)}, {vr(O,16)}")
        a("s_waitcnt lgkmcnt(0)")
    body(True)
    stamp(a, 4)
    stampc(a, 13)
    a(f"s_mov_b32 s{sT}, {hx(f32(2.0**-40))}")
    a(f"s_mov_b32 s{sT2}, {hx(f32(2.0**40))}")
    a(f"v_mov_b32 v{vT}, v{O+8}")
    for r in range(8): a(f"v_fma_f32 v{vT}, v{O+r}, 0, v{vT}")
    a(f"v_cmp_nle_f32 vcc, s{sT}, v{vT}")
    a(f"v_cmp_nge_f32 s[28:29], s{sT2}, v{vT}")
    a("s_nop 3")
    a(f"s_or_b64 vcc, vcc, s[28:29]")
    a("s_cbranch_scc1 L_k2_slow")
    a.label("L_k2_fin")
    a(f"v_rcp_f32 v{vT}, v{O+8}")
    a(f"s_lshl_b32 s{sT}, s{sQB}, 5")
    a(f"s_add_u32 s{sT}, s{sT}, s{sH}")
    a(f"s_lshl_b32 s{sT}, s{sT}, 10")
    a(f"s_add_u32 s{sT}, s{sT}, {OF}")
    for r in range(8): a(f"v_mul_f32 v{O+r}, v{O+r}, v{vT}")
    for r in range(4): a(f"v_cvt_pk_bf16_f32 v{P+r}, v{O+2*r}, v{O+2*r+1}")
    a(f"buffer_store_dwordx4 {vr(P,4)}, v{vL16}, s[{SWS}:{SWS+3}], s{sT} offen {OPT['st_k2']}")
    stamp_out(a, 1, SWS, sWV)
    a("s_endpgm")
    a.label("L_k2_slow")
    a(f"v_mov_b32 v{vA}, v{vL16}")
    a(f"v_mov_b32 v{vT}, 0xff800000")
    a(f"s_mov_b32 s{sIT}, 0")
    a.label("L_k2_max")
    a(f"ds_read_b128 {vr(KF[0],4)}, v{vA}")
    a(f"v_add_u32 v{vA}, 2048, v{vA}")
    a("s_waitcnt lgkmcnt(0)")
    a(f"{MF} {vr(S[0],16)}, {vr(KF[0],4)}, {vr(Q,4)}, 0")
    a(f"s_add_u32 s{sIT}, s{sIT}, 1")
    for r in range(8): a(f"v_max3_f32 v{vT}, v{S[0]+2*r}, v{S[0]+2*r+1}, v{vT}")
    a(f"s_cmp_lt_u32 s{sIT}, 64")
    a("s_cbranch_scc1 L_k2_max")
    a(f"v_xor_b32 v{vA}, 32, v{vL}")
    a(f"v_lshlrev_b32 v{vA}, 2, v{vA}")
    a(f"ds_bpermute_b32 v{vN}, v{vA}, v{vT}")
    a("s_waitcnt lgkmcnt(0)")
    a(f"v_max_f32 v{vT}, v{vT}, v{vN}")
    for r in range(16): a(f"v_sub_f32 v{NM+r}, 0, v{vT}")
    a(X1)
    for r in range(4, 8): a(f"v_mov_b32 v{VF[1]+r}, 0")
    a(X2)
    body(False)
    a("s_nop 7")
    a("s_nop 3")
    a("s_branch L_k2_fin")
    a.label("L_k2_conv")
    sQ, sCC, sHW, sCB = 36, 37, 38, 39
    U = 4; Y0 = 12; Y1 = 28; FR = 44; vG = 76; vUW = 77; vZ = 78; vZA = 79; vFX = 80
    vAL, vAH, vB0, vB1, vJ, vHF, vT, vT2, vXW, vFL, vONE = 81, 82, 83, 84, 85, 86, 87, 88, 89, 90, 91
    a(f"s_sub_u32 s{sQ}, s{sWV}, 8")
    a(f"s_lshl_b32 s{sB}, s{sQ}, 12")
    a(f"s_add_u32 s{sB}, s{sB}, 65536")
    a("s_waitcnt lgkmcnt(0)")
    for rnd in range(4):
        a(f"s_add_u32 m0, s{sB}, {rnd*16384}")
        a(f"s_add_u32 s{sC}, s{sA}, m0")
        for k in range(4):
            a(f"buffer_load_dwordx4 v{vL16}, s[{SWS}:{SWS+3}], s{sC} offen offset:{1024*k} lds")
    if OPT.get("noconv"):
        a("s_waitcnt vmcnt(0)")
        a("s_barrier")
        a("s_endpgm")
    srd_fin(a, SU, 2048 * 512 * 2); srd_fin(a, SO, 2048 * 1024 * 2); srd_fin(a, SWO, 512 * 512 * 2)
    a(f"s_lshl_b32 s{sD0}, s{sT}, 5")
    a(f"s_add_u32 s{sD0}, s{sD0}, s{sT2}")
    a(f"s_lshl_b32 s{sPASS}, s{sT2}, 14")
    a(f"s_lshr_b32 s{sCC}, s{sQ}, 1")
    a(f"s_and_b32 s{sHW}, s{sQ}, 1")
    a(f"s_mul_i32 s{sCB}, s{sCC}, {CH}")
    a(f"s_add_u32 s{sCB}, s{sCB}, {CA0}")
    a(f"s_mul_i32 s{sE}, s{sHW}, {OOFF-EOFF}")
    a(f"s_add_u32 s{sE}, s{sE}, s{sCB}")
    a(f"s_add_u32 s{sE}, s{sE}, {EOFF}")
    a(f"s_lshl_b32 s{sT2}, s{sD0}, 1")
    a(f"s_add_u32 s{sT2}, s{sT2}, s{sCC}")
    a(f"s_lshl_b32 s{sT2}, s{sT2}, 12")
    a(f"s_add_u32 s{sT2}, s{sT2}, {KC}")
    a(f"s_lshl_b32 s{sIT}, s{sHW}, 1")
    a(f"s_sub_u32 s{sT2}, s{sT2}, s{sIT}")
    a(f"s_mov_b32 m0, s{sE}")
    for k in range(4):
        a(f"buffer_load_dwordx4 v{vL16}, s[{SWS}:{SWS+3}], s{sT2} offen offset:{1024*k} lds")
    a(f"v_and_b32 v{vJ}, 31, v{vL}")
    a(f"v_lshrrev_b32 v{vHF}, 5, v{vL}")
    a(f"s_lshl_b32 s{sT}, s{sD0}, 2")
    a(f"v_lshlrev_b32 v{vT}, 12, v{vHF}")
    a(f"v_lshl_add_u32 v{vG}, v{vJ}, 15, v{vT}")
    a(f"s_lshl_b32 s{sA}, s{sCC}, 20")
    a(f"s_lshl_b32 s{sB}, s{sHW}, 14")
    a(f"s_add_u32 s{sA}, s{sA}, s{sB}")
    a(f"s_add_u32 s{sB}, s{sA}, s{sT}")
    a(f"s_add_u32 s{sC}, s{sB}, 8192")
    a(f"s_mul_i32 s{sT2}, s{sHW}, 80")
    a(f"s_add_u32 s{sT2}, s{sT2}, s{sCB}")
    a(f"s_add_u32 s{sT2}, s{sT2}, {UOFF+64*80-64}")
    a(f"v_min_u32 v{vT}, 35, v{vL}")
    a(f"v_lshl_add_u32 v{vZA}, v{vT}, 2, s{sT2}")
    a(f"s_sub_u32 s{sT2}, s{sE}, 64")
    a(f"v_lshl_add_u32 v{vT2}, v{vL}, 2, s{sT2}")
    a(f"v_cmp_gt_u32 vcc, 16, v{vL}")
    a(f"v_mov_b32 v{vZ}, 0")
    a(f"v_mov_b32 v{vFL}, {FLG}")
    a(f"v_cndmask_b32 v{vZA}, v{vZA}, v{vT2}, vcc")
    a(f"ds_write_b32 v{vZA}, v{vZ}")
    a(f"ds_write_b32 v{vFL}, v{vZ}")
    a(f"s_lshl_b32 s{sT2}, s{sHW}, 1")
    a(f"s_add_u32 s{sT2}, s{sT2}, s{sE}")
    a(f"s_sub_u32 s{sT2}, s{sT2}, 2")
    a(f"v_mov_b32 v{vFX}, s{sT2}")
    a(f"v_mul_u32_u24 v{vT}, 80, v{vJ}")
    a(f"v_lshl_add_u32 v{vT}, v{vHF}, 3, v{vT}")
    a(f"s_mul_i32 s{sE}, s{sCC}, {80*32}")
    a(f"s_lshl_b32 s{sT2}, s{sHW}, 5")
    a(f"s_add_u32 s{sE}, s{sE}, s{sT2}")
    a(f"s_sub_u32 s{sE}, {CA0+UOFF+80*63+62-22}, s{sE}")
    a(f"v_sub_u32 v{vUW}, s{sE}, v{vT}")
    stamp(a, 1)
    a("s_waitcnt vmcnt(4) lgkmcnt(0)")
    stamp(a, 2)
    a("s_barrier")
    stamp(a, 3)
    for rr in range(8):
        a(f"buffer_load_dword v{U+rr}, v{vG}, s[{SU}:{SU+3}], s{sB if rr < 4 else sC} offen offset:{1024*(rr&3)}")
    a(f"v_and_b32 v{vT}, 1, v{vJ}")
    a(f"v_and_b32 v{vT2}, 30, v{vJ}")
    a(f"v_lshlrev_b32 v{vT2}, 1, v{vT2}")
    a(f"v_lshl_add_u32 v{vT2}, v{vHF}, 4, v{vT2}")
    a(f"v_mul_u32_u24 v{vT}, {OOFF-EOFF}, v{vT}")
    a(f"v_sub_u32 v{vT2}, v{vT2}, v{vT}")
    a(f"s_lshl_b32 s{sT2}, s{sHW}, 10")
    a(f"s_add_u32 s{sT2}, s{sT2}, s{sCB}")
    a(f"s_add_u32 s{sT2}, s{sT2}, {OOFF-60}")
    a(f"v_add_u32 v{vAL}, s{sT2}, v{vT2}")
    a(f"v_add_u32 v{vAH}, 2048, v{vAL}")
    a(f"v_mul_u32_u24 v{vT}, 80, v{vJ}")
    a(f"v_lshlrev_b32 v{vT2}, 4, v{vHF}")
    a(f"v_sub_u32 v{vT}, v{vT2}, v{vT}")
    a(f"s_mul_i32 s{sT2}, s{sHW}, {16*80}")
    a(f"s_add_u32 s{sT2}, s{sT2}, s{sCB}")
    a(f"s_add_u32 s{sT2}, s{sT2}, {UOFF+80*31}")
    a(f"v_add_u32 v{vB1}, s{sT2}, v{vT}")
    a(f"s_add_u32 s{sE}, s{sCB}, {UOFF+64*80}")
    a(f"v_add_u32 v{vB0}, {32*80}, v{vB1}")
    a(f"v_min_u32 v{vB0}, s{sE}, v{vB0}")
    a(f"v_add_u32 v{vXW}, {CA0}, v{vL16}")
    a(f"v_mov_b32 v{vONE}, 1")
    for r in range(32): a(f"v_mov_b32 v{Y0+r}, 0")
    stamp(a, 4)
    a("s_waitcnt vmcnt(8)")
    a(f"ds_write_b16 v{vFX}, v{vZ}")
    for rr in range(8):
        a(f"s_waitcnt vmcnt({7-rr})")
        off = 2 * (11 - ((rr & 3) + 8 * (rr >> 2)))
        a(f"ds_write_b16 v{vUW}, v{U+rr} offset:{off}")
        a(f"ds_write_b16_d16_hi v{vUW}, v{U+rr} offset:{off+CH}")
    a(f"s_lshl_b32 s{sT2}, s{sQ}, 12")
    a(f"s_add_u32 s{sT2}, s{sT2}, s{sPASS}")
    if not OPT.get("nopf"):
        for k in range(4):
            a(f"buffer_load_dwordx4 {vr(96+4*k,4)}, v{vL16}, s[{SWO}:{SWO+3}], s{sT2} offen offset:{1024*k}")
    nsync = [0]
    def sync(n):
        nsync[0] += 1
        a("s_waitcnt lgkmcnt(0)")
        a("s_mov_b64 exec, 1")
        a(f"ds_add_u32 v{vFL}, v{vONE}")
        a.label(f"L_k2_spin{nsync[0]}")
        a(f"ds_read_b32 v{vT}, v{vFL}")
        a("s_waitcnt lgkmcnt(0)")
        a(f"v_readfirstlane_b32 s{sT2}, v{vT}")
        a(f"s_cmp_lt_u32 s{sT2}, {4*n}")
        a(f"s_cbranch_scc1 L_k2_spin{nsync[0]}")
        a("s_mov_b64 exec, -1")
    stamp(a, 5)
    sync(1)
    stamp(a, 6)
    a(f"s_mov_b32 s{sIT}, 0")
    a.label("L_k2_cloop")
    for st in range(4):
        f = FR + 16 * (st & 1)
        bo = (st >> 1) * 80 + (st & 1) * 32
        a(f"ds_read2_b32 {vr(f,2)}, v{vAL} offset0:{8*st} offset1:{8*st+1}")
        a(f"ds_read2_b32 {vr(f+2,2)}, v{vAL} offset0:{8*st+2} offset1:{8*st+3}")
        a(f"ds_read_b128 {vr(f+12,4)}, v{vB1} offset:{bo}")
        a("s_waitcnt lgkmcnt(0)")
        a(f"{MF} {vr(Y1,16)}, {vr(f,4)}, {vr(f+12,4)}, {vr(Y1,16)}")
        a(f"ds_read_b128 {vr(f+8,4)}, v{vB0} offset:{bo}")
        a("s_waitcnt lgkmcnt(0)")
        a(f"{MF} {vr(Y0,16)}, {vr(f,4)}, {vr(f+8,4)}, {vr(Y0,16)}")
        a(f"ds_read2_b32 {vr(f+4,2)}, v{vAH} offset0:{8*st} offset1:{8*st+1}")
        a(f"ds_read2_b32 {vr(f+6,2)}, v{vAH} offset0:{8*st+2} offset1:{8*st+3}")
        if st == 3:
            a(f"v_add_u32 v{vAL}, 128, v{vAL}")
            a(f"v_add_u32 v{vAH}, 128, v{vAH}")
            a(f"v_add_u32 v{vB1}, 160, v{vB1}")
            a(f"v_add_u32 v{vB0}, 160, v{vB0}")
            a(f"v_min_u32 v{vB0}, s{sE}, v{vB0}")
            a(f"s_add_u32 s{sIT}, s{sIT}, 1")
            a(f"s_cmp_lt_u32 s{sIT}, 8")
        a("s_waitcnt lgkmcnt(0)")
        a(f"{MF} {vr(Y1,16)}, {vr(f+4,4)}, {vr(f+8,4)}, {vr(Y1,16)}")
    a("s_cbranch_scc1 L_k2_cloop")
    stamp(a, 7)
    sync(2)
    stamp(a, 8)
    a(f"v_lshlrev_b32 v{vG}, 1, v{vG}")
    a(f"s_lshl_b32 s{sA}, s{sA}, 1")
    a(f"s_add_u32 s{sA}, s{sA}, s{sT}")
    a(f"s_add_u32 s{sB}, s{sA}, 4096")
    a(f"s_add_u32 s{sC}, s{sA}, 16384")
    a(f"s_add_u32 s{sE}, s{sA}, {16384+4096}")
    for q in range(1, 4):
        a(f"s_cmp_eq_u32 s{sQ}, {q}")
        a(f"s_cbranch_scc1 L_k2_x{q}")
    def slot(dst, src): return (3 * dst + (src if src < dst else src - 1)) * 2048
    X = 44
    for q in range(4):
        if q: a.label(f"L_k2_x{q}")
        for qq in range(4):
            if qq == q: continue
            for hh in range(2):
                a(f"ds_write_b128 v{vXW}, {vr(Y0+8*qq+4*hh,4)} offset:{slot(qq,q)+1024*hh}")
        stamp(a, 9)
        sync(3)
        stamp(a, 10)
        R = {}
        for src in range(4):
            if src == q: R[src] = Y0 + 8 * q; continue
            R[src] = X + 8 * src
            for hh in range(2):
                a(f"ds_read_b128 {vr(X+8*src+4*hh,4)}, v{vXW} offset:{slot(q,src)+1024*hh}")
        a("s_waitcnt lgkmcnt(0)")
        so = [sA, sA, sB, sB, sC, sC, sE, sE]
        for rr in range(8):
            a(f"v_add_f32 v{R[0]+rr}, v{R[0]+rr}, v{R[1]+rr}")
            a(f"v_add_f32 v{R[2]+rr}, v{R[2]+rr}, v{R[3]+rr}")
            a(f"v_cvt_pk_bf16_f32 v{U+rr}, v{R[0]+rr}, v{R[2]+rr}")
            a(f"buffer_store_dword v{U+rr}, v{vG}, s[{SO}:{SO+3}], s{so[rr]} offen offset:{2048*(rr&1)}")
        if q < 3: a("s_branch L_k2_cend")
    a.label("L_k2_cend")
    stamp(a, 11)
    stamp_out(a, 1, SWS, sWV)
    a.label("L_k2_end")
    a("s_endpgm")
    return a.l, 112

K3_LDS = 65536 + 16384
def gen_k3():
    a = Asm()
    SWS, SW, SO = 4, 8, 12
    sWV, sTT, sCB, sT, sT2, sTS, sKH, sOO, sWO, sM0 = 16, 17, 18, 19, 20, 21, 22, 23, 24, 25
    a("s_cmp_ge_u32 s2, 256")
    a("s_cbranch_scc1 L_k3_end")
    stamp_init(a)
    srd(a, SWS, 112, 0); srd(a, SW, 88, 0); srd(a, SO, 96, 0)
    srd_fin(a, SWS, wsz()); srd_fin(a, SW, 512 * 512 * 2); srd_fin(a, SO, 2048 * 1024 * 2)
    vL, vL16, vW, vT, vT2, vA0, vA1, vXW, vXR, vST = 1, 2, 3, 4, 5, 6, 7, 8, 9, 10
    D = [12, 28]; OFR = 44; WF = 108
    a(f"v_and_b32 v{vL}, 63, v0")
    a(f"v_lshrrev_b32 v{vT}, 6, v0")
    a(f"v_readfirstlane_b32 s{sWV}, v{vT}")
    a(f"v_lshlrev_b32 v{vL16}, 4, v{vL}")
    a(f"s_and_b32 s{sT}, s2, 7")
    a(f"s_lshr_b32 s{sT2}, s2, 3")
    a(f"s_lshl_b32 s{sTT}, s{sT}, 2")
    a(f"s_and_b32 s{sT}, s{sT2}, 3")
    a(f"s_add_u32 s{sTT}, s{sTT}, s{sT}")
    a(f"s_lshr_b32 s{sCB}, s{sT2}, 2")
    a(f"s_and_b32 s{sTS}, s{sWV}, 1")
    a(f"s_lshr_b32 s{sKH}, s{sWV}, 1")
    a(f"s_lshl_b32 s{sTT}, s{sTT}, 1")
    a(f"s_add_u32 s{sTT}, s{sTT}, s{sTS}")
    a(f"s_lshl_b32 s{sOO}, s{sTT}, 15")
    a(f"s_lshl_b32 s{sT}, s{sKH}, 14")
    a(f"s_add_u32 s{sOO}, s{sOO}, s{sT}")
    a(f"s_add_u32 s{sOO}, s{sOO}, {OF}")
    a(f"v_bfe_u32 v{vT}, v{vL}, 4, 1")
    a(f"v_lshlrev_b32 v{vT}, 2, v{vT}")
    a(f"v_and_b32 v{vT2}, 7, v{vL}")
    a(f"v_xor_b32 v{vT}, v{vT}, v{vT2}")
    a(f"v_lshlrev_b32 v{vT}, 4, v{vT}")
    a(f"v_lshrrev_b32 v{vT2}, 3, v{vL}")
    a(f"v_lshl_add_u32 v{vW}, v{vT2}, 10, v{vT}")
    a(f"s_lshl_b32 s{sT}, s{sKH}, 8")
    a(f"s_lshl_b32 s{sT2}, s{sTS}, 5")
    a(f"s_add_u32 s{sT}, s{sT}, s{sT2}")
    a(f"s_lshl_b32 s{sM0}, s{sT}, 7")
    a(f"s_lshl_b32 s{sWO}, s{sT}, 10")
    a(f"s_lshl_b32 s{sT2}, s{sCB}, 7")
    a(f"s_add_u32 s{sWO}, s{sWO}, s{sT2}")
    stamp(a, 8)
    a("s_waitcnt lgkmcnt(0)")
    stamp(a, 9)
    for g in range(4):
        if g: stamp(a, 9 + g)
        a(f"s_add_u32 s26, s{sCB}, {g}")
        a(f"s_and_b32 s26, s26, 3")
        a(f"s_lshl_b32 s27, s26, 12")
        a(f"s_add_u32 s{sT}, s{sOO}, s27")
        for q in range(4):
            a(f"buffer_load_dwordx4 {vr(OFR+16*g+4*q,4)}, v{vL16}, s[{SWS}:{SWS+3}], s{sT} offen offset:{1024*q}")
        a(f"s_add_u32 m0, s{sM0}, {g*8192}")
        a(f"s_lshl_b32 s27, s26, 16")
        a(f"s_add_u32 s27, s27, s{sWO}")
        for q in range(4):
            a(f"s_add_u32 s{sT}, s27, {q*7168}")
            a(f"buffer_load_dwordx4 v{vW}, s[{SW}:{SW+3}], s{sT} offen offset:{1024*q} lds")
        for q in range(0):
            a(f"buffer_load_dwordx4 {vr(OFR+16*g+4*q,4)}, v{vL16}, s[{SWS}:{SWS+3}], s{sT} offen offset:{1024*q}")
    stamp(a, 13)
    a(f"v_lshrrev_b32 v{vT}, 5, v{vL}")
    a(f"v_lshlrev_b32 v{vT}, 10, v{vT}")
    a(f"v_bfe_u32 v{vT2}, v{vL}, 2, 2")
    a(f"v_lshl_add_u32 v{vT}, v{vT2}, 7, v{vT}")
    a(f"v_bfe_u32 v{vT2}, v{vL}, 3, 1")
    a(f"v_lshl_add_u32 v{vT}, v{vT2}, 6, v{vT}")
    a(f"v_bfe_u32 v{vT2}, v{vL}, 4, 1")
    a(f"v_lshl_add_u32 v{vT}, v{vT2}, 5, v{vT}")
    a(f"v_and_b32 v{vT2}, 1, v{vL}")
    a(f"v_lshl_add_u32 v{vT}, v{vT2}, 4, v{vT}")
    a(f"v_bfe_u32 v{vT2}, v{vL}, 1, 1")
    a(f"v_lshl_add_u32 v{vT}, v{vT2}, 3, v{vT}")
    a(f"s_mul_i32 s{sT}, s{sKH}, {32768+64}")
    a(f"v_xor_b32 v{vA0}, s{sT}, v{vT}")
    a(f"v_xor_b32 v{vA1}, 64, v{vA0}")
    a(f"s_lshl_b32 s{sT}, s{sWV}, 12")
    a(f"s_add_u32 s{sT}, s{sT}, 65536")
    a(f"v_add_u32 v{vXW}, s{sT}, v{vL16}")
    a(f"s_xor_b32 s{sT}, s{sT}, 8192")
    a(f"v_add_u32 v{vXR}, s{sT}, v{vL16}")
    a(f"v_and_b32 v{vT}, 31, v{vL}")
    a(f"v_lshlrev_b32 v{vT}, 11, v{vT}")
    a(f"v_lshrrev_b32 v{vT2}, 5, v{vL}")
    a(f"v_lshl_add_u32 v{vST}, v{vT2}, 4, v{vT}")
    a(f"s_lshl_b32 s{sOO}, s{sTT}, 16")
    a(f"s_lshl_b32 s{sT}, s{sCB}, 7")
    a(f"s_add_u32 s{sOO}, s{sOO}, s{sT}")
    a(f"s_lshl_b32 s{sT}, s{sKH}, 6")
    a(f"s_add_u32 s{sOO}, s{sOO}, s{sT}")
    def reads(g):
        o = []; b = WF + 32 * (g & 1)
        for ks in range(4):
            for ct, va in enumerate((vA0, vA1)):
                for h in range(2):
                    o.append(f"ds_read_b64_tr_b16 {vr(b+8*ks+4*ct+2*h,2)}, v{va} offset:{g*8192+ks*2048+h*512}")
        return o
    def mfmas(g):
        o = []; b = WF + 32 * (g & 1)
        for ks in range(4):
            for ct in (1, 0):
                cc = "0" if (g == 0 and ks == 0) else vr(D[ct], 16)
                o.append(f"{MF} {vr(D[ct],16)}, {vr(b+8*ks+4*ct,4)}, {vr(OFR+16*g+4*ks,4)}, {cc}")
        return o
    stamp(a, 1)
    a("s_waitcnt vmcnt(24)")
    a("s_barrier")
    stamp(a, 2)
    for x in reads(0): a(x)
    for g in range(4):
        if g < 3:
            a(f"s_waitcnt lgkmcnt(0) vmcnt({8*(2-g)})")
            a("s_barrier")
            stamp(a, 3 + g)
            for x in merge(mfmas(g), reads(g + 1)): a(x)
        else:
            a("s_waitcnt lgkmcnt(0)")
            for x in mfmas(g): a(x)
    for k in range(4):
        a(f"ds_write_b128 v{vXW}, {vr(D[1]+4*k,4)} offset:{1024*k}")
    a("s_waitcnt lgkmcnt(0)")
    a("s_barrier")
    stamp(a, 6)
    for k in range(4):
        a(f"ds_read_b128 {vr(D[1]+4*k,4)}, v{vXR} offset:{1024*k}")
    a("s_waitcnt lgkmcnt(0)")
    for k in range(8):
        a(f"v_pk_add_f32 {vr(D[0]+2*k,2)}, {vr(D[0]+2*k,2)}, {vr(D[1]+2*k,2)}")
    for k in range(8):
        a(f"v_cvt_pk_bf16_f32 v{OFR+k}, v{D[0]+2*k}, v{D[0]+2*k+1}")
    a(f"buffer_store_dwordx4 {vr(OFR,4)}, v{vST}, s[{SO}:{SO+3}], s{sOO} offen offset:1024 {OPT['st_k3']}")
    a(f"buffer_store_dwordx4 {vr(OFR+4,4)}, v{vST}, s[{SO}:{SO+3}], s{sOO} offen offset:1056 {OPT['st_k3']}")
    stamp(a, 7)
    stamp_out(a, 2, SWS, sWV)
    a.label("L_k3_end")
    a("s_endpgm")
    return a.l, 172

def build(path, extra_empty=0):
    ref = open(f"cdna_kernels/{NAME}.s.ref").read().split("\n")
    head = [l for l in ref if l.startswith(";") and "@launch" not in l]
    ks = [("qkv_kgen_kernel", gen_k1, 512, K1_LDS), ("attn_conv_kernel", gen_k2, 768, K2_LDS), (f"{NAME}_kernel", gen_k3, 256, K3_LDS)]
    out = list(head)
    for n, g, blk, lds in ks:
        out.append(f"; @launch kernel={n} grid=(256,1,1) block=({blk},1,1) lds={lds}")
    for i in range(extra_empty):
        out.append(f"; @launch kernel=empty_kernel grid=(256,1,1) block=(256,1,1) lds=0")
    out += ['.amdgcn_target "amdgcn-amd-amdhsa--gfx950"', ".text"]
    kds = []
    if extra_empty:
        ks = ks + [("empty_kernel", lambda: (["s_endpgm"], 8), 256, 0)]
    for n, g, blk, lds in ks:
        lines, nv = g()
        lines = pad(lines)
        out += [f".globl {n}", ".p2align 8", f".type {n},@function", f"{n}:"]
        out += [l if l.endswith(":") else "    " + l for l in lines]
        nv4 = (nv + 7) // 8 * 8
        kds += [".p2align 6", f".amdhsa_kernel {n}", f"  .amdhsa_next_free_vgpr {nv4}", "  .amdhsa_next_free_sgpr 102",
                f"  .amdhsa_accum_offset {nv4}", "  .amdhsa_group_segment_fixed_size 0", "  .amdhsa_kernarg_size 120",
                "  .amdhsa_user_sgpr_count 2", "  .amdhsa_user_sgpr_kernarg_segment_ptr 1",
                "  .amdhsa_system_sgpr_workgroup_id_x 1", ".end_amdhsa_kernel"]
    out += ['.section .rodata,"a"'] + kds
    open(path, "w").write("\n".join(out) + "\n")

if __name__ == "__main__":
    build(f"cdna_kernels/{NAME}.s")
```

```python
from asmlib import vr
MF = "v_mfma_f32_32x32x16_bf16"
SM = "v_smfmac_f32_32x32x32_bf16"
Q = 4; NM = 8; S = [24, 40]; P = 56; O = 64; KF = [80, 84]; VF = [88, 96]; vA = 104; vN = 105; vT = 106; vMK = 107

def isize(x):
    t = x.split(";")[0].strip()
    if not t or t.endswith(":") or t.startswith("."): return 0
    op = t.split()[0]
    if op.startswith("v_exp_f32") or op.startswith("v_mov_b32") or op.startswith("v_add_u32"):
        return 8 if op.endswith("_e64") else 4
    if op.startswith("v_") or op.startswith("ds_") or op.startswith("buffer_"): return 8
    if op.startswith("s_mem"): return 8
    if op.startswith("s_"):
        import re
        for m in re.findall(r"(?<![\w\[:])(-?(?:0x[0-9a-fA-F]+|\d+))(?![\w\]:(])", t[len(op):]):
            v = int(m, 0)
            if op in ("s_waitcnt", "s_nop", "s_setprio"): continue
            if not (-16 <= v <= 64): return 8
        return 4
    raise ValueError(x)

def align8(lines):
    out = []; off = 0
    for x in lines:
        n = isize(x)
        if n == 8 and off % 8:
            k = len(out) - 1
            while k >= 0 and isize(out[k]) != 8 and not out[k].startswith("v_exp_f32 "): k -= 1
            if k >= 0 and out[k].startswith("v_exp_f32 "):
                out[k] = out[k].replace("v_exp_f32 ", "v_exp_f32_e64 ")
            else:
                out.append("s_nop 0")
            off += 4
        out.append(x); off += n
    return out

def loop_body(seq, cc, sOFF, sSTEP, vL16, X1, X2, hooks={}):
    o = []; a = o.append
    seq = seq.split()
    adr = lambda t: vA if (t & 7) < 4 else vN
    for t in range(8):
        b = t & 1; nb = b ^ 1; s = S[b]
        ne = nc = nv = 0
        for k in seq:
            if k == "e": a(f"v_exp_f32 v{s+ne}, v{s+ne}"); ne += 1
            elif k == "c": a(f"v_cvt_pk_bf16_f32 v{P+nc}, v{s+2*nc}, v{s+2*nc+1}"); nc += 1
            elif k == "M2": a(f"{MF} {vr(O,16)}, {vr(VF[nb]+4,4)}, {vr(P+4,4)}, {vr(O,16)}")
            elif k == "M1": a(f"{MF} {vr(S[nb],16)}, {vr(KF[nb],4)}, {vr(Q,4)}, {cc}")
            elif k == "M3": a(f"{MF} {vr(O,16)}, {vr(VF[b],4)}, {vr(P,4)}, {vr(O,16)}")
            elif k == "S2": a(f"{SM} {vr(O,16)}, {vr(VF[nb]+4,4)}, {vr(S[nb]+8,8)}, v{P}"); nc += 4
            elif k == "S3": a(f"{SM} {vr(O,16)}, {vr(VF[b],4)}, {vr(S[b],8)}, v{P}"); nc += 4; assert ne >= 8
            elif k[0] == "W": a(f"s_waitcnt lgkmcnt({k[1:] or 0})")
            elif k == "X": a(X1)
            elif k == "x": a(X2)
            elif k == "V":
                a(f"ds_read_b128 {vr(VF[nb]+4*nv,4)}, v{adr(t+1)} offset:{2048*((t+1)&3)+1024+256*nv}"); nv += 1
            elif k == "K": a(f"ds_read_b128 {vr(KF[b],4)}, v{adr(t+2)} offset:{2048*((t+2)&3)}")
            elif k == "n": a("s_nop 0")
            elif k == "s":
                if t in (0, 4): a(f"s_add_u32 s{sOFF}, s{sOFF}, s{sSTEP}")
                if t == 1: a(f"v_and_or_b32 v{vN}, s{sOFF}, v{vMK}, v{vL16}")
                if t == 5: a(f"v_and_or_b32 v{vA}, s{sOFF}, v{vMK}, v{vL16}")
                for x in hooks.get(t, []): a(x)
            else: raise ValueError(k)
        assert ne == 16 and nc == 8
    return o
```

```python
import sys, struct, math
sys.path.insert(0, "gen")
from asmlib import *

NAME = "concat_heads__ssm_conv_s4__mha_block__prompt"
QF = 0x000000; KV = 0x200000; OF = 0x600000; KC = 0x800000; WS_SIZE = 0xA00000
PROF = False; PROF_OFF = 0xA00000
LOG2E = 1.4426950408889634
def f32(x): return struct.unpack("<I", struct.pack("<f", x))[0]
def hx(x): return "0x%08x" % (x & 0xffffffff)
def swap23(m): return (m & ~12) | ((m & 4) << 1) | ((m & 8) >> 1)
MF = "v_mfma_f32_32x32x16_bf16"
OPT = dict(st_k1="", st_k2="", st_k3="")

def srd(a, base, koff, size):
    a(f"s_load_dwordx2 s[{base}:{base+1}], s[0:1], {koff}")
def srd_fin(a, base, size):
    a(f"s_mov_b32 s{base+2}, {hx(size)}")
    a(f"s_mov_b32 s{base+3}, 0x00020000")

def wsz(): return WS_SIZE + (0x100000 if PROF else 0)
def stamp(a, i):
    if PROF: a(f"s_memrealtime s[{70+2*i}:{71+2*i}]")
def stampc(a, i):
    if PROF: a(f"s_memtime s[{70+2*i}:{71+2*i}]")
def stamp_init(a):
    if PROF:
        for i in range(70, 100): a(f"s_mov_b32 s{i}, 0")
        stamp(a, 0)
        a("s_memtime s[100:101]")
def stamp_out(a, kidx, sws, swv, wait=True):
    if not PROF: return
    if wait: a("s_waitcnt vmcnt(0)")
    stamp(a, 14)
    a("s_memtime s[68:69]")
    a("s_waitcnt lgkmcnt(0)")
    a("s_sub_u32 s69, s68, s100")
    a(f"s_lshl_b32 s68, s2, 4")
    a(f"s_add_u32 s68, s68, s{swv}")
    a(f"s_lshl_b32 s68, s68, 6")
    a(f"s_add_u32 s68, s68, {PROF_OFF + kidx*0x40000}")
    for i in range(15): a(f"v_mov_b32 v{4+i}, s{70+2*i}")
    a("v_mov_b32 v19, s69")
    for k in range(4): a(f"buffer_store_dwordx4 v[{4+4*k}:{7+4*k}], off, s[{sws}:{sws+3}], s68 offset:{16*k}")

def cmul(dst, x, y, t):
    return [f"v_pk_mul_f32 {vr(t,2)}, {vr(x,2)}, {vr(y,2)} op_sel:[0,0] op_sel_hi:[0,1]",
            f"v_pk_fma_f32 {vr(dst,2)}, {vr(x,2)}, {vr(y,2)}, {vr(t,2)} op_sel:[1,1,0] op_sel_hi:[1,0,1] neg_lo:[0,1,0]"]

K1_SLOT = 32768; K1_KTW = 59 * 272; K1_RB = 64256; K1_LDS = K1_RB + 3 * K1_SLOT

def gen_k1():
    a = Asm()
    SWS = 12
    sWV, sTB, sHQ, sXO, sWO, sM0, sT, sT2, sC0R = 44, 45, 46, 47, 48, 49, 50, 51, 52
    sC0 = 56
    vL = 1; vT0 = 7; vT1 = 23
    SP0, SLD, SDS = 16, 40, 4
    sD, sMH, sKT, sMASK, sTAB, sG = 52, 53, 54, 58, 60, 44
    PA, PB, PC, PLD, PDS = 72, 74, 76, 78, 21
    a("s_cmp_ge_u32 s2, 256")
    a("s_cbranch_scc1 L_k1_end")
    a(f"v_lshrrev_b32 v7, 6, v0")
    a(f"v_and_b32 v1, 63, v0")
    a(f"v_readfirstlane_b32 s{sWV}, v7")
    a(f"s_cmp_ge_u32 s{sWV}, 4")
    a("s_cbranch_scc1 L_k1_ld")
    a("s_setprio 3")
    srd(a, SLD, 56, 0)
    for i in range(6): srd(a, SP0 + 4 * i, 8 + 8 * i, 0)
    srd(a, SDS, 64, 0); srd(a, SWS, 112, 0)
    stamp_init(a)
    srd_fin(a, SLD, 1024)
    for i in range(6): srd_fin(a, SP0 + 4 * i, 512 * 128 * 2)
    srd_fin(a, SDS, 1024)
    for r in range(72, 80, 2): a(f"v_mov_b64 {vr(r,2)}, 0")
    a(f"v_mov_b32 v{PDS}, 0")
    a(f"v_lshlrev_b32 v{vT0}, 1, v0")
    a(f"v_and_b32 v{vT1}, 127, v0")
    a(f"v_lshlrev_b32 v{vT1}, 10, v{vT1}")
    a(f"s_lshl_b32 s{sT}, s2, 9")
    a(f"s_lshr_b32 s{sD}, s{sG}, 1")
    a(f"s_lshl_b32 s{sT2}, s2, 1")
    a(f"s_add_u32 s{sD}, s{sD}, s{sT2}")
    a(f"s_lshl_b32 s{sT2}, s{sD}, 1")
    a("s_waitcnt lgkmcnt(0)")
    a(f"buffer_load_short_d16_hi v{PLD}, off, s[{SLD}:{SLD+3}], s{sT2}")
    for i in range(6):
        a(f"buffer_load_short_d16_hi v{72+i}, v{vT0}, s[{SP0+4*i}:{SP0+4*i+3}], s{sT} offen")
    a(f"buffer_load_short_d16_hi v{PDS}, v{vT1}, s[{SDS}:{SDS+3}], s{sT2} offen")
    if OPT.get("k1b0", 0): a("s_barrier")
    a("s_setprio 0")
    a("s_branch L_k1_c2")
    a.label("L_k1_ld")
    SX, SW = 4, 8
    vX = 2; vW = 4
    srd(a, SX, 72, 0); srd(a, SW, 80, 0)
    if PROF: srd(a, SWS, 112, 0)
    a(f"s_setprio {OPT.get('k1lprio', 2)}")
    stamp_init(a)
    def tbhq():
        a(f"s_bfe_u32 s{sTB}, s2, {1 | (2 << 16)}")
        a(f"s_lshl_b32 s{sTB}, s{sTB}, 3")
        a(f"s_bfe_u32 s{sT}, s2, {3 | (3 << 16)}")
        a(f"s_add_u32 s{sTB}, s{sTB}, s{sT}")
        a(f"s_and_b32 s{sHQ}, s2, 1")
        a(f"s_lshl_b32 s{sHQ}, s{sHQ}, 2")
        a(f"s_lshr_b32 s{sT2}, s2, 6")
        a(f"s_add_u32 s{sHQ}, s{sHQ}, s{sT2}")
    tbhq()
    a(f"s_mov_b32 s43, s{sWV}")
    a(f"s_sub_u32 s{sWV}, s{sWV}, 4")
    srd_fin(a, SX, 2048 * 512 * 2); srd_fin(a, SW, 512 * 1536 * 2)
    if PROF: srd_fin(a, SWS, wsz())
    a(f"s_lshl_b32 s{sT2}, s{sT2}, 1")
    a(f"s_add_u32 s{sC0R}, s{sT}, s{sT2}")
    a(f"v_lshrrev_b32 v{vT0}, 4, v{vL}")
    a(f"v_and_b32 v{vT1}, 7, v{vL}")
    a(f"v_xor_b32 v{vT0}, v{vT0}, v{vT1}")
    a(f"v_lshlrev_b32 v{vT0}, 4, v{vT0}")
    a(f"v_lshrrev_b32 v5, 3, v{vL}")
    a(f"v_lshl_add_u32 v{vX}, v5, 10, v{vT0}")
    a(f"v_xor_b32 v{vT0}, 64, v{vX}")
    a(f"v_add_u32 v{vX+1}, 7168, v{vT0}")
    a(f"v_bfe_u32 v{vT0}, v{vL}, 4, 1")
    a(f"v_lshlrev_b32 v{vT0}, 2, v{vT0}")
    a(f"v_xor_b32 v{vT0}, v{vT0}, v{vT1}")
    a(f"v_mul_u32_u24 v5, 3072, v5")
    a(f"v_lshl_add_u32 v{vW}, v{vT0}, 4, v5")
    a(f"s_lshl_b32 s{sXO}, s{sTB}, 2")
    a(f"s_add_u32 s{sXO}, s{sXO}, s{sWV}")
    a(f"s_lshl_b32 s{sXO}, s{sXO}, 14")
    a(f"s_mul_i32 s{sWO}, s{sWV}, {16*3072}")
    a(f"s_lshl_b32 s{sT}, s{sHQ}, 7")
    a(f"s_add_u32 s{sWO}, s{sWO}, s{sT}")
    a(f"s_lshl_b32 s{sM0}, s{sWV}, 13")
    a(f"s_add_u32 s{sM0}, s{sM0}, {K1_RB}")
    sN, sME = 53, 54
    a(f"s_add_u32 s{sME}, s{sM0}, {3*K1_SLOT}")
    a(f"s_mov_b32 s{sN}, 0")
    a("s_waitcnt lgkmcnt(0)")
    stamp(a, 1)
    if PROF: a("s_mov_b32 s55, 0")
    if OPT.get("k1b0", 0): a("s_barrier")
    a.label("L_k1_ll")
    if OPT.get("x_nodma"):
        a(f"s_cmp_ge_u32 s{sN}, 3")
        a("s_cbranch_scc1 L_k1_sk")
    a(f"s_and_b32 s{sT2}, s{sC0R}, 7")
    a(f"s_lshl_b32 s{sT}, s{sT2}, 7")
    a(f"s_add_u32 s{sT}, s{sT}, s{sXO}")
    a(f"s_mov_b32 m0, s{sM0}")
    a(f"s_mul_i32 s{sT2}, s{sT2}, {64*3072}")
    for q in range(2):
        a(f"buffer_load_dwordx4 v{vX+q}, s[{SX}:{SX+3}], s{sT} offen offset:{q*1024} lds")
    a(f"s_add_u32 m0, s{sM0}, 2048")
    a(f"s_add_u32 s{sT}, s{sT2}, s{sWO}")
    for st in range(3):
        a(f"buffer_load_dwordx4 v{vW}, s[{SW}:{SW+3}], s{sT} offen offset:{st*1024} lds")
    a(f"s_add_u32 m0, s{sM0}, 5120")
    a(f"s_add_u32 s{sT}, s{sT}, {8*3072}")
    for st in range(3):
        a(f"buffer_load_dwordx4 v{vW}, s[{SW}:{SW+3}], s{sT} offen offset:{st*1024} lds")
    if OPT.get("x_nodma"): a.label("L_k1_sk")
    a(f"s_add_u32 s{sC0R}, s{sC0R}, 1")
    a(f"s_add_u32 s{sM0}, s{sM0}, {K1_SLOT}")
    a(f"s_cmp_eq_u32 s{sM0}, s{sME}")
    a(f"s_cselect_b32 s{sT}, {3*K1_SLOT}, 0")
    a(f"s_sub_u32 s{sM0}, s{sM0}, s{sT}")
    a(f"s_add_u32 s{sN}, s{sN}, 1")
    NI = OPT.get("k1ni", 3)
    a(f"s_cmp_lt_u32 s{sN}, {NI}")
    a("s_cbranch_scc1 L_k1_ll")
    a(f"s_cmp_gt_u32 s{sN}, {NI}")
    a("s_cbranch_scc1 L_k1_l2")
    stamp(a, 10)
    if NI == 3:
        a("s_waitcnt vmcnt(16)")
        stamp(a, 11)
        a("s_barrier")
    a.label("L_k1_l2")
    if PROF and OPT.get("lstamp", 1):
        a("s_waitcnt lgkmcnt(0)")
        a("s_mov_b32 m0, s55")
        a("s_add_u32 s55, s55, 2")
        a("s_movreld_b32 s74, s66")
    a("s_waitcnt vmcnt(8)")
    if PROF and OPT.get("lstamp", 1): a("s_memrealtime s[66:67]")
    a("s_barrier")
    a(f"s_cmp_lt_u32 s{sN}, 8")
    a("s_cbranch_scc1 L_k1_ll")
    a("s_waitcnt vmcnt(0)")
    stamp(a, 9)
    a("s_barrier")
    stamp_out(a, 0, SWS, 43)
    a.label("L_k1_end")
    a("s_endpgm")
    a.label("L_k1_c2")
    srd_fin(a, SWS, wsz())
    vXA, vWA, vKB, vKA, vST, vSV = 8, 12, 13, 14, 18, 19
    ACC = 24; BUF = [72, 88, 152, 168]; KD = 136; TBL = 184
    a(f"s_and_b32 s{sMH}, s{sG}, 1")
    a(f"s_mul_i32 s{sKT}, s{sG}, {K1_KTW}")
    a(f"s_mov_b32 m0, s{sKT}")
    a(f"s_andn2_b32 s{sT}, s{sG}, 1")
    a(f"s_mul_i32 s{sKT}, s{sT}, {K1_KTW}")
    a(f"v_lshrrev_b32 v5, 5, v{vL}")
    a(f"v_lshl_add_u32 v6, v5, 4, s{sKT}")
    a(f"v_and_b32 v{vT0}, 31, v{vL}")
    a(f"v_mul_u32_u24 v{vT1}, 272, v{vT0}")
    a(f"v_add_u32 v{vKB}, v{vT1}, v6")
    def hrow(tile, m):
        c = swap23(m); al = c >> 3; i = c & 7; aa = 4 * tile + al
        if aa == 0: return i
        if aa == 1: return 8 + [0, 0, 1, 2, 2, 2, 3, 4][i]
        if aa in (2, 3): return 13 + 3 * (aa - 2) + [0, 0, 0, 1, 1, 1, 2, 2][i]
        return 19 + 2 * (aa - 4) + (1 if i >= 5 else 0)
    bases = {(0, 0): 0, (0, 1): 13, (1, 0): 19, (1, 1): 19}
    tabs = {}
    for tile in range(2):
        for hi in range(2):
            val = 0
            for m in range(16):
                n = hrow(tile, 16 * hi + m) - bases[(tile, hi)]
                assert 0 <= n < 16
                val |= n << (4 * m)
            tabs[(tile, hi)] = val
    a(f"s_cmp_eq_u32 s{sMH}, 1")
    for hi in range(2):
        for w in range(2):
            a(f"s_mov_b32 s{sTAB+2*hi+w}, {hx(tabs[(0,hi)] >> (32*w))}")
            a(f"s_cselect_b32 s{sTAB+2*hi+w}, {hx(tabs[(1,hi)] >> (32*w))}, s{sTAB+2*hi+w}")
    a(f"s_cselect_b32 s{sTAB+4}, {32+bases[(1,0)]}, {32+bases[(0,0)]}")
    a(f"s_cselect_b32 s{sTAB+5}, {32+bases[(1,1)]}, {32+bases[(0,1)]}")
    a(f"s_cselect_b32 s{sMASK}, 0xaaaaaaaa, 0")
    a(f"s_mov_b32 s{sMASK+1}, s{sMASK}")
    a(f"v_and_b32 v{vT1}, 15, v{vL}")
    a(f"v_lshlrev_b32 v{vT1}, 2, v{vT1}")
    a(f"v_cmp_lt_u32 vcc, 15, v{vT0}")
    a(f"v_lshrrev_b64 v[64:65], v{vT1}, s[{sTAB}:{sTAB+1}]")
    a(f"v_lshrrev_b64 v[66:67], v{vT1}, s[{sTAB+2}:{sTAB+3}]")
    a(f"v_and_b32 v64, 15, v64")
    a(f"v_and_b32 v66, 15, v66")
    a(f"v_add_u32 v64, s{sTAB+4}, v64")
    a(f"v_add_u32 v66, s{sTAB+5}, v66")
    a(f"v_cndmask_b32 v64, v64, v66, vcc")
    a(f"v_mul_u32_u24 v64, 272, v64")
    a(f"v_add_u32 v{vKA}, v64, v6")
    sKO = 55
    a(f"s_lshl_b32 s{sT}, s{sD}, 12")
    a(f"s_lshl_b32 s{sKO}, s{sMH}, 11")
    a(f"s_add_u32 s{sKO}, s{sKO}, s{sT}")
    a(f"s_add_u32 s{sKO}, s{sKO}, {KC}")
    sTS, sHP = sMH, 60
    a(f"s_lshr_b32 s{sHP}, s{sWV}, 1")
    a(f"v_and_b32 v{vT0}, 15, v{vL}")
    a(f"v_bfe_u32 v{vT1}, v{vL}, 1, 3")
    a(f"v_xor_b32 v{vT1}, v{vT1}, v5")
    a(f"v_lshlrev_b32 v{vT1}, 4, v{vT1}")
    a(f"v_lshl_add_u32 v{vT0}, v{vT0}, 7, v{vT1}")
    a(f"v_bfe_u32 v{vT1}, v{vL}, 4, 1")
    a(f"v_lshl_add_u32 v{vT0}, v{vT1}, 13, v{vT0}")
    a(f"s_lshl_b32 s{sC0}, s{sTS}, 14")
    a(f"s_add_u32 s{sC0}, s{sC0}, {K1_RB}")
    a(f"v_add_u32 v{vXA}, s{sC0}, v{vT0}")
    for s in range(1, 4):
        a(f"v_xor_b32 v{vXA+s}, {32*s}, v{vXA}")
    a(f"v_mul_u32_u24 v{vT0}, 3072, v5")
    a(f"v_bfe_u32 v{vT1}, v{vL}, 2, 2")
    a(f"v_lshl_add_u32 v{vT0}, v{vT1}, 7, v{vT0}")
    a(f"v_bfe_u32 v{vT1}, v{vL}, 3, 1")
    a(f"v_xor_b32 v{vT1}, s{sHP}, v{vT1}")
    a(f"v_lshl_add_u32 v{vT0}, v{vT1}, 6, v{vT0}")
    a(f"v_bfe_u32 v{vT1}, v{vL}, 4, 1")
    a(f"v_lshl_add_u32 v{vT0}, v{vT1}, 5, v{vT0}")
    a(f"v_and_b32 v{vT1}, 1, v{vL}")
    a(f"v_lshl_add_u32 v{vT0}, v{vT1}, 4, v{vT0}")
    a(f"v_bfe_u32 v{vT1}, v{vL}, 1, 1")
    a(f"v_lshl_add_u32 v{vT0}, v{vT1}, 3, v{vT0}")
    a(f"v_add_u32 v{vWA}, {2048+K1_RB}, v{vT0}")
    a(f"v_lshlrev_b32 v{vST}, 4, v{vL}")
    a(f"v_bfe_u32 v{vT1}, v{vL}, 4, 1")
    a(f"v_lshlrev_b32 v{vT1}, 17, v{vT1}")
    a(f"v_lshl_add_u32 v{vT1}, v5, 9, v{vT1}")
    a(f"v_and_b32 v{vT0}, 15, v{vL}")
    a(f"v_lshl_add_u32 v{vSV}, v{vT0}, 4, v{vT1}")
    tbhq()
    a(f"s_lshl_b32 s{sT}, s{sHQ}, 1")
    a(f"s_add_u32 s{sT}, s{sT}, s{sHP}")
    a(f"s_lshl_b32 s{sT}, s{sT}, 17")
    a(f"s_lshl_b32 s{sT2}, s{sTB}, 1")
    a(f"s_add_u32 s{sT2}, s{sT2}, s{sTS}")
    a(f"s_lshl_b32 s{sT2}, s{sT2}, 10")
    a(f"s_add_u32 s{sXO}, s{sT}, s{sT2}")
    a(f"s_add_u32 s{sWO}, s{sXO}, 65536")
    a(f"s_lshl_b32 s{sT}, s{sXO}, 1")
    a(f"s_add_u32 s{sT}, s{sT}, {KV}")
    a(f"s_add_u32 s{sT2}, s{sT}, 131072")
    for r in list(range(ACC, ACC + 48, 2)) + list(range(KD, BUF[3] + 16, 2)):
        a(f"v_mov_b64 {vr(r,2)}, 0")
    DT, Z, W_, E1, E8, E128, G1 = 79, 80, 82, 84, 86, 88, 90
    E = {1: E1, 8: E8}
    for i in range(2, 8): E[i] = 92 + 2 * (i - 2)
    G = {1: G1}
    for i in range(2, 8): G[i] = 104 + 2 * (i - 2)
    CA, CB = 116, 118
    TA, TB_, TH = 120, 122, 124
    CV = [128, 129, 130, 131, 132, 133]
    l2e_hi = struct.unpack("<f", struct.pack("<f", LOG2E))[0]
    a(f"s_mov_b32 s{sC0}, {hx(f32(LOG2E))}")
    a(f"s_mov_b32 s{sC0+1}, {hx(f32(LOG2E - l2e_hi))}")
    stamp(a, 1)
    a("s_waitcnt vmcnt(1)")
    stamp(a, 2)
    m = []
    m.append(f"v_mul_f32 v120, s{sC0}, v{PLD}")
    m.append(f"v_fma_f32 v121, v{PLD}, s{sC0}, -v120")
    m.append(f"v_exp_f32 v122, v120")
    m.append(f"v_fma_f32 v121, v{PLD}, s{sC0+1}, v121")
    m.append(f"v_mul_f32 v121, {hx(f32(math.log(2.0)))}, v121")
    m.append(f"v_fma_f32 v122, v122, v121, v122")
    m.append(f"v_cvt_pk_bf16_f32 v122, v122, v122")
    m.append(f"v_lshlrev_b32 v{DT}, 16, v122")
    m.append(f"v_mul_f32 v{Z}, v{DT}, v{PA}")
    m.append(f"v_mul_f32 v{Z+1}, v{DT}, v{PA+1}")
    m.append(f"v_mul_f32 v{PB}, v{DT}, v{PB}")
    m.append(f"v_mul_f32 v{PB+1}, v{DT}, v{PB+1}")
    m.append(f"v_mul_f32 v{Z}, s{sC0}, v{Z}")
    m.append(f"v_mul_f32 v{Z+1}, {hx(f32(1.0/(2*math.pi)))}, v{Z+1}")
    m += cmul(W_, PC, PB, TA)
    def direct(dst, v, t):
        o = []
        if v == 1:
            o.append(f"v_exp_f32 v{t}, v{Z}")
            o.append(f"v_fract_f32 v{t+1}, v{Z+1}")
        else:
            o.append(f"v_mul_f32 v{t}, {hx(f32(float(v)))}, v{Z}")
            o.append(f"v_mul_f32 v{t+1}, {hx(f32(float(v)))}, v{Z+1}")
            o.append(f"v_exp_f32 v{t}, v{t}")
            o.append(f"v_fract_f32 v{t+1}, v{t+1}")
        o.append(f"v_cos_f32 v{dst}, v{t+1}")
        o.append(f"v_sin_f32 v{dst+1}, v{t+1}")
        o.append(f"v_pk_mul_f32 {vr(dst,2)}, {vr(dst,2)}, {vr(t,2)} op_sel:[0,0] op_sel_hi:[1,0]")
        return o
    m += merge(direct(E8, 8, 120), direct(E128, 128, 122), direct(E1, 1, 124), direct(G1, 256, 126))
    def putr(row, src, negim, regs, cnt):
        return [f"v_cvt_pk_bf16_f32 v{TBL+row}, v{src}, {'-' if negim else ''}v{src+1}"]
    ca = [0]; cb = [0]; ch = [0]
    sA = putr(0, W_, False, CV[0:2], ca) + cmul(CA, W_, E8, TA)
    for j in range(1, 16):
        sA += putr(j, CA, False, CV[0:2], ca)
        if j < 15: sA += cmul(CA, CA, E8, TA)
    sB = cmul(CB, W_, E128, TB_)
    for j in range(16, 32):
        sB += putr(j, CB, False, CV[2:4], cb)
        if j < 31: sB += cmul(CB, CB, E8, TB_)
    H0 = 32
    sH = [f"v_mov_b32 v{TBL+H0}, 0x3f80"]
    ch[0] = 1
    P = lambda row, src: putr(H0 + row, src, True, CV[4:6], ch)
    sH += cmul(E[2], E1, E1, TH) + P(1, E1) + cmul(G[2], G1, G1, TH) + P(8, G1)
    sH += cmul(E[3], E[2], E1, TH) + P(2, E[2]) + cmul(E[4], E[2], E[2], TH) + P(13, G[2])
    sH += cmul(G[3], G[2], G1, TH) + P(3, E[3]) + cmul(G[4], G[2], G[2], TH) + P(4, E[4])
    sH += cmul(E[5], E[4], E1, TH) + P(16, G[3]) + cmul(E[6], E[4], E[2], TH) + P(19, G[4])
    sH += cmul(E[7], E[4], E[3], TH) + P(5, E[5]) + cmul(G[5], G[4], G1, TH) + P(6, E[6])
    sH += cmul(G[6], G[4], G[2], TH) + P(7, E[7]) + cmul(G[7], G[4], G[3], TH) + P(21, G[5])
    sH += P(23, G[6]) + P(25, G[7])
    prods = [(9, 1, 2), (10, 1, 4), (11, 1, 6), (12, 1, 8), (14, 2, 4), (15, 2, 8), (17, 3, 4), (18, 3, 8),
             (20, 4, 8), (22, 5, 8), (24, 6, 8), (26, 7, 8)]
    HXs = [126, 134]
    for n, (row, g, e) in enumerate(prods):
        sH += cmul(HXs[n & 1], G[g], E[e], TH)
        if n > 0: sH += P(prods[n-1][0], HXs[(n-1) & 1])
    sH += P(prods[-1][0], HXs[(len(prods)-1) & 1])
    m += merge(sA, sB, sH)
    if OPT.get("x_nohelp"): m = []
    for x in m: a(x)
    stamp(a, 3)
    sSL, sDL, sCN, sM = 61, 62, 63, 64
    a(f"s_mov_b32 s{sSL}, 0")
    a(f"s_mov_b32 s{sCN}, 0")
    if PROF:
        a(f"s_mov_b32 s{sM}, m0")
        a("s_mov_b32 m0, 0")
    def rd(ks):
        b = BUF[ks]
        o = [f"ds_read_b128 {vr(b,4)}, v{vXA+ks}"]
        for st in range(3):
            for hh in range(2):
                o.append(f"ds_read_b64_tr_b16 {vr(b+4+4*st+2*hh,2)}, v{vWA} offset:{ks*8192+st*1024+hh*512}")
        return o
    upd = [f"s_add_u32 s{sSL}, s{sSL}, 1", f"s_cmp_eq_u32 s{sSL}, 3", f"s_cselect_b32 s{sSL}, 0, s{sSL}",
           f"s_cselect_b32 s{sDL}, {hx(-2*K1_SLOT)}, s{sKT}"]
    upd += [f"v_add_u32 v{r}, s{sDL}, v{r}" for r in range(vXA, vXA + 5)]
    upd += [f"s_add_u32 s{sCN}, s{sCN}, 1", f"s_cmp_lt_u32 s{sCN}, 7"]
    def mf(ks):
        b = BUF[ks]; o = []
        x = vr(b, 4)
        for st in range(3):
            w = vr(b + 4 + 4 * st, 4); d = vr(ACC + 16 * st, 16)
            o.append(f"{MF} {d}, {w}, {x}, {d}" if st < 2 else f"{MF} {d}, {x}, {w}, {d}")
        return o
    def gaps(ms, groups):
        for m_, g in zip(ms, groups):
            a(m_)
            for x in g: a(x)
    def body(tail):
        R = rd(0) + rd(1) + rd(2) + rd(3)
        a("s_barrier")
        for x in R[0:2]: a(x)
        gaps(mf(2), [R[2:5], R[5:8], R[8:11]])
        gaps(mf(3), [R[11:14], R[14:17], R[17:20]])
        a("s_waitcnt lgkmcnt(13)")
        gaps(mf(0), [R[20:23], R[23:26], R[26:28] + tail[0]])
        a(f"s_waitcnt lgkmcnt({min(15, 14 + sum(x.startswith('ds_') for x in tail[0]))})")
        gaps(mf(1), tail[1:4])
    a(f"s_mov_b32 s{sKT}, {K1_SLOT}")
    a("s_waitcnt vmcnt(0)")
    if PROF: a("s_memrealtime s[66:67]")
    a.label("L_k1_loop")
    a("s_waitcnt lgkmcnt(0)")
    if PROF:
        a("s_movreld_b32 s78, s66")
        a("s_add_u32 m0, m0, 2")
    body([[], upd[:5] + (["s_memrealtime s[66:67]"] if PROF else []), upd[5:], []])
    a("s_cbranch_scc1 L_k1_loop")
    a(f"s_mov_b32 s{sC0}, {hx(f32(0.25*LOG2E))}")
    a(f"s_mov_b32 s{sC0+1}, {hx(f32(0.25*LOG2E))}")
    a("s_waitcnt lgkmcnt(0)")
    if PROF:
        a("s_movreld_b32 s78, s66")
        a(f"s_mov_b32 m0, s{sM}")
    Wt = [f"ds_write_addtid_b32 v{TBL+r} offset:{r*272}" for r in range(59)]
    body([[], Wt[0:7], Wt[7:14], Wt[14:21]])
    a("s_waitcnt lgkmcnt(15)")
    gaps(mf(2), [Wt[21:28], Wt[28:35], Wt[35:42]])
    gaps(mf(3), [Wt[42:49], Wt[49:59], []])
    stamp(a, 12)
    KFR = [184 + 8 * i for i in range(8)]
    def rk(n):
        t, ks = n & 1, n >> 1; r = KFR[n % 8]
        return [f"ds_read_b128 {vr(r,4)}, v{vKA} offset:{t*K1_KTW+32*ks}",
                f"ds_read_b128 {vr(r+4,4)}, v{vKB} offset:{t*K1_KTW+32*ks}"]
    def mk_(n):
        r = KFR[n % 8]
        return f"{MF} {vr(KD,16)}, {vr(r,4)}, {vr(r+4,4)}, {vr(KD,16)}"
    O = 72; KO = 104
    kfin = [f"v_add_f32 v{KD}, v{KD}, v{PDS}",
            f"v_cndmask_b32 v{KD+4}, v{KD+4}, v{KD+5}, s[{sMASK}:{sMASK+1}]",
            f"v_cndmask_b32 v{KD+12}, v{KD+12}, v{KD+13}, s[{sMASK}:{sMASK+1}]"]
    kfin += [f"v_cvt_pk_bf16_f32 v{KO+k}, v{KD+2*k}, v{KD+2*k+1}" for k in range(8)]
    kfin += [f"buffer_store_dwordx4 {vr(KO,4)}, v{vST}, s[{SWS}:{SWS+3}], s{sKO} offen {OPT.get('st_kc','')}",
             f"buffer_store_dwordx4 {vr(KO+4,4)}, v{vST}, s[{SWS}:{SWS+3}], s{sKO} offen offset:1024 {OPT.get('st_kc','')}"]
    qfin = [f"v_pk_mul_f32 {vr(ACC+2*k,2)}, {vr(ACC+2*k,2)}, s[{sC0}:{sC0+1}]" for k in range(8)]
    qfin += [f"v_cvt_pk_bf16_f32 v{O+k}, v{ACC+2*k}, v{ACC+2*k+1}" for k in range(8)]
    qfin += [f"buffer_store_dwordx4 {vr(O,4)}, v{vST}, s[{SWS}:{SWS+3}], s{sXO} offen {OPT['st_k1']}",
             f"buffer_store_dwordx4 {vr(O+4,4)}, v{vST}, s[{SWS}:{SWS+3}], s{sWO} offen {OPT['st_k1']}"]
    kk = [f"v_cvt_pk_bf16_f32 v{O+8+k}, v{ACC+16+2*k}, v{ACC+16+2*k+1}" for k in range(8)]
    kk += [f"buffer_store_dwordx4 {vr(O+8,4)}, v{vST}, s[{SWS}:{SWS+3}], s{sT} offen {OPT['st_k1']}",
           f"buffer_store_dwordx4 {vr(O+12,4)}, v{vST}, s[{SWS}:{SWS+3}], s{sT2} offen {OPT['st_k1']}"]
    vv = [f"v_cvt_pk_bf16_f32 v{O+16+k}, v{ACC+32+2*k}, v{ACC+32+2*k+1}" for k in range(8)]
    vv += [f"buffer_store_dwordx4 {vr(O+16,4)}, v{vSV}, s[{SWS}:{SWS+3}], s{sT} offen offset:1024 {OPT['st_k1']}",
           f"buffer_store_dwordx4 {vr(O+20,4)}, v{vSV}, s[{SWS}:{SWS+3}], s{sT} offen offset:1280 {OPT['st_k1']}"]
    fin = qfin + kk + vv
    NF = OPT.get("k1nf", 12)
    for x in fin[:NF]: a(x)
    a("s_waitcnt lgkmcnt(0)")
    a("s_barrier")
    for n in range(6):
        for x in rk(n): a(x)
    fin = fin[NF:]
    for x in fin[:8]: a(x)
    fin = fin[8:]
    per = (len(fin) + 9) // 10
    for n in range(16):
        out = 10 if n < 11 else 2 * (15 - n)
        a(f"s_waitcnt lgkmcnt({out})")
        a(mk_(n))
        if n + 6 < 16:
            for x in rk(n + 6): a(x)
        for x in fin[:per]: a(x)
        fin = fin[per:]
    assert not fin
    for x in kfin: a(x)
    stamp(a, 13)
    stamp_out(a, 0, SWS, sWV)
    a("s_endpgm")
    return a.l, 248

K2_LDS = 163840
CA0 = 131072; CH = 13600
EOFF = 64; OOFF = 64 + 4096 + 64; UOFF = OOFF + 4096
FLG = 163840 - 64
BAR_ITERS = dict()

def gen_k2():
    a = Asm()
    SWS, SU, SO, SWO = 4, 8, 12, 40
    sWV, sH, sQB, sT, sT2, sIT, sOFF, sPASS, sD0 = 16, 17, 18, 19, 20, 21, 22, 23, 24
    sVM = 26
    sA, sB, sC, sE = 32, 33, 34, 35
    a("s_cmp_ge_u32 s2, 256")
    a("s_cbranch_scc1 L_k2_end")
    srd(a, SWS, 112, 0); srd(a, SU, 0, 0); srd(a, SO, 96, 0); srd(a, SWO, 88, 0)
    stamp_init(a)
    vL = 1; vL16 = 2
    a(f"v_lshrrev_b32 v3, 6, v0")
    a(f"v_and_b32 v{vL}, 63, v0")
    a(f"v_readfirstlane_b32 s{sWV}, v3")
    a(f"v_lshlrev_b32 v{vL16}, 4, v{vL}")
    srd_fin(a, SWS, wsz())
    a(f"s_and_b32 s{sT}, s2, 7")
    a(f"s_lshr_b32 s{sT2}, s2, 3")
    a(f"s_lshl_b32 s{sH}, s{sT}, 2")
    a(f"s_and_b32 s{sQB}, s{sT2}, 3")
    a(f"s_add_u32 s{sH}, s{sH}, s{sQB}")
    a(f"s_lshr_b32 s{sQB}, s{sT2}, 2")
    a(f"s_lshl_b32 s{sA}, s{sH}, 17")
    a(f"s_add_u32 s{sA}, s{sA}, {KV}")
    a(f"s_cmp_ge_u32 s{sWV}, 8")
    a("s_cbranch_scc1 L_k2_conv")
    from attnloop import loop_body, align8, Q, NM, S, P, O, KF, VF, vA, vN, vT, vMK
    sSTEP, sEND, sMID, sFIN = 36, 37, 38, 39
    a(f"s_lshl_b32 s{sQB}, s{sQB}, 3")
    a(f"s_add_u32 s{sQB}, s{sQB}, s{sWV}")
    a(f"s_lshl_b32 s{sT}, s{sH}, 16")
    a(f"s_lshl_b32 s{sT2}, s{sQB}, 10")
    a(f"s_add_u32 s{sT}, s{sT}, s{sT2}")
    a(f"s_lshl_b32 s{sB}, s{sWV}, 13")
    a(f"s_add_u32 s{sC}, s{sA}, s{sB}")
    a(f"s_add_u32 s{sE}, s{sC}, 4096")
    a(f"s_mov_b32 m0, s{sB}")
    a("s_waitcnt lgkmcnt(0)")
    a(f"buffer_load_dwordx4 {vr(Q,4)}, v{vL16}, s[{SWS}:{SWS+3}], s{sT} offen")
    for k in range(4):
        a(f"buffer_load_dwordx4 v{vL16}, s[{SWS}:{SWS+3}], s{sC} offen offset:{1024*k} lds")
    a(f"s_add_u32 m0, s{sB}, 4096")
    for k in range(4):
        a(f"buffer_load_dwordx4 v{vL16}, s[{SWS}:{SWS+3}], s{sE} offen offset:{1024*k} lds")
    a(f"s_mov_b32 s{sVM}, 0x0000ffff")
    a(f"s_mov_b32 s{sVM+1}, 0x0000ffff")
    a(f"v_and_b32 v{vT}, 27, v{vL}")
    a(f"v_cmp_eq_u32 vcc, 16, v{vT}")
    a(f"v_mov_b32 v{vT}, 0x3f803f80")
    a(f"v_cndmask_b32 v{vT}, 0, v{vT}, vcc")
    for r in range(16): a(f"v_mov_b32 v{VF[0]+r}, v{vT}")
    a(f"v_mov_b32 v{vMK}, 0x1ffff")
    a(f"s_cmp_lt_u32 s{sWV}, 4")
    a(f"s_movk_i32 s{sSTEP}, 8192")
    a(f"s_cselect_b32 s{sSTEP}, s{sSTEP}, -8192")
    if OPT.get("prio", 6):
        a("s_cbranch_scc1 L_k2_old")
        a("s_setprio 1")
        a.label("L_k2_old")
    a(f"s_mul_i32 s{sMID}, s{sSTEP}, {2*(OPT.get('prio', 6) or 6)}")
    a(f"s_add_u32 s{sMID}, s{sMID}, s{sB}")
    a(f"s_lshl_b32 s{sFIN}, s{sSTEP}, 4")
    a(f"s_add_u32 s{sFIN}, s{sFIN}, s{sB}")
    X1 = f"s_mov_b64 exec, s[{sVM}:{sVM+1}]"; X2 = "s_mov_b64 exec, -1"
    SEQ = OPT.get("seq", "e e M2 s e e e e e e W X V V x e M1 K c c c c e e e e M3 e e e c c c c")
    def body(first):
        tag = "a" if first else "b"
        cc = "0" if first else vr(NM, 16)
        for r in range(16): a(f"v_mov_b32 v{O+r}, 0")
        for r in range(4, 8): a(f"v_mov_b32 v{P+r}, 0")
        a(f"v_add_u32 v{vA}, s{sB}, v{vL16}")
        a(f"s_mov_b32 s{sOFF}, s{sB}")
        if first:
            a(f"s_lshl_b32 s{sEND}, s{sSTEP}, 2")
            a(f"s_add_u32 s{sEND}, s{sEND}, s{sB}")
            a("s_mov_b64 vcc, 0")
            if PROF: a("s_mov_b32 m0, 0")
            stamp(a, 1)
            a("s_waitcnt vmcnt(4)")
            stamp(a, 3)
            stampc(a, 12)
        else:
            a(f"s_mov_b32 s{sEND}, s{sFIN}")
        a(f"ds_read_b128 {vr(KF[0],4)}, v{vA}")
        a(f"ds_read_b128 {vr(KF[1],4)}, v{vA} offset:2048")
        a(X1)
        a(f"ds_read_b128 {vr(VF[0],4)}, v{vA} offset:1024")
        a(f"ds_read_b128 {vr(VF[0]+4,4)}, v{vA} offset:1280")
        a(X2)
        a("s_waitcnt lgkmcnt(3)")
        a(f"{MF} {vr(S[0],16)}, {vr(KF[0],4)}, {vr(Q,4)}, {cc}")
        if first: a("s_waitcnt vmcnt(0)")
        a("s_waitcnt lgkmcnt(0)")
        a("s_nop 7")
        a("s_nop 3")
        a(".p2align 6")
        a.label(f"L_k2_loop{tag}")
        hooks = {7: [f"s_cmp_lg_u32 s{sOFF}, s{sEND}"]}
        if first: hooks[2] = ["s_cbranch_vccz L_k2_bar", "L_k2_barx:"]
        if first and PROF:
            hooks[0] = ["s_memtime s[64:65]", "s_memrealtime s[66:67]"]
            hooks[3] = ["s_movreld_b32 s48, s64", "s_movreld_b32 s49, s66", "s_add_u32 m0, m0, 2", "s_nop 0"]
        for x in align8(loop_body(SEQ, cc, sOFF, sSTEP, vL16, X1, X2, hooks)): a(x)
        a(f"s_cbranch_scc1 L_k2_loop{tag}")
        if first:
            a(f"s_cmp_lg_u32 s{sEND}, s{sFIN}")
            a(f"s_cbranch_scc1 L_k2_seg")
        a(f"{MF} {vr(O,16)}, {vr(VF[1]+4,4)}, {vr(P+4,4)}, {vr(O,16)}")
        a("s_waitcnt lgkmcnt(0)")
    body(True)
    stamp(a, 4)
    stampc(a, 13)
    a(f"s_mov_b32 s{sT}, {hx(f32(2.0**-40))}")
    a(f"s_mov_b32 s{sT2}, {hx(f32(2.0**40))}")
    a(f"v_mov_b32 v{vT}, v{O+8}")
    for r in range(8): a(f"v_fma_f32 v{vT}, v{O+r}, 0, v{vT}")
    a(f"v_cmp_nle_f32 vcc, s{sT}, v{vT}")
    a(f"v_cmp_nge_f32 s[28:29], s{sT2}, v{vT}")
    a("s_nop 3")
    a(f"s_or_b64 vcc, vcc, s[28:29]")
    a("s_cbranch_scc1 L_k2_slow")
    a.label("L_k2_fin")
    a(f"v_rcp_f32 v{vT}, v{O+8}")
    a(f"s_lshl_b32 s{sT}, s{sQB}, 5")
    a(f"s_add_u32 s{sT}, s{sT}, s{sH}")
    a(f"s_lshl_b32 s{sT}, s{sT}, 10")
    a(f"s_add_u32 s{sT}, s{sT}, {OF}")
    for r in range(8): a(f"v_mul_f32 v{O+r}, v{O+r}, v{vT}")
    for r in range(4): a(f"v_cvt_pk_bf16_f32 v{P+r}, v{O+2*r}, v{O+2*r+1}")
    a(f"buffer_store_dwordx4 {vr(P,4)}, v{vL16}, s[{SWS}:{SWS+3}], s{sT} offen {OPT['st_k2']}")
    stamp_out(a, 1, SWS, sWV)
    if PROF:
        a(f"s_add_u32 s68, s68, {2*0x40000}")
        for i in range(16): a(f"v_mov_b32 v{24+i}, s{48+i}")
        for k in range(4): a(f"buffer_store_dwordx4 v[{24+4*k}:{27+4*k}], off, s[{SWS}:{SWS+3}], s68 offset:{16*k}")
    a("s_endpgm")
    a.label("L_k2_bar")
    a("s_barrier")
    a("s_mov_b64 vcc, -1")
    a("s_branch L_k2_barx")
    a.label("L_k2_seg")
    a(f"s_cmp_eq_u32 s{sEND}, s{sMID}")
    a(f"s_cbranch_scc1 L_k2_seg2")
    a(f"s_mov_b32 s{sEND}, s{sMID}")
    a.label("L_k2_poll")
    a(f"v_mov_b32 v{vT}, {FLG+4}")
    a(f"ds_read_b32 v{vT}, v{vT}")
    a("s_waitcnt lgkmcnt(0)")
    a(f"v_readfirstlane_b32 s{sT}, v{vT}")
    a(f"s_cmp_lt_u32 s{sT}, 4")
    a("s_cbranch_scc1 L_k2_poll")
    stamp(a, 5)
    a("s_branch L_k2_loopa")
    a.label("L_k2_seg2")
    a("s_setprio 0")
    stamp(a, 6)
    a(f"s_mov_b32 s{sEND}, s{sFIN}")
    a("s_branch L_k2_loopa")
    a.label("L_k2_slow")
    a(f"v_mov_b32 v{vA}, v{vL16}")
    a(f"v_mov_b32 v{vT}, 0xff800000")
    a(f"s_mov_b32 s{sIT}, 0")
    a.label("L_k2_max")
    a(f"ds_read_b128 {vr(KF[0],4)}, v{vA}")
    a(f"v_add_u32 v{vA}, 2048, v{vA}")
    a("s_waitcnt lgkmcnt(0)")
    a(f"{MF} {vr(S[0],16)}, {vr(KF[0],4)}, {vr(Q,4)}, 0")
    a(f"s_add_u32 s{sIT}, s{sIT}, 1")
    for r in range(8): a(f"v_max3_f32 v{vT}, v{S[0]+2*r}, v{S[0]+2*r+1}, v{vT}")
    a(f"s_cmp_lt_u32 s{sIT}, 64")
    a("s_cbranch_scc1 L_k2_max")
    a(f"v_xor_b32 v{vA}, 32, v{vL}")
    a(f"v_lshlrev_b32 v{vA}, 2, v{vA}")
    a(f"ds_bpermute_b32 v{vN}, v{vA}, v{vT}")
    a("s_waitcnt lgkmcnt(0)")
    a(f"v_max_f32 v{vT}, v{vT}, v{vN}")
    for r in range(16): a(f"v_sub_f32 v{NM+r}, 0, v{vT}")
    a(X1)
    for r in range(4, 8): a(f"v_mov_b32 v{VF[1]+r}, 0")
    a(X2)
    body(False)
    a("s_nop 7")
    a("s_nop 3")
    a("s_branch L_k2_fin")
    a.label("L_k2_conv")
    sQ, sCC, sHW, sCB = 36, 37, 38, 39
    U = 4; Y0 = 12; Y1 = 28; FR = 44; vG = 76; vUW = 77; vZ = 78; vZA = 92; vFX = 80
    vAL, vAH, vB0, vB1, vJ, vHF, vT, vT2, vXW, vFL, vONE = 81, 82, 83, 84, 85, 86, 87, 88, 89, 90, 91
    a(f"s_setprio {OPT.get('cprio', 3)}")
    a(f"s_sub_u32 s{sQ}, s{sWV}, 8")
    sKB, sKG = 44, 45
    a(f"s_lshl_b32 s{sKB}, s{sQ}, 12")
    a(f"s_add_u32 s{sKB}, s{sKB}, 65536")
    a(f"s_mov_b32 s{sKG}, s{sA}")
    a(f"v_mov_b32 v{vZ}, 0")
    a(f"v_mov_b32 v{vZ+1}, 0")
    a(f"v_mov_b32 v{vFL}, {FLG}")
    a(f"v_mov_b32 v{vONE}, 1")
    a(f"ds_write_b64 v{vFL}, {vr(vZ,2)}")
    a("s_waitcnt lgkmcnt(0)")
    def kvdma(rnd):
        a(f"s_add_u32 m0, s{sKB}, {rnd*16384}")
        a(f"s_add_u32 s46, s{sKG}, m0")
        for k in range(4):
            a(f"buffer_load_dwordx4 v{vL16}, s[{SWS}:{SWS+3}], s46 offen offset:{1024*k} lds")
    NPRE = OPT.get("npre", 0)
    for rnd in range(NPRE): kvdma(rnd)
    if OPT.get("noconv"):
        a("s_barrier")
        for rnd in range(NPRE, 4): kvdma(rnd)
        a("s_waitcnt vmcnt(0)")
        a("s_mov_b64 exec, 1")
        a(f"ds_add_u32 v{vFL}, v{vONE} offset:4")
        a("s_endpgm")
    srd_fin(a, SU, 2048 * 512 * 2); srd_fin(a, SO, 2048 * 1024 * 2); srd_fin(a, SWO, 512 * 512 * 2)
    a(f"s_lshl_b32 s{sD0}, s{sT}, 5")
    a(f"s_add_u32 s{sD0}, s{sD0}, s{sT2}")
    a(f"s_lshl_b32 s{sPASS}, s{sT2}, 14")
    a(f"s_lshr_b32 s{sCC}, s{sQ}, 1")
    a(f"s_and_b32 s{sHW}, s{sQ}, 1")
    a(f"s_mul_i32 s{sCB}, s{sCC}, {CH}")
    a(f"s_add_u32 s{sCB}, s{sCB}, {CA0}")
    a(f"s_mul_i32 s{sE}, s{sHW}, {OOFF-EOFF}")
    a(f"s_add_u32 s{sE}, s{sE}, s{sCB}")
    a(f"s_add_u32 s{sE}, s{sE}, {EOFF}")
    a(f"s_lshl_b32 s{sT2}, s{sD0}, 1")
    a(f"s_add_u32 s{sT2}, s{sT2}, s{sCC}")
    a(f"s_lshl_b32 s{sT2}, s{sT2}, 12")
    a(f"s_add_u32 s{sT2}, s{sT2}, {KC}")
    a(f"s_lshl_b32 s{sIT}, s{sHW}, 1")
    a(f"s_sub_u32 s{sT2}, s{sT2}, s{sIT}")
    a(f"s_mov_b32 s47, s{sE}")
    a(f"s_mov_b32 s48, s{sT2}")
    a(f"v_and_b32 v{vJ}, 31, v{vL}")
    a(f"v_lshrrev_b32 v{vHF}, 5, v{vL}")
    a(f"s_lshl_b32 s{sT}, s{sD0}, 2")
    a(f"v_lshlrev_b32 v{vT}, 12, v{vHF}")
    a(f"v_lshl_add_u32 v{vG}, v{vJ}, 15, v{vT}")
    a(f"s_lshl_b32 s{sA}, s{sCC}, 20")
    a(f"s_lshl_b32 s{sB}, s{sHW}, 14")
    a(f"s_add_u32 s{sA}, s{sA}, s{sB}")
    a(f"s_add_u32 s{sB}, s{sA}, s{sT}")
    a(f"s_add_u32 s{sC}, s{sB}, 8192")
    a(f"s_mul_i32 s{sT2}, s{sHW}, 80")
    a(f"s_add_u32 s{sT2}, s{sT2}, s{sCB}")
    a(f"s_add_u32 s{sT2}, s{sT2}, {UOFF+64*80-64}")
    a(f"v_min_u32 v{vT}, 35, v{vL}")
    a(f"v_lshl_add_u32 v{vZA}, v{vT}, 2, s{sT2}")
    a(f"s_sub_u32 s{sT2}, s{sE}, 64")
    a(f"v_lshl_add_u32 v{vT2}, v{vL}, 2, s{sT2}")
    a(f"v_cmp_gt_u32 vcc, 16, v{vL}")
    a(f"v_cndmask_b32 v{vZA}, v{vZA}, v{vT2}, vcc")
    a(f"ds_write_b32 v{vZA}, v{vZ}")
    a(f"s_lshl_b32 s{sT2}, s{sHW}, 1")
    a(f"s_add_u32 s{sT2}, s{sT2}, s{sE}")
    a(f"s_sub_u32 s{sT2}, s{sT2}, 2")
    a(f"v_mov_b32 v{vFX}, s{sT2}")
    a(f"v_mul_u32_u24 v{vT}, 80, v{vJ}")
    a(f"v_lshl_add_u32 v{vT}, v{vHF}, 3, v{vT}")
    a(f"s_mul_i32 s{sE}, s{sCC}, {80*32}")
    a(f"s_lshl_b32 s{sT2}, s{sHW}, 5")
    a(f"s_add_u32 s{sE}, s{sE}, s{sT2}")
    a(f"s_sub_u32 s{sE}, {CA0+UOFF+80*63+62-22}, s{sE}")
    a(f"v_sub_u32 v{vUW}, s{sE}, v{vT}")
    stamp(a, 1)
    a("s_barrier")
    stamp(a, 2)
    for rnd in range(NPRE, 4): kvdma(rnd)
    a(f"s_mov_b32 m0, s47")
    for k in range(4):
        a(f"buffer_load_dwordx4 v{vL16}, s[{SWS}:{SWS+3}], s48 offen offset:{1024*k} lds")
    a("s_waitcnt vmcnt(4)")
    a("s_mov_b64 exec, 1")
    a(f"ds_add_u32 v{vFL}, v{vONE} offset:4")
    a("s_mov_b64 exec, -1")
    stamp(a, 3)
    for rr in range(8):
        a(f"buffer_load_dword v{U+rr}, v{vG}, s[{SU}:{SU+3}], s{sB if rr < 4 else sC} offen offset:{1024*(rr&3)}")
    a(f"v_and_b32 v{vT}, 1, v{vJ}")
    a(f"v_and_b32 v{vT2}, 30, v{vJ}")
    a(f"v_lshlrev_b32 v{vT2}, 1, v{vT2}")
    a(f"v_lshl_add_u32 v{vT2}, v{vHF}, 4, v{vT2}")
    a(f"v_mul_u32_u24 v{vT}, {OOFF-EOFF}, v{vT}")
    a(f"v_sub_u32 v{vT2}, v{vT2}, v{vT}")
    a(f"s_lshl_b32 s{sT2}, s{sHW}, 10")
    a(f"s_add_u32 s{sT2}, s{sT2}, s{sCB}")
    a(f"s_add_u32 s{sT2}, s{sT2}, {OOFF-60}")
    a(f"v_add_u32 v{vAL}, s{sT2}, v{vT2}")
    a(f"v_add_u32 v{vAH}, 2048, v{vAL}")
    a(f"v_mul_u32_u24 v{vT}, 80, v{vJ}")
    a(f"v_lshlrev_b32 v{vT2}, 4, v{vHF}")
    a(f"v_sub_u32 v{vT}, v{vT2}, v{vT}")
    a(f"s_mul_i32 s{sT2}, s{sHW}, {16*80}")
    a(f"s_add_u32 s{sT2}, s{sT2}, s{sCB}")
    a(f"s_add_u32 s{sT2}, s{sT2}, {UOFF+80*31}")
    a(f"v_add_u32 v{vB1}, s{sT2}, v{vT}")
    a(f"s_add_u32 s{sE}, s{sCB}, {UOFF+64*80}")
    a(f"v_add_u32 v{vB0}, {32*80}, v{vB1}")
    a(f"v_min_u32 v{vB0}, s{sE}, v{vB0}")
    a(f"v_add_u32 v{vXW}, {CA0}, v{vL16}")
    for r in range(32): a(f"v_mov_b32 v{Y0+r}, 0")
    stamp(a, 4)
    a("s_waitcnt vmcnt(8)")
    a(f"ds_write_b16 v{vFX}, v{vZ}")
    for rr in range(8):
        a(f"s_waitcnt vmcnt({7-rr})")
        off = 2 * (11 - ((rr & 3) + 8 * (rr >> 2)))
        a(f"ds_write_b16 v{vUW}, v{U+rr} offset:{off}")
        a(f"ds_write_b16_d16_hi v{vUW}, v{U+rr} offset:{off+CH}")
    a(f"s_lshl_b32 s{sT2}, s{sQ}, 12")
    a(f"s_add_u32 s{sT2}, s{sT2}, s{sPASS}")
    if not OPT.get("nopf"):
        for k in range(4):
            a(f"buffer_load_dwordx4 {vr(96+4*k,4)}, v{vL16}, s[{SWO}:{SWO+3}], s{sT2} offen offset:{1024*k}")
    nsync = [0]
    def sync(n):
        nsync[0] += 1
        a("s_waitcnt lgkmcnt(0)")
        a("s_mov_b64 exec, 1")
        a(f"ds_add_u32 v{vFL}, v{vONE}")
        a.label(f"L_k2_spin{nsync[0]}")
        a(f"ds_read_b32 v{vT}, v{vFL}")
        a("s_waitcnt lgkmcnt(0)")
        a(f"v_readfirstlane_b32 s{sT2}, v{vT}")
        a(f"s_cmp_lt_u32 s{sT2}, {4*n}")
        a(f"s_cbranch_scc1 L_k2_spin{nsync[0]}")
        a("s_mov_b64 exec, -1")
    stamp(a, 5)
    sync(1)
    stamp(a, 6)
    a(f"s_mov_b32 s{sIT}, 0")
    a.label("L_k2_cloop")
    for st in range(4):
        f = FR + 16 * (st & 1)
        bo = (st >> 1) * 80 + (st & 1) * 32
        a(f"ds_read2_b32 {vr(f,2)}, v{vAL} offset0:{8*st} offset1:{8*st+1}")
        a(f"ds_read2_b32 {vr(f+2,2)}, v{vAL} offset0:{8*st+2} offset1:{8*st+3}")
        a(f"ds_read_b128 {vr(f+12,4)}, v{vB1} offset:{bo}")
        a("s_waitcnt lgkmcnt(0)")
        a(f"{MF} {vr(Y1,16)}, {vr(f,4)}, {vr(f+12,4)}, {vr(Y1,16)}")
        a(f"ds_read_b128 {vr(f+8,4)}, v{vB0} offset:{bo}")
        a("s_waitcnt lgkmcnt(0)")
        a(f"{MF} {vr(Y0,16)}, {vr(f,4)}, {vr(f+8,4)}, {vr(Y0,16)}")
        a(f"ds_read2_b32 {vr(f+4,2)}, v{vAH} offset0:{8*st} offset1:{8*st+1}")
        a(f"ds_read2_b32 {vr(f+6,2)}, v{vAH} offset0:{8*st+2} offset1:{8*st+3}")
        if st == 3:
            a(f"v_add_u32 v{vAL}, 128, v{vAL}")
            a(f"v_add_u32 v{vAH}, 128, v{vAH}")
            a(f"v_add_u32 v{vB1}, 160, v{vB1}")
            a(f"v_add_u32 v{vB0}, 160, v{vB0}")
            a(f"v_min_u32 v{vB0}, s{sE}, v{vB0}")
            a(f"s_add_u32 s{sIT}, s{sIT}, 1")
            a(f"s_cmp_lt_u32 s{sIT}, 8")
        a("s_waitcnt lgkmcnt(0)")
        a(f"{MF} {vr(Y1,16)}, {vr(f+4,4)}, {vr(f+8,4)}, {vr(Y1,16)}")
    a("s_cbranch_scc1 L_k2_cloop")
    stamp(a, 7)
    sync(2)
    stamp(a, 8)
    a(f"v_lshlrev_b32 v{vG}, 1, v{vG}")
    a(f"s_lshl_b32 s{sA}, s{sA}, 1")
    a(f"s_add_u32 s{sA}, s{sA}, s{sT}")
    a(f"s_add_u32 s{sB}, s{sA}, 4096")
    a(f"s_add_u32 s{sC}, s{sA}, 16384")
    a(f"s_add_u32 s{sE}, s{sA}, {16384+4096}")
    for q in range(1, 4):
        a(f"s_cmp_eq_u32 s{sQ}, {q}")
        a(f"s_cbranch_scc1 L_k2_x{q}")
    def slot(dst, src): return (3 * dst + (src if src < dst else src - 1)) * 2048
    X = 44
    for q in range(4):
        if q: a.label(f"L_k2_x{q}")
        for qq in range(4):
            if qq == q: continue
            for hh in range(2):
                a(f"ds_write_b128 v{vXW}, {vr(Y0+8*qq+4*hh,4)} offset:{slot(qq,q)+1024*hh}")
        stamp(a, 9)
        sync(3)
        stamp(a, 10)
        R = {}
        for src in range(4):
            if src == q: R[src] = Y0 + 8 * q; continue
            R[src] = X + 8 * src
            for hh in range(2):
                a(f"ds_read_b128 {vr(X+8*src+4*hh,4)}, v{vXW} offset:{slot(q,src)+1024*hh}")
        a("s_waitcnt lgkmcnt(0)")
        so = [sA, sA, sB, sB, sC, sC, sE, sE]
        for rr in range(8):
            a(f"v_add_f32 v{R[0]+rr}, v{R[0]+rr}, v{R[1]+rr}")
            a(f"v_add_f32 v{R[2]+rr}, v{R[2]+rr}, v{R[3]+rr}")
            a(f"v_cvt_pk_bf16_f32 v{U+rr}, v{R[0]+rr}, v{R[2]+rr}")
            a(f"buffer_store_dword v{U+rr}, v{vG}, s[{SO}:{SO+3}], s{so[rr]} offen offset:{2048*(rr&1)}")
        if q < 3: a("s_branch L_k2_cend")
    a.label("L_k2_cend")
    stamp(a, 11)
    stamp_out(a, 1, SWS, sWV)
    a.label("L_k2_end")
    a("s_endpgm")
    return a.l, 112

K3_LDS = 65536 + 16384
def gen_k3():
    a = Asm()
    SWS, SW, SO = 4, 8, 12
    sWV, sTT, sCB, sT, sT2, sTS, sKH, sOO, sWO, sM0 = 16, 17, 18, 19, 20, 21, 22, 23, 24, 25
    a("s_cmp_ge_u32 s2, 256")
    a("s_cbranch_scc1 L_k3_end")
    stamp_init(a)
    srd(a, SWS, 112, 0); srd(a, SW, 88, 0); srd(a, SO, 96, 0)
    srd_fin(a, SWS, wsz()); srd_fin(a, SW, 512 * 512 * 2); srd_fin(a, SO, 2048 * 1024 * 2)
    vL, vL16, vW, vT, vT2, vA0, vA1, vXW, vXR, vST = 1, 2, 3, 4, 5, 6, 7, 8, 9, 10
    D = [12, 28]; OFR = 44; WF = 108
    a(f"v_and_b32 v{vL}, 63, v0")
    a(f"v_lshrrev_b32 v{vT}, 6, v0")
    a(f"v_readfirstlane_b32 s{sWV}, v{vT}")
    a(f"v_lshlrev_b32 v{vL16}, 4, v{vL}")
    a(f"s_and_b32 s{sT}, s2, 7")
    a(f"s_lshr_b32 s{sT2}, s2, 3")
    a(f"s_lshl_b32 s{sTT}, s{sT}, 2")
    a(f"s_and_b32 s{sT}, s{sT2}, 3")
    a(f"s_add_u32 s{sTT}, s{sTT}, s{sT}")
    a(f"s_lshr_b32 s{sCB}, s{sT2}, 2")
    a(f"s_and_b32 s{sTS}, s{sWV}, 1")
    a(f"s_lshr_b32 s{sKH}, s{sWV}, 1")
    a(f"s_lshl_b32 s{sTT}, s{sTT}, 1")
    a(f"s_add_u32 s{sTT}, s{sTT}, s{sTS}")
    a(f"s_lshl_b32 s{sOO}, s{sTT}, 15")
    a(f"s_lshl_b32 s{sT}, s{sKH}, 14")
    a(f"s_add_u32 s{sOO}, s{sOO}, s{sT}")
    a(f"s_add_u32 s{sOO}, s{sOO}, {OF}")
    a(f"v_bfe_u32 v{vT}, v{vL}, 4, 1")
    a(f"v_lshlrev_b32 v{vT}, 2, v{vT}")
    a(f"v_and_b32 v{vT2}, 7, v{vL}")
    a(f"v_xor_b32 v{vT}, v{vT}, v{vT2}")
    a(f"v_lshlrev_b32 v{vT}, 4, v{vT}")
    a(f"v_lshrrev_b32 v{vT2}, 3, v{vL}")
    a(f"v_lshl_add_u32 v{vW}, v{vT2}, 10, v{vT}")
    a(f"s_lshl_b32 s{sT}, s{sKH}, 8")
    a(f"s_lshl_b32 s{sT2}, s{sTS}, 5")
    a(f"s_add_u32 s{sT}, s{sT}, s{sT2}")
    a(f"s_lshl_b32 s{sM0}, s{sT}, 7")
    a(f"s_lshl_b32 s{sWO}, s{sT}, 10")
    a(f"s_lshl_b32 s{sT2}, s{sCB}, 7")
    a(f"s_add_u32 s{sWO}, s{sWO}, s{sT2}")
    stamp(a, 8)
    a("s_waitcnt lgkmcnt(0)")
    stamp(a, 9)
    for g in range(4):
        if g: stamp(a, 9 + g)
        a(f"s_add_u32 s26, s{sCB}, {g}")
        a(f"s_and_b32 s26, s26, 3")
        a(f"s_lshl_b32 s27, s26, 12")
        a(f"s_add_u32 s{sT}, s{sOO}, s27")
        for q in range(4):
            a(f"buffer_load_dwordx4 {vr(OFR+16*g+4*q,4)}, v{vL16}, s[{SWS}:{SWS+3}], s{sT} offen offset:{1024*q}")
        a(f"s_add_u32 m0, s{sM0}, {g*8192}")
        a(f"s_lshl_b32 s27, s26, 16")
        a(f"s_add_u32 s27, s27, s{sWO}")
        for q in range(4):
            a(f"s_add_u32 s{sT}, s27, {q*7168}")
            a(f"buffer_load_dwordx4 v{vW}, s[{SW}:{SW+3}], s{sT} offen offset:{1024*q} lds")
        for q in range(0):
            a(f"buffer_load_dwordx4 {vr(OFR+16*g+4*q,4)}, v{vL16}, s[{SWS}:{SWS+3}], s{sT} offen offset:{1024*q}")
    stamp(a, 13)
    a(f"v_lshrrev_b32 v{vT}, 5, v{vL}")
    a(f"v_lshlrev_b32 v{vT}, 10, v{vT}")
    a(f"v_bfe_u32 v{vT2}, v{vL}, 2, 2")
    a(f"v_lshl_add_u32 v{vT}, v{vT2}, 7, v{vT}")
    a(f"v_bfe_u32 v{vT2}, v{vL}, 3, 1")
    a(f"v_lshl_add_u32 v{vT}, v{vT2}, 6, v{vT}")
    a(f"v_bfe_u32 v{vT2}, v{vL}, 4, 1")
    a(f"v_lshl_add_u32 v{vT}, v{vT2}, 5, v{vT}")
    a(f"v_and_b32 v{vT2}, 1, v{vL}")
    a(f"v_lshl_add_u32 v{vT}, v{vT2}, 4, v{vT}")
    a(f"v_bfe_u32 v{vT2}, v{vL}, 1, 1")
    a(f"v_lshl_add_u32 v{vT}, v{vT2}, 3, v{vT}")
    a(f"s_mul_i32 s{sT}, s{sKH}, {32768+64}")
    a(f"v_xor_b32 v{vA0}, s{sT}, v{vT}")
    a(f"v_xor_b32 v{vA1}, 64, v{vA0}")
    a(f"s_lshl_b32 s{sT}, s{sWV}, 12")
    a(f"s_add_u32 s{sT}, s{sT}, 65536")
    a(f"v_add_u32 v{vXW}, s{sT}, v{vL16}")
    a(f"s_xor_b32 s{sT}, s{sT}, 8192")
    a(f"v_add_u32 v{vXR}, s{sT}, v{vL16}")
    a(f"v_and_b32 v{vT}, 31, v{vL}")
    a(f"v_lshlrev_b32 v{vT}, 11, v{vT}")
    a(f"v_lshrrev_b32 v{vT2}, 5, v{vL}")
    a(f"v_lshl_add_u32 v{vST}, v{vT2}, 4, v{vT}")
    a(f"s_lshl_b32 s{sOO}, s{sTT}, 16")
    a(f"s_lshl_b32 s{sT}, s{sCB}, 7")
    a(f"s_add_u32 s{sOO}, s{sOO}, s{sT}")
    a(f"s_lshl_b32 s{sT}, s{sKH}, 6")
    a(f"s_add_u32 s{sOO}, s{sOO}, s{sT}")
    def reads(g):
        o = []; b = WF + 32 * (g & 1)
        for ks in range(4):
            for ct, va in enumerate((vA0, vA1)):
                for h in range(2):
                    o.append(f"ds_read_b64_tr_b16 {vr(b+8*ks+4*ct+2*h,2)}, v{va} offset:{g*8192+ks*2048+h*512}")
        return o
    def mfmas(g):
        o = []; b = WF + 32 * (g & 1)
        for ks in range(4):
            for ct in (1, 0):
                cc = "0" if (g == 0 and ks == 0) else vr(D[ct], 16)
                o.append(f"{MF} {vr(D[ct],16)}, {vr(b+8*ks+4*ct,4)}, {vr(OFR+16*g+4*ks,4)}, {cc}")
        return o
    stamp(a, 1)
    a("s_waitcnt vmcnt(24)")
    a("s_barrier")
    stamp(a, 2)
    for x in reads(0): a(x)
    for g in range(4):
        if g < 3:
            a(f"s_waitcnt lgkmcnt(0) vmcnt({8*(2-g)})")
            a("s_barrier")
            stamp(a, 3 + g)
            for x in merge(mfmas(g), reads(g + 1)): a(x)
        else:
            a("s_waitcnt lgkmcnt(0)")
            for x in mfmas(g): a(x)
    for k in range(4):
        a(f"ds_write_b128 v{vXW}, {vr(D[1]+4*k,4)} offset:{1024*k}")
    a("s_waitcnt lgkmcnt(0)")
    a("s_barrier")
    stamp(a, 6)
    for k in range(4):
        a(f"ds_read_b128 {vr(D[1]+4*k,4)}, v{vXR} offset:{1024*k}")
    a("s_waitcnt lgkmcnt(0)")
    for k in range(8):
        a(f"v_pk_add_f32 {vr(D[0]+2*k,2)}, {vr(D[0]+2*k,2)}, {vr(D[1]+2*k,2)}")
    for k in range(8):
        a(f"v_cvt_pk_bf16_f32 v{OFR+k}, v{D[0]+2*k}, v{D[0]+2*k+1}")
    a(f"buffer_store_dwordx4 {vr(OFR,4)}, v{vST}, s[{SO}:{SO+3}], s{sOO} offen offset:1024 {OPT['st_k3']}")
    a(f"buffer_store_dwordx4 {vr(OFR+4,4)}, v{vST}, s[{SO}:{SO+3}], s{sOO} offen offset:1056 {OPT['st_k3']}")
    stamp(a, 7)
    stamp_out(a, 2, SWS, sWV)
    a.label("L_k3_end")
    a("s_endpgm")
    return a.l, 172

def build(path, extra_empty=0):
    ref = open(f"cdna_kernels/{NAME}.s.ref").read().split("\n")
    head = [l for l in ref if l.startswith(";") and "@launch" not in l]
    ks = [("qkv_kgen_kernel", gen_k1, 512, K1_LDS), ("attn_conv_kernel", gen_k2, 768, K2_LDS), (f"{NAME}_kernel", gen_k3, 256, K3_LDS)]
    out = list(head)
    for n, g, blk, lds in ks:
        out.append(f"; @launch kernel={n} grid=(256,1,1) block=({blk},1,1) lds={lds}")
    for i in range(extra_empty):
        out.append(f"; @launch kernel=empty_kernel grid=(256,1,1) block=(256,1,1) lds=0")
    out += ['.amdgcn_target "amdgcn-amd-amdhsa--gfx950"', ".text"]
    kds = []
    if extra_empty:
        ks = ks + [("empty_kernel", lambda: (["s_endpgm"], 8), 256, 0)]
    for n, g, blk, lds in ks:
        lines, nv = g()
        lines = pad(lines)
        out += [f".globl {n}", ".p2align 8", f".type {n},@function", f"{n}:"]
        out += [l if l.endswith(":") else "    " + l for l in lines]
        nv4 = (nv + 7) // 8 * 8
        kds += [".p2align 6", f".amdhsa_kernel {n}", f"  .amdhsa_next_free_vgpr {nv4}", "  .amdhsa_next_free_sgpr 102",
                f"  .amdhsa_accum_offset {nv4}", "  .amdhsa_group_segment_fixed_size 0", "  .amdhsa_kernarg_size 120",
                "  .amdhsa_user_sgpr_count 2", "  .amdhsa_user_sgpr_kernarg_segment_ptr 1",
                "  .amdhsa_system_sgpr_workgroup_id_x 1", ".end_amdhsa_kernel"]
    out += ['.section .rodata,"a"'] + kds
    open(path, "w").write("\n".join(out) + "\n")

if __name__ == "__main__":
    build(f"cdna_kernels/{NAME}.s")
```

```python
import sys, struct, math
sys.path.insert(0, "gen")
from asmlib import *

NAME = "concat_heads__ssm_conv_s4__mha_block__prompt"
QF = 0x000000; KV = 0x200000; OF = 0x600000; KC = 0x800000; WS_SIZE = 0xA00000
PROF = False; PROF_OFF = 0xA00000
LOG2E = 1.4426950408889634
def f32(x): return struct.unpack("<I", struct.pack("<f", x))[0]
def hx(x): return "0x%08x" % (x & 0xffffffff)
def swap23(m): return (m & ~12) | ((m & 4) << 1) | ((m & 8) >> 1)
MF = "v_mfma_f32_32x32x16_bf16"
OPT = dict(st_k1="", st_k2="", st_k3="")

def srd(a, base, koff, size):
    a(f"s_load_dwordx2 s[{base}:{base+1}], s[0:1], {koff}")
def srd_fin(a, base, size):
    a(f"s_mov_b32 s{base+2}, {hx(size)}")
    a(f"s_mov_b32 s{base+3}, 0x00020000")

def wsz(): return WS_SIZE + (0x100000 if PROF else 0)
def stamp(a, i):
    if PROF: a(f"s_memrealtime s[{70+2*i}:{71+2*i}]")
def stampc(a, i):
    if PROF: a(f"s_memtime s[{70+2*i}:{71+2*i}]")
def stamp_init(a):
    if PROF:
        for i in range(70, 100): a(f"s_mov_b32 s{i}, 0")
        stamp(a, 0)
        a("s_memtime s[100:101]")
def stamp_out(a, kidx, sws, swv, wait=True):
    if not PROF: return
    if wait: a("s_waitcnt vmcnt(0)")
    stamp(a, 14)
    a("s_memtime s[68:69]")
    a("s_waitcnt lgkmcnt(0)")
    a("s_sub_u32 s69, s68, s100")
    a(f"s_lshl_b32 s68, s2, 4")
    a(f"s_add_u32 s68, s68, s{swv}")
    a(f"s_lshl_b32 s68, s68, 6")
    a(f"s_add_u32 s68, s68, {PROF_OFF + kidx*0x40000}")
    for i in range(15): a(f"v_mov_b32 v{4+i}, s{70+2*i}")
    a("v_mov_b32 v19, s69")
    for k in range(4): a(f"buffer_store_dwordx4 v[{4+4*k}:{7+4*k}], off, s[{sws}:{sws+3}], s68 offset:{16*k}")

def cmul(dst, x, y, t):
    return [f"v_pk_mul_f32 {vr(t,2)}, {vr(x,2)}, {vr(y,2)} op_sel:[0,0] op_sel_hi:[0,1]",
            f"v_pk_fma_f32 {vr(dst,2)}, {vr(x,2)}, {vr(y,2)}, {vr(t,2)} op_sel:[1,1,0] op_sel_hi:[1,0,1] neg_lo:[0,1,0]"]

K1_SLOT = 32768; K1_KTW = 60 * 272; K1_RB = 4 * K1_KTW; K1_LDS = K1_RB + 3 * K1_SLOT

def gen_k1():
    a = Asm()
    SWS = 12
    sWV, sTB, sHQ, sXO, sWO, sM0, sT, sT2 = 44, 45, 46, 47, 48, 49, 50, 51
    sC0 = 56
    vL = 1; vT0 = 7; vT1 = 23
    SX, SW = 4, 8
    DRY = OPT.get("k1dry", 1)
    def tbhq():
        a(f"s_bfe_u32 s{sTB}, s2, {1 | (2 << 16)}")
        a(f"s_lshl_b32 s{sTB}, s{sTB}, 3")
        a(f"s_bfe_u32 s{sT}, s2, {3 | (3 << 16)}")
        a(f"s_add_u32 s{sTB}, s{sTB}, s{sT}")
        a(f"s_and_b32 s{sHQ}, s2, 1")
        a(f"s_lshl_b32 s{sHQ}, s{sHQ}, 2")
        a(f"s_lshr_b32 s{sT2}, s2, 6")
        a(f"s_add_u32 s{sHQ}, s{sHQ}, s{sT2}")
    SP0, SLD, SDS = 16, 40, 4
    sD, sMH, sKT, sMASK, sTAB, sG = 52, 53, 54, 58, 60, 44
    sSL, sDL, sCN, sIT = 61, 62, 63, 3
    PA, PB, PC, PLD, PDS = 72, 74, 76, 78, 21
    a("s_cmp_ge_u32 s2, 256")
    a("s_cbranch_scc1 L_k1_end")
    a(f"v_lshrrev_b32 v7, 6, v0")
    a(f"v_and_b32 v1, 63, v0")
    a(f"v_readfirstlane_b32 s{sWV}, v7")
    sRL = 40
    if DRY:
        a(f"s_mov_b32 s{sIT}, 64")
        a(f"s_mov_b32 s{sCN}, 64")
    a(f"s_cmp_ge_u32 s{sWV}, 4")
    a("s_cbranch_scc1 L_k1_ld")
    a("s_setprio 3")
    a(f"s_load_dwordx16 s[{SP0}:{SP0+15}], s[0:1], 8")
    srd(a, SWS, 112, 0)
    stamp_init(a)
    SEGC = OPT.get("segc", []); SEGL = OPT.get("segl", [2, 3, 4, 6]); SEGS = sorted(SEGC + SEGL)
    TAILW = OPT.get("tailw", 1)
    def walk(segs):
        a("s_mov_b64 exec, 0")
        for p in range(3):
            a(f"s_cmp_eq_u32 s{sWV}, {p}")
            a(f"s_cbranch_scc1 L_k1_g{segs[p]}")
        a(f"s_branch L_k1_g{segs[3]}")
    if DRY and SEGC:
        walk(SEGC)
        a.label("L_k1_go")
        a("s_mov_b64 exec, -1")
    stamp(a, 1)
    for r in range(72, 80, 2): a(f"v_mov_b64 {vr(r,2)}, 0")
    a(f"v_mov_b32 v{PDS}, 0")
    a(f"s_lshl_b32 s{sT}, s2, 8")
    a(f"v_add_lshl_u32 v{vT0}, v0, s{sT}, 1")
    a(f"s_lshr_b32 s{sD}, s{sG}, 1")
    a(f"s_lshl1_add_u32 s{sD}, s2, s{sD}")
    a(f"v_lshlrev_b32_e64 v{vT1}, 1, s{sD}")
    a("s_waitcnt lgkmcnt(0)")
    a(f"global_load_short_d16_hi v{PLD}, v{vT1}, s[{SP0+12}:{SP0+13}]")
    for i in range(6):
        a(f"global_load_short_d16_hi v{72+i}, v{vT0}, s[{SP0+2*i}:{SP0+2*i+1}]")
    a(f"s_andn2_b32 exec_lo, 1, s{sG}")
    a(f"s_mov_b32 exec_hi, 0")
    a(f"global_load_short_d16_hi v{PDS}, v{vT1}, s[{SP0+14}:{SP0+15}]")
    a("s_mov_b64 exec, -1")
    a("s_setprio 0")
    LEND = OPT.get("k1lend", 0)
    if not LEND: a("s_branch L_k1_g0")
    i_ld0 = len(a.l)
    a.label("L_k1_ld")
    srd(a, SX, 72, 0); srd(a, SW, 80, 0)
    if PROF: srd(a, SWS, 112, 0)
    stamp_init(a)
    tbhq()
    srd_fin(a, SX, 2048 * 512 * 2); srd_fin(a, SW, 512 * 1536 * 2)
    if PROF: srd_fin(a, SWS, wsz())
    a(f"s_and_b32 s{sWV}, s{sWV}, 3")
    vX = 2; vW = 4
    a(f"s_setprio {OPT.get('k1lprio', 2)}")
    sC0R = 52
    a(f"s_lshl_b32 s{sT2}, s{sT2}, 1")
    a(f"s_add_u32 s{sC0R}, s{sT}, s{sT2}")
    a(f"v_lshrrev_b32 v{vT0}, 4, v{vL}")
    a(f"v_and_b32 v{vT1}, 7, v{vL}")
    a(f"v_xor_b32 v{vT0}, v{vT0}, v{vT1}")
    a(f"v_lshlrev_b32 v{vT0}, 4, v{vT0}")
    a(f"v_lshrrev_b32 v5, 3, v{vL}")
    a(f"v_lshl_add_u32 v{vX}, v5, 10, v{vT0}")
    a(f"v_xor_b32 v{vT0}, 64, v{vX}")
    a(f"v_add_u32 v{vX+1}, 7168, v{vT0}")
    a(f"v_bfe_u32 v{vT0}, v{vL}, 4, 1")
    a(f"v_lshlrev_b32 v{vT0}, 2, v{vT0}")
    a(f"v_xor_b32 v{vT0}, v{vT0}, v{vT1}")
    a(f"v_mul_u32_u24 v5, 3072, v5")
    a(f"v_lshl_add_u32 v{vW}, v{vT0}, 4, v5")
    a(f"s_lshl_b32 s{sXO}, s{sTB}, 2")
    a(f"s_add_u32 s{sXO}, s{sXO}, s{sWV}")
    a(f"s_lshl_b32 s{sXO}, s{sXO}, 14")
    a(f"s_mul_i32 s{sWO}, s{sWV}, {16*3072}")
    a(f"s_lshl_b32 s{sT}, s{sHQ}, 7")
    a(f"s_add_u32 s{sWO}, s{sWO}, s{sT}")
    a(f"s_lshl_b32 s{sM0}, s{sWV}, 13")
    a(f"s_add_u32 s{sM0}, s{sM0}, {K1_RB}")
    sN, sME = 53, 54
    a(f"s_add_u32 s{sME}, s{sM0}, {3*K1_SLOT}")
    a(f"s_mov_b32 s{sN}, 0")
    if DRY:
        walk(SEGL)
        a.label("L_k1_ld2")
        a("s_mov_b64 exec, -1")
    stamp(a, 10)
    a("s_waitcnt lgkmcnt(0)")
    stamp(a, 1)
    if PROF: a("s_mov_b32 s55, 0")
    a.label("L_k1_ll")
    a(f"s_and_b32 s{sT2}, s{sC0R}, 7")
    a(f"s_lshl_b32 s{sT}, s{sT2}, 7")
    a(f"s_add_u32 s{sT}, s{sT}, s{sXO}")
    a(f"s_mov_b32 m0, s{sM0}")
    a(f"s_mul_i32 s{sT2}, s{sT2}, {64*3072}")
    for q in range(2):
        a(f"buffer_load_dwordx4 v{vX+q}, s[{SX}:{SX+3}], s{sT} offen offset:{q*1024} lds")
    a(f"s_add_u32 m0, s{sM0}, 2048")
    a(f"s_add_u32 s{sT}, s{sT2}, s{sWO}")
    for st in range(3):
        a(f"buffer_load_dwordx4 v{vW}, s[{SW}:{SW+3}], s{sT} offen offset:{st*1024} lds")
    a(f"s_add_u32 m0, s{sM0}, 5120")
    a(f"s_add_u32 s{sT}, s{sT}, {8*3072}")
    for st in range(3):
        a(f"buffer_load_dwordx4 v{vW}, s[{SW}:{SW+3}], s{sT} offen offset:{st*1024} lds")
    a(f"s_add_u32 s{sC0R}, s{sC0R}, 1")
    a(f"s_add_u32 s{sM0}, s{sM0}, {K1_SLOT}")
    a(f"s_cmp_eq_u32 s{sM0}, s{sME}")
    a(f"s_cselect_b32 s{sT}, {3*K1_SLOT}, 0")
    a(f"s_sub_u32 s{sM0}, s{sM0}, s{sT}")
    a(f"s_add_u32 s{sN}, s{sN}, 1")
    B0AT = OPT.get("k1b0at", 2)
    NI = OPT.get("k1ni", 2)
    a(f"s_cmp_lg_u32 s{sN}, {B0AT}")
    a("s_cbranch_scc1 L_k1_l1")
    stamp(a, 12)
    a("s_barrier")
    a.label("L_k1_l1")
    a(f"s_cmp_lt_u32 s{sN}, {NI}")
    a("s_cbranch_scc1 L_k1_ll")
    if NI == 3:
        a(f"s_cmp_gt_u32 s{sN}, {NI}")
        a("s_cbranch_scc1 L_k1_l2")
        a("s_waitcnt vmcnt(16)")
        stamp(a, 13)
        a("s_barrier")
        a.label("L_k1_l2")
    if PROF:
        a("s_waitcnt lgkmcnt(0)")
        a("s_mov_b32 m0, s55")
        a("s_add_u32 s55, s55, 2")
        a("s_movreld_b32 s74, s66")
    a(f"s_cmp_lt_u32 s{sN}, 8")
    a("s_waitcnt vmcnt(8)")
    if PROF: a("s_memrealtime s[66:67]")
    a("s_barrier")
    a("s_cbranch_scc1 L_k1_ll")
    a("s_waitcnt vmcnt(0)")
    stamp(a, 11)
    a("s_barrier")
    if PROF: a(f"s_add_u32 s{sWV}, s{sWV}, 4")
    stamp_out(a, 0, SWS, sWV)
    a.label("L_k1_end")
    a("s_endpgm")
    ldcode = []
    if LEND:
        ldcode = a.l[i_ld0:]; del a.l[i_ld0:]
    def ret(n):
        o = [x for x in SEGS if x <= n]
        return None if not o else "L_k1_go" if o[-1] in SEGC else "L_k1_ld2"
    def cut(n):
        if DRY and n in SEGS:
            if ret(n-1): a(f"s_cbranch_execz {ret(n-1)}")
            a.label(f"L_k1_g{n}")
    def guard(lst, lab):
        if DRY: a(f"s_cbranch_execz {lab}")
        for x in lst: a(x)
        if DRY and lab not in ("L_k1_go", "L_k1_ld2"): a.label(lab)
    a.label("L_k1_g0")
    srd_fin(a, SWS, wsz())
    vXA, vWA, vKB, vKA, vST, vSV = 8, 12, 13, 14, 18, 19
    ACC = 24; BUF = [72, 88, 152, 168]; KD = 136
    a(f"s_and_b32 s{sMH}, s{sG}, 1")
    a(f"s_mul_i32 s{sKT}, s{sG}, {K1_KTW}")
    a(f"s_mov_b32 m0, s{sKT}")
    a(f"s_andn2_b32 s{sT}, s{sG}, 1")
    a(f"s_mul_i32 s{sKT}, s{sT}, {K1_KTW}")
    a(f"v_lshrrev_b32 v5, 5, v{vL}")
    a(f"v_lshl_add_u32 v6, v5, 4, s{sKT}")
    a(f"v_and_b32 v{vT0}, 31, v{vL}")
    a(f"v_mul_u32_u24 v{vT1}, 272, v{vT0}")
    a(f"v_add_u32 v{vKB}, v{vT1}, v6")
    RE, RG, R8, R4 = 32, 40, 48, 56
    def hrow(tile, m):
        c = swap23(m); al = c >> 3; i = c & 7; aa = 4 * tile + al
        if aa == 0: return RE + i
        if aa == 1: return [RG + 1, RG + 1, RG, R4 + 1, R4 + 1, R4 + 1, R8, R8 + 1][i]
        if aa in (2, 3): return [RG, RG, RG, R4, R4, R4, R8, R8][i] + aa
        return (R8 if i >= 5 else RG) + aa
    tab = {t: [sum((hrow(t, 8 * q + m) - 32) << (8 * m) for m in range(8)) for q in range(4)] for t in range(2)}
    kinds = {}
    for t in range(2):
        val = 0
        for m in range(32):
            r = hrow(t, m)
            val |= ((r - 32) >> 3) << (2 * m)
        kinds[t] = val
    a(f"s_cmp_eq_u32 s{sMH}, 1")
    for w in range(2):
        a(f"s_mov_b32 s{sTAB+w}, {hx(kinds[0] >> (32*w))}")
        a(f"s_cselect_b32 s{sTAB+w}, {hx(kinds[1] >> (32*w))}, s{sTAB+w}")
    lows = {}
    for t in range(2):
        lo = [0, 0]
        for m in range(32):
            lo[m >> 4] |= ((hrow(t, m) - 32) & 7) << (4 * (m & 15))
        lows[t] = lo
    sLW = 64
    for hi in range(2):
        for w in range(2):
            d = (sTAB + 2 + w) if hi == 0 else (sLW + w)
            a(f"s_mov_b32 s{d}, {hx(lows[0][hi] >> (32*w))}")
            a(f"s_cselect_b32 s{d}, {hx(lows[1][hi] >> (32*w))}, s{d}")
    a(f"s_cselect_b32 s{sMASK}, 0xaaaaaaaa, 0")
    a(f"s_mov_b32 s{sMASK+1}, s{sMASK}")
    a(f"v_and_b32 v{vT1}, 15, v{vL}")
    a(f"v_lshlrev_b32 v{vT1}, 2, v{vT1}")
    a(f"v_cmp_lt_u32 vcc, 15, v{vT0}")
    a(f"v_lshrrev_b64 v[64:65], v{vT1}, s[{sTAB+2}:{sTAB+3}]")
    a(f"v_lshrrev_b64 v[66:67], v{vT1}, s[{sLW}:{sLW+1}]")
    a(f"v_lshlrev_b32 v{vT0}, 1, v{vT0}")
    a(f"v_cndmask_b32 v64, v64, v66, vcc")
    a(f"v_lshrrev_b64 v[66:67], v{vT0}, s[{sTAB}:{sTAB+1}]")
    a(f"v_and_b32 v64, 7, v64")
    a(f"v_and_b32 v66, 3, v66")
    a(f"v_lshl_add_u32 v64, v66, 3, v64")
    a(f"v_mad_u32_u24 v{vKA}, v64, s{sC0}, v6") if False else None
    a(f"v_mul_u32_u24 v64, 272, v64")
    a(f"v_add3_u32 v{vKA}, v64, v6, s{sC0}") if False else None
    a(f"v_add_u32 v{vKA}, v64, v6")
    sKO = 55
    a(f"s_lshl_b32 s{sT}, s{sD}, 12")
    a(f"s_lshl_b32 s{sKO}, s{sMH}, 11")
    a(f"s_add_u32 s{sKO}, s{sKO}, s{sT}")
    a(f"s_add_u32 s{sKO}, s{sKO}, {KC}")
    sTS, sHP = sMH, 60
    a(f"s_lshr_b32 s{sHP}, s{sWV}, 1")
    a(f"v_and_b32 v{vT0}, 15, v{vL}")
    a(f"v_bfe_u32 v{vT1}, v{vL}, 1, 3")
    a(f"v_xor_b32 v{vT1}, v{vT1}, v5")
    a(f"v_lshlrev_b32 v{vT1}, 4, v{vT1}")
    a(f"v_lshl_add_u32 v{vT0}, v{vT0}, 7, v{vT1}")
    a(f"v_bfe_u32 v{vT1}, v{vL}, 4, 1")
    a(f"v_lshl_add_u32 v{vT0}, v{vT1}, 13, v{vT0}")
    a(f"s_lshl_b32 s{sC0}, s{sTS}, 14")
    a(f"s_add_u32 s{sC0}, s{sC0}, {K1_RB}")
    for s in range(1, 4):
        a(f"v_xor_b32 v{vXA+s}, {32*s}, v{vT0}")
    a(f"v_add_u32 v{vXA}, s{sC0}, v{vT0}")
    for s in range(1, 4):
        a(f"v_add_u32 v{vXA+s}, s{sC0}, v{vXA+s}")
    cut(1)
    a(f"v_mul_u32_u24 v{vT0}, 3072, v5")
    a(f"v_bfe_u32 v{vT1}, v{vL}, 2, 2")
    a(f"v_lshl_add_u32 v{vT0}, v{vT1}, 7, v{vT0}")
    a(f"v_bfe_u32 v{vT1}, v{vL}, 3, 1")
    a(f"v_xor_b32 v{vT1}, s{sHP}, v{vT1}")
    a(f"v_lshl_add_u32 v{vT0}, v{vT1}, 6, v{vT0}")
    a(f"v_bfe_u32 v{vT1}, v{vL}, 4, 1")
    a(f"v_lshl_add_u32 v{vT0}, v{vT1}, 5, v{vT0}")
    a(f"v_and_b32 v{vT1}, 1, v{vL}")
    a(f"v_lshl_add_u32 v{vT0}, v{vT1}, 4, v{vT0}")
    a(f"v_bfe_u32 v{vT1}, v{vL}, 1, 1")
    a(f"v_lshl_add_u32 v{vT0}, v{vT1}, 3, v{vT0}")
    a(f"v_add_u32 v{vWA}, {2048+K1_RB}, v{vT0}")
    a(f"v_lshlrev_b32 v{vST}, 4, v{vL}")
    a(f"v_bfe_u32 v{vT1}, v{vL}, 4, 1")
    a(f"v_lshlrev_b32 v{vT1}, 17, v{vT1}")
    a(f"v_lshl_add_u32 v{vT1}, v5, 9, v{vT1}")
    a(f"v_and_b32 v{vT0}, 15, v{vL}")
    a(f"v_lshl_add_u32 v{vSV}, v{vT0}, 4, v{vT1}")
    tbhq()
    a(f"s_lshl_b32 s{sT}, s{sHQ}, 1")
    a(f"s_add_u32 s{sT}, s{sT}, s{sHP}")
    a(f"s_lshl_b32 s{sT}, s{sT}, 17")
    a(f"s_lshl_b32 s{sT2}, s{sTB}, 1")
    a(f"s_add_u32 s{sT2}, s{sT2}, s{sTS}")
    a(f"s_lshl_b32 s{sT2}, s{sT2}, 10")
    a(f"s_add_u32 s{sXO}, s{sT}, s{sT2}")
    a(f"s_add_u32 s{sWO}, s{sXO}, 65536")
    a(f"s_lshl_b32 s{sT}, s{sXO}, 1")
    a(f"s_add_u32 s{sT}, s{sT}, {KV}")
    a(f"s_add_u32 s{sT2}, s{sT}, 131072")
    for r in list(range(ACC, ACC + 48, 2)) + list(range(KD, BUF[3] + 16, 2)):
        a(f"v_mov_b64 {vr(r,2)}, 0")
    a(f"s_mov_b32 s{sSL}, 0")
    a(f"s_mov_b32 s{sCN}, 0")
    a(f"s_mov_b32 s{sIT}, 0")
    a(f"s_mov_b32 s{sKT}, {K1_SLOT}")
    cut(2)
    DT, Z, E1, E4, E8, E64, G1 = 79, 80, 84, 86, 88, 90, 92
    CA = [94, 96, 98, 100]; CE, CG, P8, P4 = 102, 104, 106, 108
    TT = [110, 112, 114, 116, 118, 120, 122, 124]
    CV = list(range(126, 134))
    l2e_hi = struct.unpack("<f", struct.pack("<f", LOG2E))[0]
    a(f"s_mov_b32 s{sC0}, {hx(f32(LOG2E))}")
    a(f"s_mov_b32 s{sC0+1}, {hx(f32(LOG2E - l2e_hi))}")
    a(f"v_mov_b32 v{CE}, 1.0")
    a(f"v_mov_b32 v{CE+1}, 0")
    a(f"v_mov_b32 v{CG}, 1.0")
    a(f"v_mov_b32 v{CG+1}, 0")
    stamp(a, 2)
    a("s_waitcnt vmcnt(1)")
    stamp(a, 3)
    m = []
    m.append(f"v_mul_f32 v120, s{sC0}, v{PLD}")
    m.append(f"v_fma_f32 v121, v{PLD}, s{sC0}, -v120")
    m.append(f"v_exp_f32 v122, v120")
    m.append(f"v_fma_f32 v121, v{PLD}, s{sC0+1}, v121")
    m.append(f"v_mul_f32 v121, {hx(f32(math.log(2.0)))}, v121")
    m.append(f"v_fma_f32 v122, v122, v121, v122")
    m.append(f"v_cvt_pk_bf16_f32 v122, v122, v122")
    m.append(f"v_lshlrev_b32 v{DT}, 16, v122")
    m.append(f"v_mul_f32 v{Z}, v{DT}, v{PA}")
    m.append(f"v_mul_f32 v{Z+1}, v{DT}, v{PA+1}")
    m.append(f"v_mul_f32 v{PB}, v{DT}, v{PB}")
    m.append(f"v_mul_f32 v{PB+1}, v{DT}, v{PB+1}")
    m.append(f"v_mul_f32 v{Z}, s{sC0}, v{Z}")
    m.append(f"v_mul_f32 v{Z+1}, {hx(f32(1.0/(2*math.pi)))}, v{Z+1}")
    m += cmul(CA[0], PC, PB, TT[6])
    def direct(dst, lg, t):
        o = []
        if lg == 0:
            o.append(f"v_exp_f32 v{t}, v{Z}")
            o.append(f"v_fract_f32 v{t+1}, v{Z+1}")
        else:
            o.append(f"v_ldexp_f32 v{t}, v{Z}, {lg}")
            o.append(f"v_ldexp_f32 v{t+1}, v{Z+1}, {lg}")
            o.append(f"v_exp_f32 v{t}, v{t}")
            o.append(f"v_fract_f32 v{t+1}, v{t+1}")
        o.append(f"v_cos_f32 v{dst}, v{t+1}")
        o.append(f"v_sin_f32 v{dst+1}, v{t+1}")
        o.append(f"v_pk_mul_f32 {vr(dst,2)}, {vr(dst,2)}, {vr(t,2)} op_sel:[0,0] op_sel_hi:[1,0]")
        return o
    E128 = P4
    m += merge(direct(E64, 6, TT[0]), direct(E128, 7, TT[1]), direct(E8, 3, TT[2]), direct(G1, 8, TT[3]),
               direct(E1, 0, TT[4]), direct(E4, 2, TT[5]))
    m += merge(cmul(CA[1], CA[0], E64, TT[0]), cmul(CA[2], CA[0], E128, TT[1]))
    m += cmul(CA[3], CA[2], E64, TT[0])
    for x in m: a(x)
    def put(row, src, neg, r):
        return [f"v_cvt_pk_bf16_f32 v{r}, v{src}, {'-' if neg else ''}v{src+1}", f"ds_write_addtid_b32 v{r} offset:{row*272}"]
    cut(3)
    a.label("L_k1_m")
    ch = [put(8 * c, CA[c], False, CV[c]) + cmul(CA[c], CA[c], E8, TT[c]) for c in range(4)]
    ch.append(put(RE, CE, True, CV[4]) + cmul(CE, CE, E1, TT[4]))
    ch.append(cmul(P8, CG, E8, TT[5]) + put(RG, CG, True, CV[5]) + put(R8, P8, True, CV[6]))
    a(f"s_cmp_gt_u32 s{sIT}, 3")
    a("s_cbranch_scc1 L_k1_m2")
    for x in cmul(P4, CG, E4, TT[6]) + put(R4, P4, True, CV[7]): a(x)
    a.label("L_k1_m2")
    body = merge(*ch) + cmul(CG, CG, G1, TT[7])
    for x in body[:-2]: a(x)
    a(f"s_add_u32 s{sIT}, s{sIT}, 1")
    a(body[-2])
    a("s_add_u32 m0, m0, 272")
    a(f"s_cmp_lt_u32 s{sIT}, 8")
    a(body[-1])
    a("s_cbranch_scc1 L_k1_m")
    a(f"s_sub_u32 m0, m0, {8*272}")
    E2 = CE
    for x in merge(cmul(E2, E1, E1, TT[0]), cmul(P4, G1, E4, TT[1])): a(x)
    for x in merge(cmul(P8, G1, E2, TT[0]) + put(RG, P8, True, CV[0]), cmul(CG, P4, E2, TT[1]) + put(R8, CG, True, CV[1])): a(x)
    a(f"s_mov_b32 s{sC0}, {hx(f32(0.25*LOG2E))}")
    a(f"s_mov_b32 s{sC0+1}, {hx(f32(0.25*LOG2E))}")
    stamp(a, 4)
    guard(["s_waitcnt vmcnt(0) lgkmcnt(0)", "s_barrier"], ret(3))
    if DRY: a.label("L_k1_g4")
    KFR = [72 + 8 * i for i in range(8)]
    def rk(n, nxt):
        t, ks = n & 1, n >> 1; r = KFR[n + 4 * nxt]
        return [f"ds_read_b128 {vr(r,4)}, v{vKA} offset:{32*272+t*K1_KTW+32*ks+64*nxt}",
                f"ds_read_b128 {vr(r+4,4)}, v{vKB} offset:{t*K1_KTW+32*ks+64*nxt}"]
    def mk_(n):
        r = KFR[n]
        return f"{MF} {vr(KD,16)}, {vr(r,4)}, {vr(r+4,4)}, {vr(KD,16)}"
    for n in range(4):
        for x in rk(n, 0): a(x)
    a.label("L_k1_p")
    for n in range(4):
        for x in rk(n, 1): a(x)
        a(f"s_waitcnt lgkmcnt(8)")
        a(mk_(n))
    a(f"v_add_u32 v{vKA}, 128, v{vKA}")
    a(f"v_add_u32 v{vKB}, 128, v{vKB}")
    a(f"s_add_u32 s{sIT}, s{sIT}, 1")
    a(f"s_cmp_lt_u32 s{sIT}, 10")
    for n in range(4):
        for x in rk(n, 0): a(x)
        a(f"s_waitcnt lgkmcnt(8)")
        a(mk_(4 + n))
    a("s_cbranch_scc1 L_k1_p")
    KO = 104
    kfin = [f"v_add_f32 v{KD}, v{KD}, v{PDS}",
            f"v_cndmask_b32 v{KD+4}, v{KD+4}, v{KD+5}, s[{sMASK}:{sMASK+1}]",
            f"v_cndmask_b32 v{KD+12}, v{KD+12}, v{KD+13}, s[{sMASK}:{sMASK+1}]"]
    kfin += [f"v_cvt_pk_bf16_f32 v{KO+k}, v{KD+2*k}, v{KD+2*k+1}" for k in range(8)]
    kst = [f"buffer_store_dwordx4 {vr(KO,4)}, v{vST}, s[{SWS}:{SWS+3}], s{sKO} offen {OPT.get('st_kc','')}",
           f"buffer_store_dwordx4 {vr(KO+4,4)}, v{vST}, s[{SWS}:{SWS+3}], s{sKO} offen offset:1024 {OPT.get('st_kc','')}"]
    cut(5)
    for x in kfin: a(x)
    if DRY: a(f"s_cbranch_execz {ret(5)}")
    for x in kst: a(x)
    if PROF:
        a("s_mov_b32 m0, 0")
        a("s_memrealtime s[66:67]")
    def rd(ks):
        b = BUF[ks]
        o = [f"ds_read_b128 {vr(b,4)}, v{vXA+ks}"]
        for st in range(3):
            for hh in range(2):
                o.append(f"ds_read_b64_tr_b16 {vr(b+4+4*st+2*hh,2)}, v{vWA} offset:{ks*8192+st*1024+hh*512}")
        return o
    upd = [f"s_add_u32 s{sSL}, s{sSL}, 1", f"s_cmp_eq_u32 s{sSL}, 3", f"s_cselect_b32 s{sSL}, 0, s{sSL}",
           f"s_cselect_b32 s{sDL}, {hx(-2*K1_SLOT)}, s{sKT}"]
    upd += [f"v_add_u32 v{r}, s{sDL}, v{r}" for r in range(vXA, vXA + 5)]
    upd += [f"s_add_u32 s{sCN}, s{sCN}, 1", f"s_cmp_lt_u32 s{sCN}, 8"]
    def mf(ks):
        b = BUF[ks]; o = []
        x = vr(b, 4)
        for st in range(3):
            w = vr(b + 4 + 4 * st, 4); d = vr(ACC + 16 * st, 16)
            o.append(f"{MF} {d}, {w}, {x}, {d}" if st < 2 else f"{MF} {d}, {x}, {w}, {d}")
        return o
    def gaps(ms, groups):
        for m_, g in zip(ms, groups):
            a(m_)
            for x in g: a(x)
    a.label("L_k1_loop")
    a("s_waitcnt lgkmcnt(0)")
    if PROF:
        a("s_movreld_b32 s80, s66")
        a("s_mov_b64 exec, -1")
        a("s_add_u32 m0, m0, 2")
    a("s_barrier")
    a.label("L_k1_g6")
    R = rd(0) + rd(1) + rd(2) + rd(3)
    for x in R[0:2]: a(x)
    gaps(mf(2), [R[2:5], R[5:8], R[8:11]])
    gaps(mf(3), [R[11:14], R[14:17], R[17:20]])
    a("s_waitcnt lgkmcnt(13)")
    gaps(mf(0), [R[20:23], R[23:26], R[26:28]])
    a("s_waitcnt lgkmcnt(14)")
    gaps(mf(1), [upd[:5] + (["s_memrealtime s[66:67]"] if PROF else []), upd[5:], []])
    a("s_cbranch_scc1 L_k1_loop")
    guard(["s_waitcnt lgkmcnt(0)"], "L_k1_t0" if TAILW else ret(6))
    if not TAILW: DRY = 0
    O = 72
    qfin = [f"v_pk_mul_f32 {vr(ACC+2*k,2)}, {vr(ACC+2*k,2)}, s[{sC0}:{sC0+1}]" for k in range(8)]
    qfin += [f"v_cvt_pk_bf16_f32 v{O+k}, v{ACC+2*k}, v{ACC+2*k+1}" for k in range(8)]
    qfin += [f"buffer_store_dwordx4 {vr(O,4)}, v{vST}, s[{SWS}:{SWS+3}], s{sXO} offen {OPT['st_k1']}",
             f"buffer_store_dwordx4 {vr(O+4,4)}, v{vST}, s[{SWS}:{SWS+3}], s{sWO} offen {OPT['st_k1']}"]
    kk = [f"v_cvt_pk_bf16_f32 v{O+8+k}, v{ACC+16+2*k}, v{ACC+16+2*k+1}" for k in range(8)]
    kk += [f"buffer_store_dwordx4 {vr(O+8,4)}, v{vST}, s[{SWS}:{SWS+3}], s{sT} offen {OPT['st_k1']}",
           f"buffer_store_dwordx4 {vr(O+12,4)}, v{vST}, s[{SWS}:{SWS+3}], s{sT2} offen {OPT['st_k1']}"]
    vv = [f"v_cvt_pk_bf16_f32 v{O+16+k}, v{ACC+32+2*k}, v{ACC+32+2*k+1}" for k in range(8)]
    vv += [f"buffer_store_dwordx4 {vr(O+16,4)}, v{vSV}, s[{SWS}:{SWS+3}], s{sT} offen offset:1024 {OPT['st_k1']}",
           f"buffer_store_dwordx4 {vr(O+20,4)}, v{vSV}, s[{SWS}:{SWS+3}], s{sT} offen offset:1280 {OPT['st_k1']}"]
    m2, m3 = mf(2), mf(3)
    for x in (m2[0], m3[0], m2[1], m3[1]): a(x)
    gaps([m2[2], m3[2]], [qfin[:6], qfin[6:-2]])
    guard(qfin[-2:], "L_k1_t1")
    for x in kk[:-2]: a(x)
    guard(kk[-2:], "L_k1_t2")
    for x in vv[:-2]: a(x)
    guard(vv[-2:], ret(7))
    stamp(a, 13)
    stamp_out(a, 0, SWS, sWV)
    a("s_endpgm")
    a.l += ldcode
    return a.l, 184

K2_LDS = 163840
CA0 = 131072; CH = 13600
EOFF = 64; OOFF = 64 + 4096 + 64; UOFF = OOFF + 4096
FLG = 163840 - 64
BAR_ITERS = dict()

def gen_k2():
    a = Asm()
    SWS, SU, SO, SWO = 4, 8, 12, 40
    sWV, sH, sQB, sT, sT2, sIT, sOFF, sPASS, sD0 = 16, 17, 18, 19, 20, 21, 22, 23, 24
    sVM = 26
    sA, sB, sC, sE = 32, 33, 34, 35
    a("s_cmp_ge_u32 s2, 256")
    a("s_cbranch_scc1 L_k2_end")
    srd(a, SWS, 112, 0); srd(a, SU, 0, 0); srd(a, SO, 96, 0); srd(a, SWO, 88, 0)
    stamp_init(a)
    vL = 1; vL16 = 2
    a(f"v_lshrrev_b32 v3, 6, v0")
    a(f"v_and_b32 v{vL}, 63, v0")
    a(f"v_readfirstlane_b32 s{sWV}, v3")
    a(f"v_lshlrev_b32 v{vL16}, 4, v{vL}")
    srd_fin(a, SWS, wsz())
    a(f"s_and_b32 s{sT}, s2, 7")
    a(f"s_lshr_b32 s{sT2}, s2, 3")
    a(f"s_lshl_b32 s{sH}, s{sT}, 2")
    a(f"s_and_b32 s{sQB}, s{sT2}, 3")
    a(f"s_add_u32 s{sH}, s{sH}, s{sQB}")
    a(f"s_lshr_b32 s{sQB}, s{sT2}, 2")
    a(f"s_lshl_b32 s{sA}, s{sH}, 17")
    a(f"s_add_u32 s{sA}, s{sA}, {KV}")
    a(f"s_cmp_ge_u32 s{sWV}, 8")
    a("s_cbranch_scc1 L_k2_conv")
    from attnloop import loop_body, align8, Q, NM, S, P, O, KF, VF, vA, vN, vT, vMK
    sSTEP, sEND, sMID, sFIN = 36, 37, 38, 39
    a(f"s_lshl_b32 s{sQB}, s{sQB}, 3")
    a(f"s_add_u32 s{sQB}, s{sQB}, s{sWV}")
    a(f"s_lshl_b32 s{sT}, s{sH}, 16")
    a(f"s_lshl_b32 s{sT2}, s{sQB}, 10")
    a(f"s_add_u32 s{sT}, s{sT}, s{sT2}")
    a(f"s_lshl_b32 s{sB}, s{sWV}, 13")
    a(f"s_add_u32 s{sC}, s{sA}, s{sB}")
    a(f"s_add_u32 s{sE}, s{sC}, 4096")
    a(f"s_mov_b32 m0, s{sB}")
    a("s_waitcnt lgkmcnt(0)")
    a(f"buffer_load_dwordx4 {vr(Q,4)}, v{vL16}, s[{SWS}:{SWS+3}], s{sT} offen")
    for k in range(4):
        a(f"buffer_load_dwordx4 v{vL16}, s[{SWS}:{SWS+3}], s{sC} offen offset:{1024*k} lds")
    a(f"s_add_u32 m0, s{sB}, 4096")
    for k in range(4):
        a(f"buffer_load_dwordx4 v{vL16}, s[{SWS}:{SWS+3}], s{sE} offen offset:{1024*k} lds")
    a(f"s_mov_b32 s{sVM}, 0x0000ffff")
    a(f"s_mov_b32 s{sVM+1}, 0x0000ffff")
    a(f"v_and_b32 v{vT}, 27, v{vL}")
    a(f"v_cmp_eq_u32 vcc, 16, v{vT}")
    a(f"v_mov_b32 v{vT}, 0x3f803f80")
    a(f"v_cndmask_b32 v{vT}, 0, v{vT}, vcc")
    for r in range(16): a(f"v_mov_b32 v{VF[0]+r}, v{vT}")
    a(f"v_mov_b32 v{vMK}, 0x1ffff")
    a(f"s_cmp_lt_u32 s{sWV}, 4")
    a(f"s_movk_i32 s{sSTEP}, 8192")
    a(f"s_cselect_b32 s{sSTEP}, s{sSTEP}, -8192")
    if OPT.get("prio", 6):
        a("s_cbranch_scc1 L_k2_old")
        a("s_setprio 1")
        a.label("L_k2_old")
    a(f"s_mul_i32 s{sMID}, s{sSTEP}, {2*(OPT.get('prio', 6) or 6)}")
    a(f"s_add_u32 s{sMID}, s{sMID}, s{sB}")
    a(f"s_lshl_b32 s{sFIN}, s{sSTEP}, 4")
    a(f"s_add_u32 s{sFIN}, s{sFIN}, s{sB}")
    X1 = f"s_mov_b64 exec, s[{sVM}:{sVM+1}]"; X2 = "s_mov_b64 exec, -1"
    SEQ = OPT.get("seq", "e e M2 s e e e e e e W X V V x e M1 K c c c c e e e e M3 e e e c c c c")
    def body(first):
        tag = "a" if first else "b"
        cc = "0" if first else vr(NM, 16)
        for r in range(16): a(f"v_mov_b32 v{O+r}, 0")
        for r in range(4, 8): a(f"v_mov_b32 v{P+r}, 0")
        a(f"v_add_u32 v{vA}, s{sB}, v{vL16}")
        a(f"s_mov_b32 s{sOFF}, s{sB}")
        if first:
            a(f"s_lshl_b32 s{sEND}, s{sSTEP}, 2")
            a(f"s_add_u32 s{sEND}, s{sEND}, s{sB}")
            a("s_mov_b64 vcc, 0")
            if PROF: a("s_mov_b32 m0, 0")
            stamp(a, 1)
            a("s_waitcnt vmcnt(4)")
            stamp(a, 3)
            stampc(a, 12)
        else:
            a(f"s_mov_b32 s{sEND}, s{sFIN}")
        a(f"ds_read_b128 {vr(KF[0],4)}, v{vA}")
        a(f"ds_read_b128 {vr(KF[1],4)}, v{vA} offset:2048")
        a(X1)
        a(f"ds_read_b128 {vr(VF[0],4)}, v{vA} offset:1024")
        a(f"ds_read_b128 {vr(VF[0]+4,4)}, v{vA} offset:1280")
        a(X2)
        a("s_waitcnt lgkmcnt(3)")
        a(f"{MF} {vr(S[0],16)}, {vr(KF[0],4)}, {vr(Q,4)}, {cc}")
        if first: a("s_waitcnt vmcnt(0)")
        a("s_waitcnt lgkmcnt(0)")
        a("s_nop 7")
        a("s_nop 3")
        a(".p2align 6")
        a.label(f"L_k2_loop{tag}")
        hooks = {7: [f"s_cmp_lg_u32 s{sOFF}, s{sEND}"]}
        if first: hooks[2] = ["s_cbranch_vccz L_k2_bar", "L_k2_barx:"]
        if first and PROF:
            hooks[0] = ["s_memtime s[64:65]", "s_memrealtime s[66:67]"]
            hooks[3] = ["s_movreld_b32 s48, s64", "s_movreld_b32 s49, s66", "s_add_u32 m0, m0, 2", "s_nop 0"]
        for x in align8(loop_body(SEQ, cc, sOFF, sSTEP, vL16, X1, X2, hooks)): a(x)
        a(f"s_cbranch_scc1 L_k2_loop{tag}")
        if first:
            a(f"s_cmp_lg_u32 s{sEND}, s{sFIN}")
            a(f"s_cbranch_scc1 L_k2_seg")
        a(f"{MF} {vr(O,16)}, {vr(VF[1]+4,4)}, {vr(P+4,4)}, {vr(O,16)}")
        a("s_waitcnt lgkmcnt(0)")
    body(True)
    stamp(a, 4)
    stampc(a, 13)
    a(f"s_mov_b32 s{sT}, {hx(f32(2.0**-40))}")
    a(f"s_mov_b32 s{sT2}, {hx(f32(2.0**40))}")
    a(f"v_mov_b32 v{vT}, v{O+8}")
    for r in range(8): a(f"v_fma_f32 v{vT}, v{O+r}, 0, v{vT}")
    a(f"v_cmp_nle_f32 vcc, s{sT}, v{vT}")
    a(f"v_cmp_nge_f32 s[28:29], s{sT2}, v{vT}")
    a("s_nop 3")
    a(f"s_or_b64 vcc, vcc, s[28:29]")
    a("s_cbranch_scc1 L_k2_slow")
    a.label("L_k2_fin")
    a(f"v_rcp_f32 v{vT}, v{O+8}")
    a(f"s_lshl_b32 s{sT}, s{sQB}, 5")
    a(f"s_add_u32 s{sT}, s{sT}, s{sH}")
    a(f"s_lshl_b32 s{sT}, s{sT}, 10")
    a(f"s_add_u32 s{sT}, s{sT}, {OF}")
    for r in range(8): a(f"v_mul_f32 v{O+r}, v{O+r}, v{vT}")
    for r in range(4): a(f"v_cvt_pk_bf16_f32 v{P+r}, v{O+2*r}, v{O+2*r+1}")
    a(f"buffer_store_dwordx4 {vr(P,4)}, v{vL16}, s[{SWS}:{SWS+3}], s{sT} offen {OPT['st_k2']}")
    stamp_out(a, 1, SWS, sWV)
    if PROF:
        a(f"s_add_u32 s68, s68, {2*0x40000}")
        for i in range(16): a(f"v_mov_b32 v{24+i}, s{48+i}")
        for k in range(4): a(f"buffer_store_dwordx4 v[{24+4*k}:{27+4*k}], off, s[{SWS}:{SWS+3}], s68 offset:{16*k}")
    a("s_endpgm")
    a.label("L_k2_bar")
    a("s_barrier")
    a("s_mov_b64 vcc, -1")
    a("s_branch L_k2_barx")
    a.label("L_k2_seg")
    a(f"s_cmp_eq_u32 s{sEND}, s{sMID}")
    a(f"s_cbranch_scc1 L_k2_seg2")
    a(f"s_mov_b32 s{sEND}, s{sMID}")
    a.label("L_k2_poll")
    a(f"v_mov_b32 v{vT}, {FLG+4}")
    a(f"ds_read_b32 v{vT}, v{vT}")
    a("s_waitcnt lgkmcnt(0)")
    a(f"v_readfirstlane_b32 s{sT}, v{vT}")
    a(f"s_cmp_lt_u32 s{sT}, 4")
    a("s_cbranch_scc1 L_k2_poll")
    stamp(a, 5)
    a("s_branch L_k2_loopa")
    a.label("L_k2_seg2")
    a("s_setprio 0")
    stamp(a, 6)
    a(f"s_mov_b32 s{sEND}, s{sFIN}")
    a("s_branch L_k2_loopa")
    a.label("L_k2_slow")
    a(f"v_mov_b32 v{vA}, v{vL16}")
    a(f"v_mov_b32 v{vT}, 0xff800000")
    a(f"s_mov_b32 s{sIT}, 0")
    a.label("L_k2_max")
    a(f"ds_read_b128 {vr(KF[0],4)}, v{vA}")
    a(f"v_add_u32 v{vA}, 2048, v{vA}")
    a("s_waitcnt lgkmcnt(0)")
    a(f"{MF} {vr(S[0],16)}, {vr(KF[0],4)}, {vr(Q,4)}, 0")
    a(f"s_add_u32 s{sIT}, s{sIT}, 1")
    for r in range(8): a(f"v_max3_f32 v{vT}, v{S[0]+2*r}, v{S[0]+2*r+1}, v{vT}")
    a(f"s_cmp_lt_u32 s{sIT}, 64")
    a("s_cbranch_scc1 L_k2_max")
    a(f"v_xor_b32 v{vA}, 32, v{vL}")
    a(f"v_lshlrev_b32 v{vA}, 2, v{vA}")
    a(f"ds_bpermute_b32 v{vN}, v{vA}, v{vT}")
    a("s_waitcnt lgkmcnt(0)")
    a(f"v_max_f32 v{vT}, v{vT}, v{vN}")
    for r in range(16): a(f"v_sub_f32 v{NM+r}, 0, v{vT}")
    a(X1)
    for r in range(4, 8): a(f"v_mov_b32 v{VF[1]+r}, 0")
    a(X2)
    body(False)
    a("s_nop 7")
    a("s_nop 3")
    a("s_branch L_k2_fin")
    a.label("L_k2_conv")
    sQ, sCC, sHW, sCB = 36, 37, 38, 39
    U = 4; Y0 = 12; Y1 = 28; FR = 44; vG = 76; vUW = 77; vZ = 78; vZA = 92; vFX = 80
    vAL, vAH, vB0, vB1, vJ, vHF, vT, vT2, vXW, vFL, vONE = 81, 82, 83, 84, 85, 86, 87, 88, 89, 90, 91
    a(f"s_setprio {OPT.get('cprio', 3)}")
    a(f"s_sub_u32 s{sQ}, s{sWV}, 8")
    sKB, sKG = 44, 45
    a(f"s_lshl_b32 s{sKB}, s{sQ}, 12")
    a(f"s_add_u32 s{sKB}, s{sKB}, 65536")
    a(f"s_mov_b32 s{sKG}, s{sA}")
    a(f"v_mov_b32 v{vZ}, 0")
    a(f"v_mov_b32 v{vZ+1}, 0")
    a(f"v_mov_b32 v{vFL}, {FLG}")
    a(f"v_mov_b32 v{vONE}, 1")
    a(f"ds_write_b64 v{vFL}, {vr(vZ,2)}")
    a("s_waitcnt lgkmcnt(0)")
    def kvdma(rnd):
        a(f"s_add_u32 m0, s{sKB}, {rnd*16384}")
        a(f"s_add_u32 s46, s{sKG}, m0")
        for k in range(4):
            a(f"buffer_load_dwordx4 v{vL16}, s[{SWS}:{SWS+3}], s46 offen offset:{1024*k} lds")
    NPRE = OPT.get("npre", 0)
    for rnd in range(NPRE): kvdma(rnd)
    if OPT.get("noconv"):
        a("s_barrier")
        for rnd in range(NPRE, 4): kvdma(rnd)
        a("s_waitcnt vmcnt(0)")
        a("s_mov_b64 exec, 1")
        a(f"ds_add_u32 v{vFL}, v{vONE} offset:4")
        a("s_endpgm")
    srd_fin(a, SU, 2048 * 512 * 2); srd_fin(a, SO, 2048 * 1024 * 2); srd_fin(a, SWO, 512 * 512 * 2)
    a(f"s_lshl_b32 s{sD0}, s{sT}, 5")
    a(f"s_add_u32 s{sD0}, s{sD0}, s{sT2}")
    a(f"s_lshl_b32 s{sPASS}, s{sT2}, 14")
    a(f"s_lshr_b32 s{sCC}, s{sQ}, 1")
    a(f"s_and_b32 s{sHW}, s{sQ}, 1")
    a(f"s_mul_i32 s{sCB}, s{sCC}, {CH}")
    a(f"s_add_u32 s{sCB}, s{sCB}, {CA0}")
    a(f"s_mul_i32 s{sE}, s{sHW}, {OOFF-EOFF}")
    a(f"s_add_u32 s{sE}, s{sE}, s{sCB}")
    a(f"s_add_u32 s{sE}, s{sE}, {EOFF}")
    a(f"s_lshl_b32 s{sT2}, s{sD0}, 1")
    a(f"s_add_u32 s{sT2}, s{sT2}, s{sCC}")
    a(f"s_lshl_b32 s{sT2}, s{sT2}, 12")
    a(f"s_add_u32 s{sT2}, s{sT2}, {KC}")
    a(f"s_lshl_b32 s{sIT}, s{sHW}, 1")
    a(f"s_sub_u32 s{sT2}, s{sT2}, s{sIT}")
    a(f"s_mov_b32 s47, s{sE}")
    a(f"s_mov_b32 s48, s{sT2}")
    a(f"v_and_b32 v{vJ}, 31, v{vL}")
    a(f"v_lshrrev_b32 v{vHF}, 5, v{vL}")
    a(f"s_lshl_b32 s{sT}, s{sD0}, 2")
    a(f"v_lshlrev_b32 v{vT}, 12, v{vHF}")
    a(f"v_lshl_add_u32 v{vG}, v{vJ}, 15, v{vT}")
    a(f"s_lshl_b32 s{sA}, s{sCC}, 20")
    a(f"s_lshl_b32 s{sB}, s{sHW}, 14")
    a(f"s_add_u32 s{sA}, s{sA}, s{sB}")
    a(f"s_add_u32 s{sB}, s{sA}, s{sT}")
    a(f"s_add_u32 s{sC}, s{sB}, 8192")
    a(f"s_mul_i32 s{sT2}, s{sHW}, 80")
    a(f"s_add_u32 s{sT2}, s{sT2}, s{sCB}")
    a(f"s_add_u32 s{sT2}, s{sT2}, {UOFF+64*80-64}")
    a(f"v_min_u32 v{vT}, 35, v{vL}")
    a(f"v_lshl_add_u32 v{vZA}, v{vT}, 2, s{sT2}")
    a(f"s_sub_u32 s{sT2}, s{sE}, 64")
    a(f"v_lshl_add_u32 v{vT2}, v{vL}, 2, s{sT2}")
    a(f"v_cmp_gt_u32 vcc, 16, v{vL}")
    a(f"v_cndmask_b32 v{vZA}, v{vZA}, v{vT2}, vcc")
    a(f"ds_write_b32 v{vZA}, v{vZ}")
    a(f"s_lshl_b32 s{sT2}, s{sHW}, 1")
    a(f"s_add_u32 s{sT2}, s{sT2}, s{sE}")
    a(f"s_sub_u32 s{sT2}, s{sT2}, 2")
    a(f"v_mov_b32 v{vFX}, s{sT2}")
    a(f"v_mul_u32_u24 v{vT}, 80, v{vJ}")
    a(f"v_lshl_add_u32 v{vT}, v{vHF}, 3, v{vT}")
    a(f"s_mul_i32 s{sE}, s{sCC}, {80*32}")
    a(f"s_lshl_b32 s{sT2}, s{sHW}, 5")
    a(f"s_add_u32 s{sE}, s{sE}, s{sT2}")
    a(f"s_sub_u32 s{sE}, {CA0+UOFF+80*63+62-22}, s{sE}")
    a(f"v_sub_u32 v{vUW}, s{sE}, v{vT}")
    stamp(a, 1)
    a("s_barrier")
    stamp(a, 2)
    for rnd in range(NPRE, 4): kvdma(rnd)
    a(f"s_mov_b32 m0, s47")
    for k in range(4):
        a(f"buffer_load_dwordx4 v{vL16}, s[{SWS}:{SWS+3}], s48 offen offset:{1024*k} lds")
    a("s_waitcnt vmcnt(4)")
    a("s_mov_b64 exec, 1")
    a(f"ds_add_u32 v{vFL}, v{vONE} offset:4")
    a("s_mov_b64 exec, -1")
    stamp(a, 3)
    for rr in range(8):
        a(f"buffer_load_dword v{U+rr}, v{vG}, s[{SU}:{SU+3}], s{sB if rr < 4 else sC} offen offset:{1024*(rr&3)}")
    a(f"v_and_b32 v{vT}, 1, v{vJ}")
    a(f"v_and_b32 v{vT2}, 30, v{vJ}")
    a(f"v_lshlrev_b32 v{vT2}, 1, v{vT2}")
    a(f"v_lshl_add_u32 v{vT2}, v{vHF}, 4, v{vT2}")
    a(f"v_mul_u32_u24 v{vT}, {OOFF-EOFF}, v{vT}")
    a(f"v_sub_u32 v{vT2}, v{vT2}, v{vT}")
    a(f"s_lshl_b32 s{sT2}, s{sHW}, 10")
    a(f"s_add_u32 s{sT2}, s{sT2}, s{sCB}")
    a(f"s_add_u32 s{sT2}, s{sT2}, {OOFF-60}")
    a(f"v_add_u32 v{vAL}, s{sT2}, v{vT2}")
    a(f"v_add_u32 v{vAH}, 2048, v{vAL}")
    a(f"v_mul_u32_u24 v{vT}, 80, v{vJ}")
    a(f"v_lshlrev_b32 v{vT2}, 4, v{vHF}")
    a(f"v_sub_u32 v{vT}, v{vT2}, v{vT}")
    a(f"s_mul_i32 s{sT2}, s{sHW}, {16*80}")
    a(f"s_add_u32 s{sT2}, s{sT2}, s{sCB}")
    a(f"s_add_u32 s{sT2}, s{sT2}, {UOFF+80*31}")
    a(f"v_add_u32 v{vB1}, s{sT2}, v{vT}")
    a(f"s_add_u32 s{sE}, s{sCB}, {UOFF+64*80}")
    a(f"v_add_u32 v{vB0}, {32*80}, v{vB1}")
    a(f"v_min_u32 v{vB0}, s{sE}, v{vB0}")
    a(f"v_add_u32 v{vXW}, {CA0}, v{vL16}")
    for r in range(32): a(f"v_mov_b32 v{Y0+r}, 0")
    stamp(a, 4)
    a("s_waitcnt vmcnt(8)")
    a(f"ds_write_b16 v{vFX}, v{vZ}")
    for rr in range(8):
        a(f"s_waitcnt vmcnt({7-rr})")
        off = 2 * (11 - ((rr & 3) + 8 * (rr >> 2)))
        a(f"ds_write_b16 v{vUW}, v{U+rr} offset:{off}")
        a(f"ds_write_b16_d16_hi v{vUW}, v{U+rr} offset:{off+CH}")
    a(f"s_lshl_b32 s{sT2}, s{sQ}, 12")
    a(f"s_add_u32 s{sT2}, s{sT2}, s{sPASS}")
    if not OPT.get("nopf"):
        for k in range(4):
            a(f"buffer_load_dwordx4 {vr(96+4*k,4)}, v{vL16}, s[{SWO}:{SWO+3}], s{sT2} offen offset:{1024*k}")
    nsync = [0]
    def sync(n):
        nsync[0] += 1
        a("s_waitcnt lgkmcnt(0)")
        a("s_mov_b64 exec, 1")
        a(f"ds_add_u32 v{vFL}, v{vONE}")
        a.label(f"L_k2_spin{nsync[0]}")
        a(f"ds_read_b32 v{vT}, v{vFL}")
        a("s_waitcnt lgkmcnt(0)")
        a(f"v_readfirstlane_b32 s{sT2}, v{vT}")
        a(f"s_cmp_lt_u32 s{sT2}, {4*n}")
        a(f"s_cbranch_scc1 L_k2_spin{nsync[0]}")
        a("s_mov_b64 exec, -1")
    stamp(a, 5)
    sync(1)
    stamp(a, 6)
    a(f"s_mov_b32 s{sIT}, 0")
    a.label("L_k2_cloop")
    for st in range(4):
        f = FR + 16 * (st & 1)
        bo = (st >> 1) * 80 + (st & 1) * 32
        a(f"ds_read2_b32 {vr(f,2)}, v{vAL} offset0:{8*st} offset1:{8*st+1}")
        a(f"ds_read2_b32 {vr(f+2,2)}, v{vAL} offset0:{8*st+2} offset1:{8*st+3}")
        a(f"ds_read_b128 {vr(f+12,4)}, v{vB1} offset:{bo}")
        a("s_waitcnt lgkmcnt(0)")
        a(f"{MF} {vr(Y1,16)}, {vr(f,4)}, {vr(f+12,4)}, {vr(Y1,16)}")
        a(f"ds_read_b128 {vr(f+8,4)}, v{vB0} offset:{bo}")
        a("s_waitcnt lgkmcnt(0)")
        a(f"{MF} {vr(Y0,16)}, {vr(f,4)}, {vr(f+8,4)}, {vr(Y0,16)}")
        a(f"ds_read2_b32 {vr(f+4,2)}, v{vAH} offset0:{8*st} offset1:{8*st+1}")
        a(f"ds_read2_b32 {vr(f+6,2)}, v{vAH} offset0:{8*st+2} offset1:{8*st+3}")
        if st == 3:
            a(f"v_add_u32 v{vAL}, 128, v{vAL}")
            a(f"v_add_u32 v{vAH}, 128, v{vAH}")
            a(f"v_add_u32 v{vB1}, 160, v{vB1}")
            a(f"v_add_u32 v{vB0}, 160, v{vB0}")
            a(f"v_min_u32 v{vB0}, s{sE}, v{vB0}")
            a(f"s_add_u32 s{sIT}, s{sIT}, 1")
            a(f"s_cmp_lt_u32 s{sIT}, 8")
        a("s_waitcnt lgkmcnt(0)")
        a(f"{MF} {vr(Y1,16)}, {vr(f+4,4)}, {vr(f+8,4)}, {vr(Y1,16)}")
    a("s_cbranch_scc1 L_k2_cloop")
    stamp(a, 7)
    sync(2)
    stamp(a, 8)
    a(f"v_lshlrev_b32 v{vG}, 1, v{vG}")
    a(f"s_lshl_b32 s{sA}, s{sA}, 1")
    a(f"s_add_u32 s{sA}, s{sA}, s{sT}")
    a(f"s_add_u32 s{sB}, s{sA}, 4096")
    a(f"s_add_u32 s{sC}, s{sA}, 16384")
    a(f"s_add_u32 s{sE}, s{sA}, {16384+4096}")
    for q in range(1, 4):
        a(f"s_cmp_eq_u32 s{sQ}, {q}")
        a(f"s_cbranch_scc1 L_k2_x{q}")
    def slot(dst, src): return (3 * dst + (src if src < dst else src - 1)) * 2048
    X = 44
    for q in range(4):
        if q: a.label(f"L_k2_x{q}")
        for qq in range(4):
            if qq == q: continue
            for hh in range(2):
                a(f"ds_write_b128 v{vXW}, {vr(Y0+8*qq+4*hh,4)} offset:{slot(qq,q)+1024*hh}")
        stamp(a, 9)
        sync(3)
        stamp(a, 10)
        R = {}
        for src in range(4):
            if src == q: R[src] = Y0 + 8 * q; continue
            R[src] = X + 8 * src
            for hh in range(2):
                a(f"ds_read_b128 {vr(X+8*src+4*hh,4)}, v{vXW} offset:{slot(q,src)+1024*hh}")
        a("s_waitcnt lgkmcnt(0)")
        so = [sA, sA, sB, sB, sC, sC, sE, sE]
        for rr in range(8):
            a(f"v_add_f32 v{R[0]+rr}, v{R[0]+rr}, v{R[1]+rr}")
            a(f"v_add_f32 v{R[2]+rr}, v{R[2]+rr}, v{R[3]+rr}")
            a(f"v_cvt_pk_bf16_f32 v{U+rr}, v{R[0]+rr}, v{R[2]+rr}")
            a(f"buffer_store_dword v{U+rr}, v{vG}, s[{SO}:{SO+3}], s{so[rr]} offen offset:{2048*(rr&1)}")
        if q < 3: a("s_branch L_k2_cend")
    a.label("L_k2_cend")
    stamp(a, 11)
    stamp_out(a, 1, SWS, sWV)
    a.label("L_k2_end")
    a("s_endpgm")
    return a.l, 112

K3_LDS = 65536 + 16384
def gen_k3():
    a = Asm()
    SWS, SW, SO = 4, 8, 12
    sWV, sTT, sCB, sT, sT2, sTS, sKH, sOO, sWO, sM0 = 16, 17, 18, 19, 20, 21, 22, 23, 24, 25
    a("s_cmp_ge_u32 s2, 256")
    a("s_cbranch_scc1 L_k3_end")
    stamp_init(a)
    srd(a, SWS, 112, 0); srd(a, SW, 88, 0); srd(a, SO, 96, 0)
    srd_fin(a, SWS, wsz()); srd_fin(a, SW, 512 * 512 * 2); srd_fin(a, SO, 2048 * 1024 * 2)
    vL, vL16, vW, vT, vT2, vA0, vA1, vXW, vXR, vST = 1, 2, 3, 4, 5, 6, 7, 8, 9, 10
    D = [12, 28]; OFR = 44; WF = 108
    a(f"v_and_b32 v{vL}, 63, v0")
    a(f"v_lshrrev_b32 v{vT}, 6, v0")
    a(f"v_readfirstlane_b32 s{sWV}, v{vT}")
    a(f"v_lshlrev_b32 v{vL16}, 4, v{vL}")
    a(f"s_and_b32 s{sT}, s2, 7")
    a(f"s_lshr_b32 s{sT2}, s2, 3")
    a(f"s_lshl_b32 s{sTT}, s{sT}, 2")
    a(f"s_and_b32 s{sT}, s{sT2}, 3")
    a(f"s_add_u32 s{sTT}, s{sTT}, s{sT}")
    a(f"s_lshr_b32 s{sCB}, s{sT2}, 2")
    a(f"s_and_b32 s{sTS}, s{sWV}, 1")
    a(f"s_lshr_b32 s{sKH}, s{sWV}, 1")
    a(f"s_lshl_b32 s{sTT}, s{sTT}, 1")
    a(f"s_add_u32 s{sTT}, s{sTT}, s{sTS}")
    a(f"s_lshl_b32 s{sOO}, s{sTT}, 15")
    a(f"s_lshl_b32 s{sT}, s{sKH}, 14")
    a(f"s_add_u32 s{sOO}, s{sOO}, s{sT}")
    a(f"s_add_u32 s{sOO}, s{sOO}, {OF}")
    a(f"v_bfe_u32 v{vT}, v{vL}, 4, 1")
    a(f"v_lshlrev_b32 v{vT}, 2, v{vT}")
    a(f"v_and_b32 v{vT2}, 7, v{vL}")
    a(f"v_xor_b32 v{vT}, v{vT}, v{vT2}")
    a(f"v_lshlrev_b32 v{vT}, 4, v{vT}")
    a(f"v_lshrrev_b32 v{vT2}, 3, v{vL}")
    a(f"v_lshl_add_u32 v{vW}, v{vT2}, 10, v{vT}")
    a(f"s_lshl_b32 s{sT}, s{sKH}, 8")
    a(f"s_lshl_b32 s{sT2}, s{sTS}, 5")
    a(f"s_add_u32 s{sT}, s{sT}, s{sT2}")
    a(f"s_lshl_b32 s{sM0}, s{sT}, 7")
    a(f"s_lshl_b32 s{sWO}, s{sT}, 10")
    a(f"s_lshl_b32 s{sT2}, s{sCB}, 7")
    a(f"s_add_u32 s{sWO}, s{sWO}, s{sT2}")
    stamp(a, 8)
    a("s_waitcnt lgkmcnt(0)")
    stamp(a, 9)
    for g in range(4):
        if g: stamp(a, 9 + g)
        a(f"s_add_u32 s26, s{sCB}, {g}")
        a(f"s_and_b32 s26, s26, 3")
        a(f"s_lshl_b32 s27, s26, 12")
        a(f"s_add_u32 s{sT}, s{sOO}, s27")
        for q in range(4):
            a(f"buffer_load_dwordx4 {vr(OFR+16*g+4*q,4)}, v{vL16}, s[{SWS}:{SWS+3}], s{sT} offen offset:{1024*q}")
        a(f"s_add_u32 m0, s{sM0}, {g*8192}")
        a(f"s_lshl_b32 s27, s26, 16")
        a(f"s_add_u32 s27, s27, s{sWO}")
        for q in range(4):
            a(f"s_add_u32 s{sT}, s27, {q*7168}")
            a(f"buffer_load_dwordx4 v{vW}, s[{SW}:{SW+3}], s{sT} offen offset:{1024*q} lds")
        for q in range(0):
            a(f"buffer_load_dwordx4 {vr(OFR+16*g+4*q,4)}, v{vL16}, s[{SWS}:{SWS+3}], s{sT} offen offset:{1024*q}")
    stamp(a, 13)
    a(f"v_lshrrev_b32 v{vT}, 5, v{vL}")
    a(f"v_lshlrev_b32 v{vT}, 10, v{vT}")
    a(f"v_bfe_u32 v{vT2}, v{vL}, 2, 2")
    a(f"v_lshl_add_u32 v{vT}, v{vT2}, 7, v{vT}")
    a(f"v_bfe_u32 v{vT2}, v{vL}, 3, 1")
    a(f"v_lshl_add_u32 v{vT}, v{vT2}, 6, v{vT}")
    a(f"v_bfe_u32 v{vT2}, v{vL}, 4, 1")
    a(f"v_lshl_add_u32 v{vT}, v{vT2}, 5, v{vT}")
    a(f"v_and_b32 v{vT2}, 1, v{vL}")
    a(f"v_lshl_add_u32 v{vT}, v{vT2}, 4, v{vT}")
    a(f"v_bfe_u32 v{vT2}, v{vL}, 1, 1")
    a(f"v_lshl_add_u32 v{vT}, v{vT2}, 3, v{vT}")
    a(f"s_mul_i32 s{sT}, s{sKH}, {32768+64}")
    a(f"v_xor_b32 v{vA0}, s{sT}, v{vT}")
    a(f"v_xor_b32 v{vA1}, 64, v{vA0}")
    a(f"s_lshl_b32 s{sT}, s{sWV}, 12")
    a(f"s_add_u32 s{sT}, s{sT}, 65536")
    a(f"v_add_u32 v{vXW}, s{sT}, v{vL16}")
    a(f"s_xor_b32 s{sT}, s{sT}, 8192")
    a(f"v_add_u32 v{vXR}, s{sT}, v{vL16}")
    a(f"v_and_b32 v{vT}, 31, v{vL}")
    a(f"v_lshlrev_b32 v{vT}, 11, v{vT}")
    a(f"v_lshrrev_b32 v{vT2}, 5, v{vL}")
    a(f"v_lshl_add_u32 v{vST}, v{vT2}, 4, v{vT}")
    a(f"s_lshl_b32 s{sOO}, s{sTT}, 16")
    a(f"s_lshl_b32 s{sT}, s{sCB}, 7")
    a(f"s_add_u32 s{sOO}, s{sOO}, s{sT}")
    a(f"s_lshl_b32 s{sT}, s{sKH}, 6")
    a(f"s_add_u32 s{sOO}, s{sOO}, s{sT}")
    def reads(g):
        o = []; b = WF + 32 * (g & 1)
        for ks in range(4):
            for ct, va in enumerate((vA0, vA1)):
                for h in range(2):
                    o.append(f"ds_read_b64_tr_b16 {vr(b+8*ks+4*ct+2*h,2)}, v{va} offset:{g*8192+ks*2048+h*512}")
        return o
    def mfmas(g):
        o = []; b = WF + 32 * (g & 1)
        for ks in range(4):
            for ct in (1, 0):
                cc = "0" if (g == 0 and ks == 0) else vr(D[ct], 16)
                o.append(f"{MF} {vr(D[ct],16)}, {vr(b+8*ks+4*ct,4)}, {vr(OFR+16*g+4*ks,4)}, {cc}")
        return o
    stamp(a, 1)
    a("s_waitcnt vmcnt(24)")
    a("s_barrier")
    stamp(a, 2)
    for x in reads(0): a(x)
    for g in range(4):
        if g < 3:
            a(f"s_waitcnt lgkmcnt(0) vmcnt({8*(2-g)})")
            a("s_barrier")
            stamp(a, 3 + g)
            for x in merge(mfmas(g), reads(g + 1)): a(x)
        else:
            a("s_waitcnt lgkmcnt(0)")
            for x in mfmas(g): a(x)
    for k in range(4):
        a(f"ds_write_b128 v{vXW}, {vr(D[1]+4*k,4)} offset:{1024*k}")
    a("s_waitcnt lgkmcnt(0)")
    a("s_barrier")
    stamp(a, 6)
    for k in range(4):
        a(f"ds_read_b128 {vr(D[1]+4*k,4)}, v{vXR} offset:{1024*k}")
    a("s_waitcnt lgkmcnt(0)")
    for k in range(8):
        a(f"v_pk_add_f32 {vr(D[0]+2*k,2)}, {vr(D[0]+2*k,2)}, {vr(D[1]+2*k,2)}")
    for k in range(8):
        a(f"v_cvt_pk_bf16_f32 v{OFR+k}, v{D[0]+2*k}, v{D[0]+2*k+1}")
    a(f"buffer_store_dwordx4 {vr(OFR,4)}, v{vST}, s[{SO}:{SO+3}], s{sOO} offen offset:1024 {OPT['st_k3']}")
    a(f"buffer_store_dwordx4 {vr(OFR+4,4)}, v{vST}, s[{SO}:{SO+3}], s{sOO} offen offset:1056 {OPT['st_k3']}")
    stamp(a, 7)
    stamp_out(a, 2, SWS, sWV)
    a.label("L_k3_end")
    a("s_endpgm")
    return a.l, 172

def build(path, extra_empty=0):
    ref = open(f"cdna_kernels/{NAME}.s.ref").read().split("\n")
    head = [l for l in ref if l.startswith(";") and "@launch" not in l]
    ks = [("qkv_kgen_kernel", gen_k1, 512, K1_LDS), ("attn_conv_kernel", gen_k2, 768, K2_LDS), (f"{NAME}_kernel", gen_k3, 256, K3_LDS)]
    out = list(head)
    for n, g, blk, lds in ks:
        out.append(f"; @launch kernel={n} grid=(256,1,1) block=({blk},1,1) lds={lds}")
    for i in range(extra_empty):
        out.append(f"; @launch kernel=empty_kernel grid=(256,1,1) block=(256,1,1) lds=0")
    out += ['.amdgcn_target "amdgcn-amd-amdhsa--gfx950"', ".text"]
    kds = []
    if extra_empty:
        ks = ks + [("empty_kernel", lambda: (["s_endpgm"], 8), 256, 0)]
    for n, g, blk, lds in ks:
        lines, nv = g()
        lines = pad(lines)
        out += [f".globl {n}", ".p2align 8", f".type {n},@function", f"{n}:"]
        out += [l if l.endswith(":") else "    " + l for l in lines]
        nv4 = (nv + 7) // 8 * 8
        kds += [".p2align 6", f".amdhsa_kernel {n}", f"  .amdhsa_next_free_vgpr {nv4}", "  .amdhsa_next_free_sgpr 102",
                f"  .amdhsa_accum_offset {nv4}", "  .amdhsa_group_segment_fixed_size 0", "  .amdhsa_kernarg_size 120",
                "  .amdhsa_user_sgpr_count 2", "  .amdhsa_user_sgpr_kernarg_segment_ptr 1",
                "  .amdhsa_system_sgpr_workgroup_id_x 1", ".end_amdhsa_kernel"]
    out += ['.section .rodata,"a"'] + kds
    open(path, "w").write("\n".join(out) + "\n")

if __name__ == "__main__":
    build(f"cdna_kernels/{NAME}.s")
```

```python
import sys
sys.path.insert(0, "gen")
import gen
out = sys.argv[1]; gen.PROF = bool(int(sys.argv[2]))
for kv in sys.argv[3:]:
    k, v = kv.split("=", 1)
    try: v = eval(v)
    except Exception: pass
    if k in gen.BAR_ITERS: gen.BAR_ITERS[k] = v
    else: gen.OPT[k] = v
gen.build(out)
```

```python
import re

TRANS = ("v_exp_f32", "v_log_f32", "v_rcp_f32", "v_rsq_f32", "v_sqrt_f32", "v_sin_f32", "v_cos_f32",
         "v_exp_f16", "v_rcp_iflag_f32")

def _regs(tok):
    tok = tok.strip()
    tok = tok.lstrip("-")
    if tok.startswith("|") and tok.endswith("|"):
        tok = tok[1:-1]
    if tok.startswith("abs(") or tok.startswith("neg("):
        tok = tok[4:-1]
    m = re.fullmatch(r"([vsa])(\d+)", tok)
    if m:
        return {(m.group(1), int(m.group(2)))}
    m = re.fullmatch(r"([vsa])\[(\d+):(\d+)\]", tok)
    if m:
        return {(m.group(1), i) for i in range(int(m.group(2)), int(m.group(3)) + 1)}
    if tok in ("vcc", "vcc_lo", "vcc_hi"):
        return {("vcc", 0)}
    if tok in ("exec", "exec_lo", "exec_hi"):
        return {("exec", 0)}
    if tok == "m0":
        return {("m0", 0)}
    return set()

class Ins:
    __slots__ = ("text", "op", "dst", "src", "cls", "passes", "srcA", "srcB", "srcC", "ws", "wide_data", "islabel", "target", "dpp")
    def __init__(self, text):
        self.text = text
        self.dst = set(); self.src = set(); self.cls = None; self.passes = 0
        self.srcA = set(); self.srcB = set(); self.srcC = set(); self.ws = 1
        self.wide_data = set(); self.islabel = False; self.target = None; self.op = ""; self.dpp = False
        t = text.split(";")[0].strip()
        if not t or t.startswith("."):
            self.ws = 0; self.cls = "none"; return
        if t.endswith(":"):
            self.islabel = True; self.ws = 0; self.cls = "label"; self.op = t[:-1]; return
        parts = t.split(None, 1)
        op = parts[0]; self.op = op
        rest = parts[1] if len(parts) > 1 else ""
        ops = []; depth = 0; cur = ""
        for ch in rest:
            if ch == "[": depth += 1
            if ch == "]": depth -= 1
            if ch == "," and depth == 0:
                ops.append(cur.strip()); cur = ""
            else:
                cur += ch
        mods = ""
        if cur.strip():
            lp = cur.strip().split(None, 1)
            ops.append(lp[0]); mods = lp[1] if len(lp) > 1 else ""
        R = [_regs(o) for o in ops]
        def U(lst):
            s = set()
            for x in lst: s |= x
            return s
        if op == "s_nop":
            self.cls = "salu"; self.ws = int(ops[0], 0) + 1
        elif op.startswith("v_smfmac"):
            self.cls = "mfma"
            self.passes = 8 if "32x32" in op else 4
            self.dst = R[0]; self.srcA = R[1] | R[3]; self.srcB = R[2]; self.srcC = R[0]
            self.src = R[0] | R[1] | R[2] | R[3]
        elif op.startswith("v_mfma"):
            self.cls = "mfma"
            self.passes = 8 if "32x32" in op else 4
            self.dst = R[0]; self.srcA = R[1]; self.srcB = R[2]; self.srcC = R[3]
            self.src = R[1] | R[2] | R[3]
        elif op.startswith("v_"):
            self.cls = "valu"
            base = op.replace("_e32", "").replace("_e64", "").replace("_dpp", "").replace("_sdwa", "")
            if "row_" in mods or "quad_perm" in mods or "wave_" in mods or op.endswith("_dpp"):
                self.dpp = True
            if base.startswith("v_cmp"):
                self.dst = R[0]; self.src = U(R[1:])
                if base.startswith("v_cmpx"): self.dst |= {("exec", 0)}
            elif base.startswith("v_permlane"):
                self.dst = R[0] | R[1]; self.src = R[0] | R[1]
            elif "_co_" in base:
                self.dst = R[0] | R[1]; self.src = U(R[2:])
            elif base == "v_nop":
                pass
            else:
                self.dst = R[0]; self.src = U(R[1:])
                if base.startswith("v_fmac") or base.startswith("v_mac") or base.startswith("v_writelane") or base.startswith("v_pk_fmac"):
                    self.src |= R[0]
                if base == "v_cndmask_b32" and len(ops) == 3:
                    self.src |= {("vcc", 0)}
            self.op = base
        elif op.startswith("ds_"):
            self.cls = "ds"
            if op.startswith("ds_read") or op.startswith("ds_bpermute") or op.startswith("ds_permute") or op.startswith("ds_swizzle") or "_rtn" in op:
                self.dst = R[0]; self.src = U(R[1:])
                if "d16" in op: self.src |= R[0]
            else:
                self.src = U(R)
            if "addtid" in op: self.cls = "dma"; self.src |= {("m0", 0)}
        elif op.startswith("buffer_") or op.startswith("global_"):
            self.cls = "vmem"
            is_lds = bool(re.search(r"\blds\b", mods)) or "_lds_" in op
            if "load" in op:
                if is_lds:
                    self.src = U(R) | {("m0", 0)}; self.cls = "dma"
                else:
                    self.dst = R[0]; self.src = U(R[1:])
            else:
                self.src = U(R)
                if "x3" in op or "x4" in op:
                    self.wide_data = R[0] if op.startswith("buffer_") else R[1]
        elif op.startswith("s_"):
            self.cls = "salu"
            if op.startswith("s_cbranch") or op == "s_branch":
                self.target = ops[0]
            elif op.startswith("s_cmp") or op.startswith("s_bitcmp") or op in ("s_waitcnt", "s_barrier", "s_endpgm", "s_setprio", "s_sleep"):
                self.src = U(R)
            else:
                if R:
                    self.dst = R[0]; self.src = U(R[1:])
        else:
            raise ValueError("unknown op: " + text)

def need(p, c):
    n = 0
    pv = {r for r in p.dst if r[0] == "v"}
    ps = {r for r in p.dst if r[0] in ("s", "vcc")}
    if p.cls == "valu":
        if c.cls == "mfma" and pv & c.src: n = max(n, 3 if p.op.replace("_e64", "") in TRANS else 2)
        if p.op in TRANS and c.cls in ("valu", "ds", "vmem", "dma") and (pv & c.src): n = max(n, 1)
        if c.cls == "valu" and ps & c.src:
            n = max(n, 4 if c.op in ("v_readlane_b32", "v_writelane_b32") else 2)
        if c.cls in ("vmem", "dma") and ps & c.src: n = max(n, 5)
        if c.cls == "valu" and c.op in ("v_readlane_b32", "v_readfirstlane_b32") and pv & c.src: n = max(n, 1)
        if c.cls == "valu" and (c.dpp or c.op.startswith("v_permlane")) and pv & c.src: n = max(n, 2)
        if ("exec", 0) in p.dst and c.cls in ("mfma", "valu"): n = max(n, 5)
    if p.cls == "mfma":
        big = 12 if p.passes == 8 else 8
        if c.cls in ("valu", "ds", "vmem", "dma") and (p.dst & (c.src | c.dst)): n = max(n, big)
        if c.cls == "mfma":
            if p.dst & (c.srcA | c.srcB): n = max(n, big)
            if p.dst & c.srcC and not (p.dst == c.srcC and p.passes == c.passes): n = max(n, big - 2)
            if p.dst & c.dst and not (p.dst == c.srcC): n = max(n, big - 2) if not (p.dst == c.dst) else max(n, 0)
        if c.cls == "valu" and (p.srcC & c.dst): n = max(n, 7 if p.passes == 8 else 3)
    if p.cls == "salu" and ("m0", 0) in p.dst and (c.cls == "dma" or c.op.startswith("s_movrel")): n = max(n, 1)
    if p.wide_data and (p.wide_data & c.dst): n = max(n, 2)
    return n

WINDOW = 14

def pad(lines, verbose=False):
    out = []
    for text in lines:
        c = Ins(text)
        if c.ws > 0:
            dist = 0; req = 0
            for p in reversed(out):
                if dist >= WINDOW: break
                if p.ws == 0: continue
                r = need(p, c) - dist
                if r > req: req = r
                dist += p.ws
            while req > 0:
                k = min(req, 16)
                out.append(Ins(f"s_nop {k-1}"))
                if verbose: print("pad", k, "before", text)
                req -= k
        out.append(c)
    labels = {x.op: i for i, x in enumerate(out) if x.islabel}
    errs = []
    for i, b in enumerate(out):
        if b.target and b.target in labels:
            pre = [x for x in out[max(0, i - 40):i + 1] if x.ws > 0]
            j = labels[b.target]
            post = [x for x in out[j:j + 40] if x.ws > 0]
            dpost = 0
            for c in post:
                if dpost >= WINDOW: break
                dist = dpost
                for p in reversed(pre):
                    if dist >= WINDOW: break
                    if need(p, c) > dist:
                        errs.append(f"edge hazard: '{p.text}' -> '{c.text}' via {b.text} dist {dist}")
                    dist += p.ws
                dpost += c.ws
    if errs:
        raise RuntimeError("\n".join(errs))
    return [x.text for x in out]

class Asm:
    def __init__(self):
        self.l = []
    def __call__(self, s):
        for ln in s.split("\n"):
            ln = ln.strip()
            if ln: self.l.append(ln)
    def label(self, n):
        self.l.append(n + ":")

def vr(a, n=1):
    return f"v{a}" if n == 1 else f"v[{a}:{a+n-1}]"
def sr(a, n=1):
    return f"s{a}" if n == 1 else f"s[{a}:{a+n-1}]"

def merge(*seqs):
    seqs = [list(s) for s in seqs if s]
    total = sum(len(s) for s in seqs)
    pos = [0] * len(seqs); out = []
    for _ in range(total):
        best = min(range(len(seqs)), key=lambda k: (pos[k] + 0.5) / len(seqs[k]) if pos[k] < len(seqs[k]) else 9)
        out.append(seqs[best][pos[best]]); pos[best] += 1
    return out
```

```python
import sys, struct, math
sys.path.insert(0, "gen")
from asmlib import *

NAME = "concat_heads__ssm_conv_s4__mha_block__prompt"
QF = 0x000000; KV = 0x200000; OF = 0x600000; KC = 0x800000; UT = 0xA00000; YT = 0xC00000; WS_SIZE = 0xE00000
PROF = False; PROF_OFF = 0xE00000
LOG2E = 1.4426950408889634
def f32(x): return struct.unpack("<I", struct.pack("<f", x))[0]
def hx(x): return "0x%08x" % (x & 0xffffffff)
def swap23(m): return (m & ~12) | ((m & 4) << 1) | ((m & 8) >> 1)
MF = "v_mfma_f32_32x32x16_bf16"
OPT = dict(st_k1="sc1", st_kc="sc1", st_k2="sc1", st_k3="")

def srd(a, base, koff, size):
    a(f"s_load_dwordx2 s[{base}:{base+1}], s[0:1], {koff}")
def srd_fin(a, base, size):
    a(f"s_mov_b32 s{base+2}, {hx(size)}")
    a(f"s_mov_b32 s{base+3}, 0x00020000")

def wsz(): return WS_SIZE + (0x100000 if PROF else 0)
def stamp(a, i):
    if PROF: a(f"s_memrealtime s[{70+2*i}:{71+2*i}]")
def stampc(a, i):
    if PROF: a(f"s_memtime s[{70+2*i}:{71+2*i}]")
def stamp_init(a):
    if PROF:
        for i in range(70, 100): a(f"s_mov_b32 s{i}, 0")
        stamp(a, 0)
        a("s_memtime s[100:101]")
def stamp_out(a, kidx, sws, swv, wait=True):
    if not PROF: return
    if wait: a("s_waitcnt vmcnt(0)")
    stamp(a, 14)
    a("s_memtime s[68:69]")
    a("s_waitcnt lgkmcnt(0)")
    a("s_sub_u32 s69, s68, s100")
    a(f"s_lshl_b32 s68, s2, 4")
    a(f"s_add_u32 s68, s68, s{swv}")
    a(f"s_lshl_b32 s68, s68, 6")
    a(f"s_add_u32 s68, s68, {PROF_OFF + kidx*0x40000}")
    for i in range(15): a(f"v_mov_b32 v{4+i}, s{70+2*i}")
    a("v_mov_b32 v19, s69")
    for k in range(4): a(f"buffer_store_dwordx4 v[{4+4*k}:{7+4*k}], off, s[{sws}:{sws+3}], s68 offset:{16*k}")

def cmul(dst, x, y, t):
    return [f"v_pk_mul_f32 {vr(t,2)}, {vr(x,2)}, {vr(y,2)} op_sel:[0,0] op_sel_hi:[0,1]",
            f"v_pk_fma_f32 {vr(dst,2)}, {vr(x,2)}, {vr(y,2)}, {vr(t,2)} op_sel:[1,1,0] op_sel_hi:[1,0,1] neg_lo:[0,1,0]"]

K1_SLOT = 32768; K1_KTW = 60 * 272; K1_RB = 4 * K1_KTW; K1_LDS = K1_RB + 3 * K1_SLOT

def gen_k1():
    a = Asm()
    SWS = 12
    sWV, sTB, sHQ, sXO, sWO, sM0, sT, sT2 = 44, 45, 46, 47, 48, 49, 50, 51
    sC0 = 56
    vL = 1; vT0 = 7; vT1 = 23
    SX, SW = 4, 8
    DRY = OPT.get("k1dry", 1)
    def tbhq():
        a(f"s_bfe_u32 s{sTB}, s2, {1 | (2 << 16)}")
        a(f"s_lshl_b32 s{sTB}, s{sTB}, 3")
        a(f"s_bfe_u32 s{sT}, s2, {3 | (3 << 16)}")
        a(f"s_add_u32 s{sTB}, s{sTB}, s{sT}")
        a(f"s_and_b32 s{sHQ}, s2, 1")
        a(f"s_lshl_b32 s{sHQ}, s{sHQ}, 2")
        a(f"s_lshr_b32 s{sT2}, s2, 6")
        a(f"s_add_u32 s{sHQ}, s{sHQ}, s{sT2}")
    SP0, SLD, SDS = 16, 40, 4
    sD, sMH, sKT, sMASK, sTAB, sG = 52, 53, 54, 58, 60, 44
    sSL, sDL, sCN, sIT = 61, 62, 63, 3
    PA, PB, PC, PLD, PDS = 72, 74, 76, 78, 21
    a("s_cmp_ge_u32 s2, 256")
    a("s_cbranch_scc1 L_k1_end")
    a(f"v_lshrrev_b32 v7, 6, v0")
    a(f"v_and_b32 v1, 63, v0")
    a(f"v_readfirstlane_b32 s{sWV}, v7")
    sRL = 40
    if DRY:
        a(f"s_mov_b32 s{sIT}, 64")
        a(f"s_mov_b32 s{sCN}, 64")
    a(f"s_cmp_ge_u32 s{sWV}, 4")
    a("s_cbranch_scc1 L_k1_ld")
    a("s_setprio 3")
    a(f"s_load_dwordx16 s[{SP0}:{SP0+15}], s[0:1], 8")
    srd(a, SWS, 112, 0)
    stamp_init(a)
    SEGC = OPT.get("segc", []); SEGL = OPT.get("segl", [2, 3, 4, 6]); SEGS = sorted(SEGC + SEGL)
    TAILW = OPT.get("tailw", 1)
    def walk(segs):
        a("s_mov_b64 exec, 0")
        for p in range(3):
            a(f"s_cmp_eq_u32 s{sWV}, {p}")
            a(f"s_cbranch_scc1 L_k1_g{segs[p]}")
        a(f"s_branch L_k1_g{segs[3]}")
    if DRY and SEGC:
        walk(SEGC)
        a.label("L_k1_go")
        a("s_mov_b64 exec, -1")
    stamp(a, 1)
    for r in range(72, 80, 2): a(f"v_mov_b64 {vr(r,2)}, 0")
    a(f"v_mov_b32 v{PDS}, 0")
    a(f"s_lshl_b32 s{sT}, s2, 8")
    a(f"v_add_lshl_u32 v{vT0}, v0, s{sT}, 1")
    a(f"s_lshr_b32 s{sD}, s{sG}, 1")
    a(f"s_lshl1_add_u32 s{sD}, s2, s{sD}")
    a(f"v_lshlrev_b32_e64 v{vT1}, 1, s{sD}")
    a("s_waitcnt lgkmcnt(0)")
    a(f"global_load_short_d16_hi v{PLD}, v{vT1}, s[{SP0+12}:{SP0+13}]")
    for i in range(6):
        a(f"global_load_short_d16_hi v{72+i}, v{vT0}, s[{SP0+2*i}:{SP0+2*i+1}]")
    a(f"s_andn2_b32 exec_lo, 1, s{sG}")
    a(f"s_mov_b32 exec_hi, 0")
    a(f"global_load_short_d16_hi v{PDS}, v{vT1}, s[{SP0+14}:{SP0+15}]")
    a("s_mov_b64 exec, -1")
    a("s_setprio 0")
    LEND = OPT.get("k1lend", 0)
    if not LEND: a("s_branch L_k1_g0")
    i_ld0 = len(a.l)
    a.label("L_k1_ld")
    srd(a, SX, 72, 0); srd(a, SW, 80, 0)
    if PROF: srd(a, SWS, 112, 0)
    stamp_init(a)
    tbhq()
    srd_fin(a, SX, 2048 * 512 * 2); srd_fin(a, SW, 512 * 1536 * 2)
    if PROF: srd_fin(a, SWS, wsz())
    a(f"s_and_b32 s{sWV}, s{sWV}, 3")
    vX = 2; vW = 4
    a(f"s_setprio {OPT.get('k1lprio', 2)}")
    sC0R = 52
    a(f"s_lshl_b32 s{sT2}, s{sT2}, 1")
    a(f"s_add_u32 s{sC0R}, s{sT}, s{sT2}")
    a(f"v_lshrrev_b32 v{vT0}, 4, v{vL}")
    a(f"v_and_b32 v{vT1}, 7, v{vL}")
    a(f"v_xor_b32 v{vT0}, v{vT0}, v{vT1}")
    a(f"v_lshlrev_b32 v{vT0}, 4, v{vT0}")
    a(f"v_lshrrev_b32 v5, 3, v{vL}")
    a(f"v_lshl_add_u32 v{vX}, v5, 10, v{vT0}")
    a(f"v_xor_b32 v{vT0}, 64, v{vX}")
    a(f"v_add_u32 v{vX+1}, 7168, v{vT0}")
    a(f"v_bfe_u32 v{vT0}, v{vL}, 4, 1")
    a(f"v_lshlrev_b32 v{vT0}, 2, v{vT0}")
    a(f"v_xor_b32 v{vT0}, v{vT0}, v{vT1}")
    a(f"v_mul_u32_u24 v5, 3072, v5")
    a(f"v_lshl_add_u32 v{vW}, v{vT0}, 4, v5")
    a(f"s_lshl_b32 s{sXO}, s{sTB}, 2")
    a(f"s_add_u32 s{sXO}, s{sXO}, s{sWV}")
    a(f"s_lshl_b32 s{sXO}, s{sXO}, 14")
    a(f"s_mul_i32 s{sWO}, s{sWV}, {16*3072}")
    a(f"s_lshl_b32 s{sT}, s{sHQ}, 7")
    a(f"s_add_u32 s{sWO}, s{sWO}, s{sT}")
    a(f"s_lshl_b32 s{sM0}, s{sWV}, 13")
    a(f"s_add_u32 s{sM0}, s{sM0}, {K1_RB}")
    sN, sME = 53, 54
    a(f"s_add_u32 s{sME}, s{sM0}, {3*K1_SLOT}")
    a(f"s_mov_b32 s{sN}, 0")
    if DRY:
        walk(SEGL)
        a.label("L_k1_ld2")
        a("s_mov_b64 exec, -1")
    stamp(a, 10)
    a("s_waitcnt lgkmcnt(0)")
    stamp(a, 1)
    if PROF: a("s_mov_b32 s55, 0")
    a.label("L_k1_ll")
    a(f"s_and_b32 s{sT2}, s{sC0R}, 7")
    a(f"s_lshl_b32 s{sT}, s{sT2}, 7")
    a(f"s_add_u32 s{sT}, s{sT}, s{sXO}")
    a(f"s_mov_b32 m0, s{sM0}")
    a(f"s_mul_i32 s{sT2}, s{sT2}, {64*3072}")
    for q in range(2):
        a(f"buffer_load_dwordx4 v{vX+q}, s[{SX}:{SX+3}], s{sT} offen offset:{q*1024} lds")
    a(f"s_add_u32 m0, s{sM0}, 2048")
    a(f"s_add_u32 s{sT}, s{sT2}, s{sWO}")
    for st in range(3):
        a(f"buffer_load_dwordx4 v{vW}, s[{SW}:{SW+3}], s{sT} offen offset:{st*1024} lds")
    a(f"s_add_u32 m0, s{sM0}, 5120")
    a(f"s_add_u32 s{sT}, s{sT}, {8*3072}")
    for st in range(3):
        a(f"buffer_load_dwordx4 v{vW}, s[{SW}:{SW+3}], s{sT} offen offset:{st*1024} lds")
    a(f"s_add_u32 s{sC0R}, s{sC0R}, 1")
    a(f"s_add_u32 s{sM0}, s{sM0}, {K1_SLOT}")
    a(f"s_cmp_eq_u32 s{sM0}, s{sME}")
    a(f"s_cselect_b32 s{sT}, {3*K1_SLOT}, 0")
    a(f"s_sub_u32 s{sM0}, s{sM0}, s{sT}")
    a(f"s_add_u32 s{sN}, s{sN}, 1")
    B0AT = OPT.get("k1b0at", 2)
    NI = OPT.get("k1ni", 2)
    a(f"s_cmp_lg_u32 s{sN}, {B0AT}")
    a("s_cbranch_scc1 L_k1_l1")
    stamp(a, 12)
    a("s_barrier")
    a.label("L_k1_l1")
    a(f"s_cmp_lt_u32 s{sN}, {NI}")
    a("s_cbranch_scc1 L_k1_ll")
    if NI == 3:
        a(f"s_cmp_gt_u32 s{sN}, {NI}")
        a("s_cbranch_scc1 L_k1_l2")
        a("s_waitcnt vmcnt(16)")
        stamp(a, 13)
        a("s_barrier")
        a.label("L_k1_l2")
    if PROF:
        a("s_waitcnt lgkmcnt(0)")
        a("s_mov_b32 m0, s55")
        a("s_add_u32 s55, s55, 2")
        a("s_movreld_b32 s74, s66")
    a(f"s_cmp_lt_u32 s{sN}, 8")
    a("s_waitcnt vmcnt(8)")
    if PROF: a("s_memrealtime s[66:67]")
    a("s_barrier")
    a("s_cbranch_scc1 L_k1_ll")
    a("s_waitcnt vmcnt(0)")
    stamp(a, 11)
    a("s_barrier")
    if PROF: a(f"s_add_u32 s{sWV}, s{sWV}, 4")
    stamp_out(a, 0, SWS, sWV)
    a.label("L_k1_end")
    a("s_endpgm")
    ldcode = []
    if LEND:
        ldcode = a.l[i_ld0:]; del a.l[i_ld0:]
    def ret(n):
        o = [x for x in SEGS if x <= n]
        return None if not o else "L_k1_go" if o[-1] in SEGC else "L_k1_ld2"
    def cut(n):
        if DRY and n in SEGS:
            if ret(n-1): a(f"s_cbranch_execz {ret(n-1)}")
            a.label(f"L_k1_g{n}")
    def guard(lst, lab):
        if DRY: a(f"s_cbranch_execz {lab}")
        for x in lst: a(x)
        if DRY and lab not in ("L_k1_go", "L_k1_ld2"): a.label(lab)
    a.label("L_k1_g0")
    srd_fin(a, SWS, wsz())
    vXA, vWA, vKB, vKA, vST, vSV = 8, 12, 13, 14, 18, 19
    ACC = 24; BUF = [72, 88, 152, 168]; KD = 136
    a(f"s_and_b32 s{sMH}, s{sG}, 1")
    a(f"s_mul_i32 s{sKT}, s{sG}, {K1_KTW}")
    a(f"s_mov_b32 m0, s{sKT}")
    a(f"s_andn2_b32 s{sT}, s{sG}, 1")
    a(f"s_mul_i32 s{sKT}, s{sT}, {K1_KTW}")
    a(f"v_lshrrev_b32 v5, 5, v{vL}")
    a(f"v_lshl_add_u32 v6, v5, 4, s{sKT}")
    a(f"v_and_b32 v{vT0}, 31, v{vL}")
    a(f"v_mul_u32_u24 v{vT1}, 272, v{vT0}")
    a(f"v_add_u32 v{vKB}, v{vT1}, v6")
    RE, RG, R8, R4 = 32, 40, 48, 56
    def hrow(tile, m):
        c = swap23(m); al = c >> 3; i = c & 7; aa = 4 * tile + al
        if aa == 0: return RE + i
        if aa == 1: return [RG + 1, RG + 1, RG, R4 + 1, R4 + 1, R4 + 1, R8, R8 + 1][i]
        if aa in (2, 3): return [RG, RG, RG, R4, R4, R4, R8, R8][i] + aa
        return (R8 if i >= 5 else RG) + aa
    tab = {t: [sum((hrow(t, 8 * q + m) - 32) << (8 * m) for m in range(8)) for q in range(4)] for t in range(2)}
    kinds = {}
    for t in range(2):
        val = 0
        for m in range(32):
            r = hrow(t, m)
            val |= ((r - 32) >> 3) << (2 * m)
        kinds[t] = val
    a(f"s_cmp_eq_u32 s{sMH}, 1")
    for w in range(2):
        a(f"s_mov_b32 s{sTAB+w}, {hx(kinds[0] >> (32*w))}")
        a(f"s_cselect_b32 s{sTAB+w}, {hx(kinds[1] >> (32*w))}, s{sTAB+w}")
    lows = {}
    for t in range(2):
        lo = [0, 0]
        for m in range(32):
            lo[m >> 4] |= ((hrow(t, m) - 32) & 7) << (4 * (m & 15))
        lows[t] = lo
    sLW = 64
    for hi in range(2):
        for w in range(2):
            d = (sTAB + 2 + w) if hi == 0 else (sLW + w)
            a(f"s_mov_b32 s{d}, {hx(lows[0][hi] >> (32*w))}")
            a(f"s_cselect_b32 s{d}, {hx(lows[1][hi] >> (32*w))}, s{d}")
    a(f"s_cselect_b32 s{sMASK}, 0xaaaaaaaa, 0")
    a(f"s_mov_b32 s{sMASK+1}, s{sMASK}")
    a(f"v_and_b32 v{vT1}, 15, v{vL}")
    a(f"v_lshlrev_b32 v{vT1}, 2, v{vT1}")
    a(f"v_cmp_lt_u32 vcc, 15, v{vT0}")
    a(f"v_lshrrev_b64 v[64:65], v{vT1}, s[{sTAB+2}:{sTAB+3}]")
    a(f"v_lshrrev_b64 v[66:67], v{vT1}, s[{sLW}:{sLW+1}]")
    a(f"v_lshlrev_b32 v{vT0}, 1, v{vT0}")
    a(f"v_cndmask_b32 v64, v64, v66, vcc")
    a(f"v_lshrrev_b64 v[66:67], v{vT0}, s[{sTAB}:{sTAB+1}]")
    a(f"v_and_b32 v64, 7, v64")
    a(f"v_and_b32 v66, 3, v66")
    a(f"v_lshl_add_u32 v64, v66, 3, v64")
    a(f"v_mad_u32_u24 v{vKA}, v64, s{sC0}, v6") if False else None
    a(f"v_mul_u32_u24 v64, 272, v64")
    a(f"v_add3_u32 v{vKA}, v64, v6, s{sC0}") if False else None
    a(f"v_add_u32 v{vKA}, v64, v6")
    sKO = 55
    a(f"s_lshl_b32 s{sT}, s{sD}, 12")
    a(f"s_lshl_b32 s{sKO}, s{sMH}, 11")
    a(f"s_add_u32 s{sKO}, s{sKO}, s{sT}")
    a(f"s_add_u32 s{sKO}, s{sKO}, {KC}")
    sTS, sHP = sMH, 60
    a(f"s_lshr_b32 s{sHP}, s{sWV}, 1")
    a(f"v_and_b32 v{vT0}, 15, v{vL}")
    a(f"v_bfe_u32 v{vT1}, v{vL}, 1, 3")
    a(f"v_xor_b32 v{vT1}, v{vT1}, v5")
    a(f"v_lshlrev_b32 v{vT1}, 4, v{vT1}")
    a(f"v_lshl_add_u32 v{vT0}, v{vT0}, 7, v{vT1}")
    a(f"v_bfe_u32 v{vT1}, v{vL}, 4, 1")
    a(f"v_lshl_add_u32 v{vT0}, v{vT1}, 13, v{vT0}")
    a(f"s_lshl_b32 s{sC0}, s{sTS}, 14")
    a(f"s_add_u32 s{sC0}, s{sC0}, {K1_RB}")
    for s in range(1, 4):
        a(f"v_xor_b32 v{vXA+s}, {32*s}, v{vT0}")
    a(f"v_add_u32 v{vXA}, s{sC0}, v{vT0}")
    for s in range(1, 4):
        a(f"v_add_u32 v{vXA+s}, s{sC0}, v{vXA+s}")
    cut(1)
    a(f"v_mul_u32_u24 v{vT0}, 3072, v5")
    a(f"v_bfe_u32 v{vT1}, v{vL}, 2, 2")
    a(f"v_lshl_add_u32 v{vT0}, v{vT1}, 7, v{vT0}")
    a(f"v_bfe_u32 v{vT1}, v{vL}, 3, 1")
    a(f"v_xor_b32 v{vT1}, s{sHP}, v{vT1}")
    a(f"v_lshl_add_u32 v{vT0}, v{vT1}, 6, v{vT0}")
    a(f"v_bfe_u32 v{vT1}, v{vL}, 4, 1")
    a(f"v_lshl_add_u32 v{vT0}, v{vT1}, 5, v{vT0}")
    a(f"v_and_b32 v{vT1}, 1, v{vL}")
    a(f"v_lshl_add_u32 v{vT0}, v{vT1}, 4, v{vT0}")
    a(f"v_bfe_u32 v{vT1}, v{vL}, 1, 1")
    a(f"v_lshl_add_u32 v{vT0}, v{vT1}, 3, v{vT0}")
    a(f"v_add_u32 v{vWA}, {2048+K1_RB}, v{vT0}")
    a(f"v_lshlrev_b32 v{vST}, 4, v{vL}")
    vSK = vST
    if OPT.get("kperm", 1):
        vSK = 20
        a(f"v_lshrrev_b32 v{vT1}, 1, v{vL}")
        a(f"v_xor_b32 v{vT1}, v{vT1}, v{vL}")
        a(f"v_bfe_u32 v{vT1}, v{vT1}, 2, 1")
        a(f"v_mul_u32_u24 v{vT1}, 192, v{vT1}")
        a(f"v_xor_b32 v{vSK}, v{vT1}, v{vST}")
    a(f"v_bfe_u32 v{vT1}, v{vL}, 4, 1")
    a(f"v_lshlrev_b32 v{vT1}, 17, v{vT1}")
    a(f"v_lshl_add_u32 v{vT1}, v5, 9, v{vT1}")
    a(f"v_and_b32 v{vT0}, 15, v{vL}")
    a(f"v_lshl_add_u32 v{vSV}, v{vT0}, 4, v{vT1}")
    tbhq()
    a(f"s_lshl_b32 s{sT}, s{sHQ}, 1")
    a(f"s_add_u32 s{sT}, s{sT}, s{sHP}")
    a(f"s_lshl_b32 s{sT}, s{sT}, 17")
    a(f"s_lshl_b32 s{sT2}, s{sTB}, 1")
    a(f"s_add_u32 s{sT2}, s{sT2}, s{sTS}")
    a(f"s_lshl_b32 s{sT2}, s{sT2}, 10")
    a(f"s_add_u32 s{sXO}, s{sT}, s{sT2}")
    a(f"s_add_u32 s{sWO}, s{sXO}, 65536")
    a(f"s_lshl_b32 s{sT}, s{sXO}, 1")
    a(f"s_add_u32 s{sT}, s{sT}, {KV}")
    a(f"s_add_u32 s{sT2}, s{sT}, 131072")
    for r in list(range(ACC, ACC + 48, 2)) + list(range(KD, BUF[3] + 16, 2)):
        a(f"v_mov_b64 {vr(r,2)}, 0")
    a(f"s_mov_b32 s{sSL}, 0")
    a(f"s_mov_b32 s{sCN}, 0")
    a(f"s_mov_b32 s{sIT}, 0")
    a(f"s_mov_b32 s{sKT}, {K1_SLOT}")
    cut(2)
    DT, Z, E1, E4, E8, E64, G1 = 79, 80, 84, 86, 88, 90, 92
    CA = [94, 96, 98, 100]; CE, CG, P8, P4 = 102, 104, 106, 108
    TT = [110, 112, 114, 116, 118, 120, 122, 124]
    CV = list(range(126, 134))
    l2e_hi = struct.unpack("<f", struct.pack("<f", LOG2E))[0]
    a(f"s_mov_b32 s{sC0}, {hx(f32(LOG2E))}")
    a(f"s_mov_b32 s{sC0+1}, {hx(f32(LOG2E - l2e_hi))}")
    a(f"v_mov_b32 v{CE}, 1.0")
    a(f"v_mov_b32 v{CE+1}, 0")
    a(f"v_mov_b32 v{CG}, 1.0")
    a(f"v_mov_b32 v{CG+1}, 0")
    stamp(a, 2)
    a("s_waitcnt vmcnt(1)")
    stamp(a, 3)
    m = []
    m.append(f"v_mul_f32 v120, s{sC0}, v{PLD}")
    m.append(f"v_fma_f32 v121, v{PLD}, s{sC0}, -v120")
    m.append(f"v_exp_f32 v122, v120")
    m.append(f"v_fma_f32 v121, v{PLD}, s{sC0+1}, v121")
    m.append(f"v_mul_f32 v121, {hx(f32(math.log(2.0)))}, v121")
    m.append(f"v_fma_f32 v122, v122, v121, v122")
    m.append(f"v_cvt_pk_bf16_f32 v122, v122, v122")
    m.append(f"v_lshlrev_b32 v{DT}, 16, v122")
    m.append(f"v_mul_f32 v{Z}, v{DT}, v{PA}")
    m.append(f"v_mul_f32 v{Z+1}, v{DT}, v{PA+1}")
    m.append(f"v_mul_f32 v{PB}, v{DT}, v{PB}")
    m.append(f"v_mul_f32 v{PB+1}, v{DT}, v{PB+1}")
    m.append(f"v_mul_f32 v{Z}, s{sC0}, v{Z}")
    m.append(f"v_mul_f32 v{Z+1}, {hx(f32(1.0/(2*math.pi)))}, v{Z+1}")
    m += cmul(CA[0], PC, PB, TT[6])
    def direct(dst, lg, t):
        o = []
        if lg == 0:
            o.append(f"v_exp_f32 v{t}, v{Z}")
            o.append(f"v_fract_f32 v{t+1}, v{Z+1}")
        else:
            o.append(f"v_ldexp_f32 v{t}, v{Z}, {lg}")
            o.append(f"v_ldexp_f32 v{t+1}, v{Z+1}, {lg}")
            o.append(f"v_exp_f32 v{t}, v{t}")
            o.append(f"v_fract_f32 v{t+1}, v{t+1}")
        o.append(f"v_cos_f32 v{dst}, v{t+1}")
        o.append(f"v_sin_f32 v{dst+1}, v{t+1}")
        o.append(f"v_pk_mul_f32 {vr(dst,2)}, {vr(dst,2)}, {vr(t,2)} op_sel:[0,0] op_sel_hi:[1,0]")
        return o
    E128 = P4
    m += merge(direct(E64, 6, TT[0]), direct(E128, 7, TT[1]), direct(E8, 3, TT[2]), direct(G1, 8, TT[3]),
               direct(E1, 0, TT[4]), direct(E4, 2, TT[5]))
    m += merge(cmul(CA[1], CA[0], E64, TT[0]), cmul(CA[2], CA[0], E128, TT[1]))
    m += cmul(CA[3], CA[2], E64, TT[0])
    for x in m: a(x)
    def put(row, src, neg, r):
        return [f"v_cvt_pk_bf16_f32 v{r}, v{src}, {'-' if neg else ''}v{src+1}", f"ds_write_addtid_b32 v{r} offset:{row*272}"]
    cut(3)
    a.label("L_k1_m")
    ch = [put(8 * c, CA[c], False, CV[c]) + cmul(CA[c], CA[c], E8, TT[c]) for c in range(4)]
    ch.append(put(RE, CE, True, CV[4]) + cmul(CE, CE, E1, TT[4]))
    ch.append(cmul(P8, CG, E8, TT[5]) + put(RG, CG, True, CV[5]) + put(R8, P8, True, CV[6]))
    a(f"s_cmp_gt_u32 s{sIT}, 3")
    a("s_cbranch_scc1 L_k1_m2")
    for x in cmul(P4, CG, E4, TT[6]) + put(R4, P4, True, CV[7]): a(x)
    a.label("L_k1_m2")
    body = merge(*ch) + cmul(CG, CG, G1, TT[7])
    for x in body[:-2]: a(x)
    a(f"s_add_u32 s{sIT}, s{sIT}, 1")
    a(body[-2])
    a("s_add_u32 m0, m0, 272")
    a(f"s_cmp_lt_u32 s{sIT}, 8")
    a(body[-1])
    a("s_cbranch_scc1 L_k1_m")
    a(f"s_sub_u32 m0, m0, {8*272}")
    E2 = CE
    for x in merge(cmul(E2, E1, E1, TT[0]), cmul(P4, G1, E4, TT[1])): a(x)
    for x in merge(cmul(P8, G1, E2, TT[0]) + put(RG, P8, True, CV[0]), cmul(CG, P4, E2, TT[1]) + put(R8, CG, True, CV[1])): a(x)
    a(f"s_mov_b32 s{sC0}, {hx(f32(0.25*LOG2E))}")
    a(f"s_mov_b32 s{sC0+1}, {hx(f32(0.25*LOG2E))}")
    stamp(a, 4)
    guard(["s_waitcnt vmcnt(0) lgkmcnt(0)", "s_barrier"], ret(3))
    if DRY: a.label("L_k1_g4")
    KFR = [72 + 8 * i for i in range(8)]
    def rk(n, nxt):
        t, ks = n & 1, n >> 1; r = KFR[n + 4 * nxt]
        return [f"ds_read_b128 {vr(r,4)}, v{vKA} offset:{32*272+t*K1_KTW+32*ks+64*nxt}",
                f"ds_read_b128 {vr(r+4,4)}, v{vKB} offset:{t*K1_KTW+32*ks+64*nxt}"]
    def mk_(n):
        r = KFR[n]
        return f"{MF} {vr(KD,16)}, {vr(r,4)}, {vr(r+4,4)}, {vr(KD,16)}"
    for n in range(4):
        for x in rk(n, 0): a(x)
    a.label("L_k1_p")
    for n in range(4):
        for x in rk(n, 1): a(x)
        a(f"s_waitcnt lgkmcnt(8)")
        a(mk_(n))
    a(f"v_add_u32 v{vKA}, 128, v{vKA}")
    a(f"v_add_u32 v{vKB}, 128, v{vKB}")
    a(f"s_add_u32 s{sIT}, s{sIT}, 1")
    a(f"s_cmp_lt_u32 s{sIT}, 10")
    for n in range(4):
        for x in rk(n, 0): a(x)
        a(f"s_waitcnt lgkmcnt(8)")
        a(mk_(4 + n))
    a("s_cbranch_scc1 L_k1_p")
    KO = 104
    kfin = [f"v_add_f32 v{KD}, v{KD}, v{PDS}",
            f"v_cndmask_b32 v{KD+4}, v{KD+4}, v{KD+5}, s[{sMASK}:{sMASK+1}]",
            f"v_cndmask_b32 v{KD+12}, v{KD+12}, v{KD+13}, s[{sMASK}:{sMASK+1}]"]
    kfin += [f"v_cvt_pk_bf16_f32 v{KO+k}, v{KD+2*k}, v{KD+2*k+1}" for k in range(8)]
    kst = [f"buffer_store_dwordx4 {vr(KO,4)}, v{vST}, s[{SWS}:{SWS+3}], s{sKO} offen {OPT.get('st_kc','')}",
           f"buffer_store_dwordx4 {vr(KO+4,4)}, v{vST}, s[{SWS}:{SWS+3}], s{sKO} offen offset:1024 {OPT.get('st_kc','')}"]
    cut(5)
    for x in kfin: a(x)
    if DRY: a(f"s_cbranch_execz {ret(5)}")
    for x in kst: a(x)
    if PROF:
        a("s_mov_b32 m0, 0")
        a("s_memrealtime s[66:67]")
    def rd(ks):
        b = BUF[ks]
        o = [f"ds_read_b128 {vr(b,4)}, v{vXA+ks}"]
        for st in range(3):
            for hh in range(2):
                o.append(f"ds_read_b64_tr_b16 {vr(b+4+4*st+2*hh,2)}, v{vWA} offset:{ks*8192+st*1024+hh*512}")
        return o
    upd = [f"s_add_u32 s{sSL}, s{sSL}, 1", f"s_cmp_eq_u32 s{sSL}, 3", f"s_cselect_b32 s{sSL}, 0, s{sSL}",
           f"s_cselect_b32 s{sDL}, {hx(-2*K1_SLOT)}, s{sKT}"]
    upd += [f"v_add_u32 v{r}, s{sDL}, v{r}" for r in range(vXA, vXA + 5)]
    upd += [f"s_add_u32 s{sCN}, s{sCN}, 1", f"s_cmp_lt_u32 s{sCN}, 8"]
    def mf(ks):
        b = BUF[ks]; o = []
        x = vr(b, 4)
        for st in range(3):
            w = vr(b + 4 + 4 * st, 4); d = vr(ACC + 16 * st, 16)
            o.append(f"{MF} {d}, {w}, {x}, {d}" if st < 2 else f"{MF} {d}, {x}, {w}, {d}")
        return o
    def gaps(ms, groups):
        for m_, g in zip(ms, groups):
            a(m_)
            for x in g: a(x)
    a.label("L_k1_loop")
    a("s_waitcnt lgkmcnt(0)")
    if PROF:
        a("s_movreld_b32 s80, s66")
        a("s_mov_b64 exec, -1")
        a("s_add_u32 m0, m0, 2")
    a("s_barrier")
    a.label("L_k1_g6")
    R = rd(0) + rd(1) + rd(2) + rd(3)
    for x in R[0:2]: a(x)
    gaps(mf(2), [R[2:5], R[5:8], R[8:11]])
    gaps(mf(3), [R[11:14], R[14:17], R[17:20]])
    a("s_waitcnt lgkmcnt(13)")
    gaps(mf(0), [R[20:23], R[23:26], R[26:28]])
    a("s_waitcnt lgkmcnt(14)")
    gaps(mf(1), [upd[:5] + (["s_memrealtime s[66:67]"] if PROF else []), upd[5:], []])
    a("s_cbranch_scc1 L_k1_loop")
    guard(["s_waitcnt lgkmcnt(0)"], "L_k1_t0" if TAILW else ret(6))
    if not TAILW: DRY = 0
    O = 72
    qfin = [f"v_pk_mul_f32 {vr(ACC+2*k,2)}, {vr(ACC+2*k,2)}, s[{sC0}:{sC0+1}]" for k in range(8)]
    qfin += [f"v_cvt_pk_bf16_f32 v{O+k}, v{ACC+2*k}, v{ACC+2*k+1}" for k in range(8)]
    qfin += [f"buffer_store_dwordx4 {vr(O,4)}, v{vST}, s[{SWS}:{SWS+3}], s{sXO} offen {OPT['st_k1']}",
             f"buffer_store_dwordx4 {vr(O+4,4)}, v{vST}, s[{SWS}:{SWS+3}], s{sWO} offen {OPT['st_k1']}"]
    kk = [f"v_cvt_pk_bf16_f32 v{O+8+k}, v{ACC+16+2*k}, v{ACC+16+2*k+1}" for k in range(8)]
    kk += [f"buffer_store_dwordx4 {vr(O+8,4)}, v{vSK}, s[{SWS}:{SWS+3}], s{sT} offen {OPT['st_k1']}",
           f"buffer_store_dwordx4 {vr(O+12,4)}, v{vSK}, s[{SWS}:{SWS+3}], s{sT2} offen {OPT['st_k1']}"]
    vv = [f"v_cvt_pk_bf16_f32 v{O+16+k}, v{ACC+32+2*k}, v{ACC+32+2*k+1}" for k in range(8)]
    vv += [f"buffer_store_dwordx4 {vr(O+16,4)}, v{vSV}, s[{SWS}:{SWS+3}], s{sT} offen offset:1024 {OPT['st_k1']}",
           f"buffer_store_dwordx4 {vr(O+20,4)}, v{vSV}, s[{SWS}:{SWS+3}], s{sT} offen offset:1280 {OPT['st_k1']}"]
    m2, m3 = mf(2), mf(3)
    for x in (m2[0], m3[0], m2[1], m3[1]): a(x)
    gaps([m2[2], m3[2]], [qfin[:6], qfin[6:-2]])
    guard(qfin[-2:], "L_k1_t1")
    for x in kk[:-2]: a(x)
    guard(kk[-2:], "L_k1_t2")
    for x in vv[:-2]: a(x)
    guard(vv[-2:], ret(7))
    stamp(a, 13)
    stamp_out(a, 0, SWS, sWV)
    a("s_endpgm")
    a.l += ldcode
    return a.l, 184

K2_LDS = 163840
CA0 = 131072; CH = 13600
EOFF = 64; OOFF = 64 + 4096 + 64; UOFF = OOFF + 4096
FLG = 163840 - 64
BAR_ITERS = dict()

def gen_k2():
    a = Asm()
    SWS, SU, SO, SWO = 4, 8, 12, 40
    sWV, sH, sQB, sT, sT2, sIT, sOFF, sPASS, sD0 = 16, 17, 18, 19, 20, 21, 22, 23, 24
    sVM = 26
    sA, sB, sC, sE = 32, 33, 34, 35
    a("s_cmp_ge_u32 s2, 256")
    a("s_cbranch_scc1 L_k2_end")
    srd(a, SWS, 112, 0); srd(a, SU, 0, 0); srd(a, SWO, 88, 0)
    stamp_init(a)
    vL = 1; vL16 = 2
    a(f"v_lshrrev_b32 v3, 6, v0")
    a(f"v_and_b32 v{vL}, 63, v0")
    a(f"v_readfirstlane_b32 s{sWV}, v3")
    a(f"v_lshlrev_b32 v{vL16}, 4, v{vL}")
    srd_fin(a, SWS, wsz())
    a(f"s_and_b32 s{sT}, s2, 7")
    a(f"s_lshr_b32 s{sT2}, s2, 3")
    a(f"s_lshl_b32 s{sH}, s{sT}, 2")
    a(f"s_and_b32 s{sQB}, s{sT2}, 3")
    a(f"s_add_u32 s{sH}, s{sH}, s{sQB}")
    a(f"s_lshr_b32 s{sQB}, s{sT2}, 2")
    a(f"s_lshl_b32 s{sA}, s{sH}, 17")
    a(f"s_add_u32 s{sA}, s{sA}, {KV}")
    a(f"s_cmp_ge_u32 s{sWV}, 8")
    a("s_cbranch_scc1 L_k2_conv")
    from attnloop import loop_body, align8, Q, NM, S, P, O, KF, VF, vA, vN, vT, vMK
    sSTEP, sEND, sMID, sFIN = 36, 37, 38, 39
    a(f"s_lshl_b32 s{sQB}, s{sQB}, 3")
    a(f"s_add_u32 s{sQB}, s{sQB}, s{sWV}")
    a(f"s_lshl_b32 s{sT}, s{sH}, 16")
    a(f"s_lshl_b32 s{sT2}, s{sQB}, 10")
    a(f"s_add_u32 s{sT}, s{sT}, s{sT2}")
    a(f"s_lshl_b32 s{sB}, s{sWV}, 13")
    a(f"s_add_u32 s{sC}, s{sA}, s{sB}")
    a(f"s_add_u32 s{sE}, s{sC}, 4096")
    a(f"s_mov_b32 m0, s{sB}")
    a("s_waitcnt lgkmcnt(0)")
    a(f"buffer_load_dwordx4 {vr(Q,4)}, v{vL16}, s[{SWS}:{SWS+3}], s{sT} offen")
    for k in range(4):
        a(f"buffer_load_dwordx4 v{vL16}, s[{SWS}:{SWS+3}], s{sC} offen offset:{1024*k} lds")
    a(f"s_add_u32 m0, s{sB}, 4096")
    for k in range(4):
        a(f"buffer_load_dwordx4 v{vL16}, s[{SWS}:{SWS+3}], s{sE} offen offset:{1024*k} lds")
    a(f"s_mov_b32 s{sVM}, 0x0000ffff")
    a(f"s_mov_b32 s{sVM+1}, 0x0000ffff")
    a(f"v_and_b32 v{vT}, 27, v{vL}")
    a(f"v_cmp_eq_u32 vcc, 16, v{vT}")
    a(f"v_mov_b32 v{vT}, 0x3f803f80")
    a(f"v_cndmask_b32 v{vT}, 0, v{vT}, vcc")
    for r in range(16): a(f"v_mov_b32 v{VF[0]+r}, v{vT}")
    a(f"v_mov_b32 v{vMK}, 0x1ffff")
    a(f"s_cmp_lt_u32 s{sWV}, 4")
    a(f"s_movk_i32 s{sSTEP}, 8192")
    a(f"s_cselect_b32 s{sSTEP}, s{sSTEP}, -8192")
    if OPT.get("prio", 6):
        a("s_cbranch_scc1 L_k2_old")
        a("s_setprio 1")
        a.label("L_k2_old")
    a(f"s_mul_i32 s{sMID}, s{sSTEP}, {2*(OPT.get('prio', 6) or 6)}")
    a(f"s_add_u32 s{sMID}, s{sMID}, s{sB}")
    a(f"s_lshl_b32 s{sFIN}, s{sSTEP}, 4")
    a(f"s_add_u32 s{sFIN}, s{sFIN}, s{sB}")
    X1 = f"s_mov_b64 exec, s[{sVM}:{sVM+1}]"; X2 = "s_mov_b64 exec, -1"
    SEQ = OPT.get("seq", "e e e S2 s e e W X V V x M1 K e e e e e e S3 e e e e e")
    SPARSE = "S2" in SEQ
    def body(first):
        tag = "a" if first else "b"
        cc = "0" if first else vr(NM, 16)
        for r in range(16): a(f"v_mov_b32 v{O+r}, 0")
        if SPARSE:
            for r in range(8, 16, 2): a(f"v_mov_b64 {vr(S[1]+r,2)}, 0")
            a(f"v_mov_b32 v{P}, {OPT.get('sidx', '0xdddddddd')}")
        else:
            for r in range(4, 8): a(f"v_mov_b32 v{P+r}, 0")
        a(f"v_add_u32 v{vA}, s{sB}, v{vL16}")
        a(f"s_mov_b32 s{sOFF}, s{sB}")
        if first:
            a(f"s_lshl_b32 s{sEND}, s{sSTEP}, 2")
            a(f"s_add_u32 s{sEND}, s{sEND}, s{sB}")
            a("s_mov_b64 vcc, 0")
            if PROF: a("s_mov_b32 m0, 0")
            stamp(a, 1)
            a("s_waitcnt vmcnt(4)")
            stamp(a, 3)
            stampc(a, 12)
        else:
            a(f"s_mov_b32 s{sEND}, s{sFIN}")
        a(f"ds_read_b128 {vr(KF[0],4)}, v{vA}")
        a(f"ds_read_b128 {vr(KF[1],4)}, v{vA} offset:2048")
        a(X1)
        a(f"ds_read_b128 {vr(VF[0],4)}, v{vA} offset:1024")
        a(f"ds_read_b128 {vr(VF[0]+4,4)}, v{vA} offset:1280")
        a(X2)
        a("s_waitcnt lgkmcnt(3)")
        a(f"{MF} {vr(S[0],16)}, {vr(KF[0],4)}, {vr(Q,4)}, {cc}")
        if first: a("s_waitcnt vmcnt(0)")
        a("s_waitcnt lgkmcnt(0)")
        a("s_nop 7")
        a("s_nop 3")
        a(".p2align 6")
        a.label(f"L_k2_loop{tag}")
        hooks = {7: [f"s_cmp_lg_u32 s{sOFF}, s{sEND}"]}
        if first: hooks[2] = ["s_cbranch_vccz L_k2_bar", "L_k2_barx:"]
        if first and PROF:
            hooks[0] = ["s_memtime s[64:65]", "s_memrealtime s[66:67]"]
            hooks[3] = ["s_movreld_b32 s48, s64", "s_movreld_b32 s49, s66", "s_add_u32 m0, m0, 2", "s_nop 0"]
        for x in align8(loop_body(SEQ, cc, sOFF, sSTEP, vL16, X1, X2, hooks)): a(x)
        a(f"s_cbranch_scc1 L_k2_loop{tag}")
        if first:
            a(f"s_cmp_lg_u32 s{sEND}, s{sFIN}")
            a(f"s_cbranch_scc1 L_k2_seg")
        if SPARSE: a(f"v_smfmac_f32_32x32x32_bf16 {vr(O,16)}, {vr(VF[1]+4,4)}, {vr(S[1]+8,8)}, v{P}")
        else: a(f"{MF} {vr(O,16)}, {vr(VF[1]+4,4)}, {vr(P+4,4)}, {vr(O,16)}")
        a("s_waitcnt lgkmcnt(0)")
    body(True)
    stamp(a, 4)
    stampc(a, 13)
    a(f"s_mov_b32 s{sT}, {hx(f32(2.0**-40))}")
    a(f"s_mov_b32 s{sT2}, {hx(f32(2.0**40))}")
    a(f"v_mov_b32 v{vT}, v{O+8}")
    for r in range(8): a(f"v_fma_f32 v{vT}, v{O+r}, 0, v{vT}")
    a(f"v_cmp_nle_f32 vcc, s{sT}, v{vT}")
    a(f"v_cmp_nge_f32 s[28:29], s{sT2}, v{vT}")
    a("s_nop 3")
    a(f"s_or_b64 vcc, vcc, s[28:29]")
    a("s_cbranch_scc1 L_k2_slow")
    a.label("L_k2_fin")
    a(f"v_rcp_f32 v{vT}, v{O+8}")
    a(f"s_lshl_b32 s{sT}, s{sQB}, 5")
    a(f"s_add_u32 s{sT}, s{sT}, s{sH}")
    a(f"s_lshl_b32 s{sT}, s{sT}, 10")
    a(f"s_add_u32 s{sT}, s{sT}, {OF}")
    for r in range(8): a(f"v_mul_f32 v{O+r}, v{O+r}, v{vT}")
    for r in range(4): a(f"v_cvt_pk_bf16_f32 v{P+r}, v{O+2*r}, v{O+2*r+1}")
    a(f"buffer_store_dwordx4 {vr(P,4)}, v{vL16}, s[{SWS}:{SWS+3}], s{sT} offen {OPT['st_k2']}")
    stamp_out(a, 1, SWS, sWV)
    if PROF:
        a(f"s_add_u32 s68, s68, {2*0x40000}")
        for i in range(16): a(f"v_mov_b32 v{24+i}, s{48+i}")
        for k in range(4): a(f"buffer_store_dwordx4 v[{24+4*k}:{27+4*k}], off, s[{SWS}:{SWS+3}], s68 offset:{16*k}")
    a("s_endpgm")
    a.label("L_k2_bar")
    a("s_barrier")
    a("s_mov_b64 vcc, -1")
    a("s_branch L_k2_barx")
    a.label("L_k2_seg")
    a(f"s_cmp_eq_u32 s{sEND}, s{sMID}")
    a(f"s_cbranch_scc1 L_k2_seg2")
    a(f"s_mov_b32 s{sEND}, s{sMID}")
    a.label("L_k2_poll")
    a(f"v_mov_b32 v{vT}, {FLG+4}")
    a(f"ds_read_b32 v{vT}, v{vT}")
    a("s_waitcnt lgkmcnt(0)")
    a(f"v_readfirstlane_b32 s{sT}, v{vT}")
    a(f"s_cmp_lt_u32 s{sT}, 4")
    a("s_cbranch_scc1 L_k2_poll")
    stamp(a, 5)
    a("s_branch L_k2_loopa")
    a.label("L_k2_seg2")
    a("s_setprio 0")
    stamp(a, 6)
    a(f"s_mov_b32 s{sEND}, s{sFIN}")
    a("s_branch L_k2_loopa")
    a.label("L_k2_slow")
    a(f"v_mov_b32 v{vA}, v{vL16}")
    a(f"v_mov_b32 v{vT}, 0xff800000")
    a(f"s_mov_b32 s{sIT}, 0")
    a.label("L_k2_max")
    a(f"ds_read_b128 {vr(KF[0],4)}, v{vA}")
    a(f"v_add_u32 v{vA}, 2048, v{vA}")
    a("s_waitcnt lgkmcnt(0)")
    a(f"{MF} {vr(S[0],16)}, {vr(KF[0],4)}, {vr(Q,4)}, 0")
    a(f"s_add_u32 s{sIT}, s{sIT}, 1")
    for r in range(8): a(f"v_max3_f32 v{vT}, v{S[0]+2*r}, v{S[0]+2*r+1}, v{vT}")
    a(f"s_cmp_lt_u32 s{sIT}, 64")
    a("s_cbranch_scc1 L_k2_max")
    a(f"v_xor_b32 v{vA}, 32, v{vL}")
    a(f"v_lshlrev_b32 v{vA}, 2, v{vA}")
    a(f"ds_bpermute_b32 v{vN}, v{vA}, v{vT}")
    a("s_waitcnt lgkmcnt(0)")
    a(f"v_max_f32 v{vT}, v{vT}, v{vN}")
    for r in range(16): a(f"v_sub_f32 v{NM+r}, 0, v{vT}")
    a(X1)
    for r in range(4, 8): a(f"v_mov_b32 v{VF[1]+r}, 0")
    a(X2)
    body(False)
    a("s_nop 7")
    a("s_nop 3")
    a("s_branch L_k2_fin")
    a.label("L_k2_conv")
    sQ, sCC, sHW, sCB = 36, 37, 38, 39
    U = 4; Y0 = 12; Y1 = 28; FR = 44; vG = 76; vUW = 77; vZ = 78; vZA = 92; vFX = 80
    vAL, vAH, vB0, vB1, vJ, vHF, vT, vT2, vXW, vFL, vONE = 81, 82, 83, 84, 85, 86, 87, 88, 89, 90, 91
    a(f"s_setprio {OPT.get('cprio', 3)}")
    a(f"s_sub_u32 s{sQ}, s{sWV}, 8")
    sKB, sKG = 44, 45
    a(f"s_lshl_b32 s{sKB}, s{sQ}, 12")
    a(f"s_add_u32 s{sKB}, s{sKB}, 65536")
    a(f"s_mov_b32 s{sKG}, s{sA}")
    a(f"v_mov_b32 v{vZ}, 0")
    a(f"v_mov_b32 v{vZ+1}, 0")
    a(f"v_mov_b32 v{vFL}, {FLG}")
    a(f"v_mov_b32 v{vONE}, 1")
    a(f"ds_write_b64 v{vFL}, {vr(vZ,2)}")
    a("s_waitcnt lgkmcnt(0)")
    def kvdma(rnd):
        a(f"s_add_u32 m0, s{sKB}, {rnd*16384}")
        a(f"s_add_u32 s46, s{sKG}, m0")
        for k in range(4):
            a(f"buffer_load_dwordx4 v{vL16}, s[{SWS}:{SWS+3}], s46 offen offset:{1024*k} lds")
    NPRE = OPT.get("npre", 0)
    for rnd in range(NPRE): kvdma(rnd)
    if OPT.get("noconv"):
        a("s_barrier")
        for rnd in range(NPRE, 4): kvdma(rnd)
        a("s_waitcnt vmcnt(0)")
        a("s_mov_b64 exec, 1")
        a(f"ds_add_u32 v{vFL}, v{vONE} offset:4")
        a("s_endpgm")
    srd_fin(a, SU, 2048 * 512 * 2); srd_fin(a, SWO, 512 * 512 * 2)
    a(f"s_lshl_b32 s{sD0}, s{sT}, 5")
    a(f"s_add_u32 s{sD0}, s{sD0}, s{sT2}")
    a(f"s_lshl_b32 s{sPASS}, s{sT2}, 14")
    a(f"s_lshr_b32 s{sCC}, s{sQ}, 1")
    a(f"s_and_b32 s{sHW}, s{sQ}, 1")
    a(f"s_mul_i32 s{sCB}, s{sCC}, {CH}")
    a(f"s_add_u32 s{sCB}, s{sCB}, {CA0}")
    a(f"s_mul_i32 s{sE}, s{sHW}, {OOFF-EOFF}")
    a(f"s_add_u32 s{sE}, s{sE}, s{sCB}")
    a(f"s_add_u32 s{sE}, s{sE}, {EOFF}")
    a(f"s_lshl_b32 s{sT2}, s{sD0}, 1")
    a(f"s_add_u32 s{sT2}, s{sT2}, s{sCC}")
    a(f"s_lshl_b32 s{sT2}, s{sT2}, 12")
    a(f"s_add_u32 s{sT2}, s{sT2}, {KC}")
    a(f"s_lshl_b32 s{sIT}, s{sHW}, 1")
    a(f"s_sub_u32 s{sT2}, s{sT2}, s{sIT}")
    a(f"s_mov_b32 s47, s{sE}")
    a(f"s_mov_b32 s48, s{sT2}")
    a(f"v_and_b32 v{vJ}, 31, v{vL}")
    a(f"v_lshrrev_b32 v{vHF}, 5, v{vL}")
    a(f"s_lshl_b32 s{sT}, s{sD0}, 2")
    a(f"v_lshlrev_b32 v{vT}, 12, v{vHF}")
    a(f"v_lshl_add_u32 v{vG}, v{vJ}, 15, v{vT}")
    a(f"s_lshl_b32 s{sA}, s{sCC}, 20")
    a(f"s_lshl_b32 s{sB}, s{sHW}, 14")
    a(f"s_add_u32 s{sA}, s{sA}, s{sB}")
    a(f"s_add_u32 s{sB}, s{sA}, s{sT}")
    a(f"s_add_u32 s{sC}, s{sB}, 8192")
    a(f"s_mul_i32 s{sT2}, s{sHW}, 80")
    a(f"s_add_u32 s{sT2}, s{sT2}, s{sCB}")
    a(f"s_add_u32 s{sT2}, s{sT2}, {UOFF+64*80-64}")
    a(f"v_min_u32 v{vT}, 35, v{vL}")
    a(f"v_lshl_add_u32 v{vZA}, v{vT}, 2, s{sT2}")
    a(f"s_sub_u32 s{sT2}, s{sE}, 64")
    a(f"v_lshl_add_u32 v{vT2}, v{vL}, 2, s{sT2}")
    a(f"v_cmp_gt_u32 vcc, 16, v{vL}")
    a(f"v_cndmask_b32 v{vZA}, v{vZA}, v{vT2}, vcc")
    a(f"ds_write_b32 v{vZA}, v{vZ}")
    a(f"s_lshl_b32 s{sT2}, s{sHW}, 1")
    a(f"s_add_u32 s{sT2}, s{sT2}, s{sE}")
    a(f"s_sub_u32 s{sT2}, s{sT2}, 2")
    a(f"v_mov_b32 v{vFX}, s{sT2}")
    a(f"v_mul_u32_u24 v{vT}, 80, v{vJ}")
    a(f"v_lshl_add_u32 v{vT}, v{vHF}, 3, v{vT}")
    a(f"s_mul_i32 s{sE}, s{sCC}, {80*32}")
    a(f"s_lshl_b32 s{sT2}, s{sHW}, 5")
    a(f"s_add_u32 s{sE}, s{sE}, s{sT2}")
    a(f"s_sub_u32 s{sE}, {CA0+UOFF+80*63+62-22}, s{sE}")
    a(f"v_sub_u32 v{vUW}, s{sE}, v{vT}")
    stamp(a, 1)
    a("s_barrier")
    stamp(a, 2)
    for rnd in range(NPRE, 4): kvdma(rnd)
    a(f"s_mov_b32 m0, s47")
    for k in range(4):
        a(f"buffer_load_dwordx4 v{vL16}, s[{SWS}:{SWS+3}], s48 offen offset:{1024*k} lds")
    a("s_waitcnt vmcnt(4)")
    a("s_mov_b64 exec, 1")
    a(f"ds_add_u32 v{vFL}, v{vONE} offset:4")
    a("s_mov_b64 exec, -1")
    stamp(a, 3)
    for rr in range(8):
        a(f"buffer_load_dword v{U+rr}, v{vG}, s[{SU}:{SU+3}], s{sB if rr < 4 else sC} offen offset:{1024*(rr&3)}")
    a(f"v_and_b32 v{vT}, 1, v{vJ}")
    a(f"v_and_b32 v{vT2}, 30, v{vJ}")
    a(f"v_lshlrev_b32 v{vT2}, 1, v{vT2}")
    a(f"v_lshl_add_u32 v{vT2}, v{vHF}, 4, v{vT2}")
    a(f"v_mul_u32_u24 v{vT}, {OOFF-EOFF}, v{vT}")
    a(f"v_sub_u32 v{vT2}, v{vT2}, v{vT}")
    a(f"s_lshl_b32 s{sT2}, s{sHW}, 10")
    a(f"s_add_u32 s{sT2}, s{sT2}, s{sCB}")
    a(f"s_add_u32 s{sT2}, s{sT2}, {OOFF-60}")
    a(f"v_add_u32 v{vAL}, s{sT2}, v{vT2}")
    a(f"v_add_u32 v{vAH}, 2048, v{vAL}")
    a(f"v_mul_u32_u24 v{vT}, 80, v{vJ}")
    a(f"v_lshlrev_b32 v{vT2}, 4, v{vHF}")
    a(f"v_sub_u32 v{vT}, v{vT2}, v{vT}")
    a(f"s_mul_i32 s{sT2}, s{sHW}, {16*80}")
    a(f"s_add_u32 s{sT2}, s{sT2}, s{sCB}")
    a(f"s_add_u32 s{sT2}, s{sT2}, {UOFF+80*31}")
    a(f"v_add_u32 v{vB1}, s{sT2}, v{vT}")
    a(f"s_add_u32 s{sE}, s{sCB}, {UOFF+64*80}")
    a(f"v_add_u32 v{vB0}, {32*80}, v{vB1}")
    a(f"v_min_u32 v{vB0}, s{sE}, v{vB0}")
    a(f"v_add_u32 v{vXW}, {CA0}, v{vL16}")
    for r in range(32): a(f"v_mov_b32 v{Y0+r}, 0")
    stamp(a, 4)
    a("s_waitcnt vmcnt(8)")
    a(f"ds_write_b16 v{vFX}, v{vZ}")
    for rr in range(8):
        a(f"s_waitcnt vmcnt({7-rr})")
        off = 2 * (11 - ((rr & 3) + 8 * (rr >> 2)))
        a(f"ds_write_b16 v{vUW}, v{U+rr} offset:{off}")
        a(f"ds_write_b16_d16_hi v{vUW}, v{U+rr} offset:{off+CH}")
    a(f"s_lshl_b32 s{sT2}, s{sQ}, 12")
    a(f"s_add_u32 s{sT2}, s{sT2}, s{sPASS}")
    if not OPT.get("nopf"):
        for k in range(4):
            a(f"buffer_load_dwordx4 {vr(96+4*k,4)}, v{vL16}, s[{SWO}:{SWO+3}], s{sT2} offen offset:{1024*k}")
    nsync = [0]
    def sync(n):
        nsync[0] += 1
        a("s_waitcnt lgkmcnt(0)")
        a("s_mov_b64 exec, 1")
        a(f"ds_add_u32 v{vFL}, v{vONE}")
        a.label(f"L_k2_spin{nsync[0]}")
        a(f"ds_read_b32 v{vT}, v{vFL}")
        a("s_waitcnt lgkmcnt(0)")
        a(f"v_readfirstlane_b32 s{sT2}, v{vT}")
        a(f"s_cmp_lt_u32 s{sT2}, {4*n}")
        a(f"s_cbranch_scc1 L_k2_spin{nsync[0]}")
        a("s_mov_b64 exec, -1")
    stamp(a, 5)
    sync(1)
    stamp(a, 6)
    a(f"s_mov_b32 s{sIT}, 0")
    a.label("L_k2_cloop")
    for st in range(4):
        f = FR + 16 * (st & 1)
        bo = (st >> 1) * 80 + (st & 1) * 32
        a(f"ds_read2_b32 {vr(f,2)}, v{vAL} offset0:{8*st} offset1:{8*st+1}")
        a(f"ds_read2_b32 {vr(f+2,2)}, v{vAL} offset0:{8*st+2} offset1:{8*st+3}")
        a(f"ds_read_b128 {vr(f+12,4)}, v{vB1} offset:{bo}")
        a("s_waitcnt lgkmcnt(0)")
        a(f"{MF} {vr(Y1,16)}, {vr(f,4)}, {vr(f+12,4)}, {vr(Y1,16)}")
        a(f"ds_read_b128 {vr(f+8,4)}, v{vB0} offset:{bo}")
        a("s_waitcnt lgkmcnt(0)")
        a(f"{MF} {vr(Y0,16)}, {vr(f,4)}, {vr(f+8,4)}, {vr(Y0,16)}")
        a(f"ds_read2_b32 {vr(f+4,2)}, v{vAH} offset0:{8*st} offset1:{8*st+1}")
        a(f"ds_read2_b32 {vr(f+6,2)}, v{vAH} offset0:{8*st+2} offset1:{8*st+3}")
        if st == 3:
            a(f"v_add_u32 v{vAL}, 128, v{vAL}")
            a(f"v_add_u32 v{vAH}, 128, v{vAH}")
            a(f"v_add_u32 v{vB1}, 160, v{vB1}")
            a(f"v_add_u32 v{vB0}, 160, v{vB0}")
            a(f"v_min_u32 v{vB0}, s{sE}, v{vB0}")
            a(f"s_add_u32 s{sIT}, s{sIT}, 1")
            a(f"s_cmp_lt_u32 s{sIT}, 8")
        a("s_waitcnt lgkmcnt(0)")
        a(f"{MF} {vr(Y1,16)}, {vr(f+4,4)}, {vr(f+8,4)}, {vr(Y1,16)}")
    a("s_cbranch_scc1 L_k2_cloop")
    stamp(a, 7)
    sync(2)
    stamp(a, 8)
    a(f"v_lshlrev_b32 v{vG}, 4, v{vHF}")
    a(f"v_lshl_add_u32 v{vG}, v{vJ}, 5, v{vG}")
    a(f"s_lshl2_add_u32 s{sA}, s{sD0}, s{sQ}")
    a(f"s_lshl_b32 s{sA}, s{sA}, 11")
    a(f"s_add_u32 s{sA}, s{sA}, {YT}")
    for q in range(1, 4):
        a(f"s_cmp_eq_u32 s{sQ}, {q}")
        a(f"s_cbranch_scc1 L_k2_x{q}")
    def slot(dst, src): return (3 * dst + (src if src < dst else src - 1)) * 2048
    X = 44
    for q in range(4):
        if q: a.label(f"L_k2_x{q}")
        for qq in range(4):
            if qq == q: continue
            for hh in range(2):
                a(f"ds_write_b128 v{vXW}, {vr(Y0+8*qq+4*hh,4)} offset:{slot(qq,q)+1024*hh}")
        stamp(a, 9)
        sync(3)
        stamp(a, 10)
        R = {}
        for src in range(4):
            if src == q: R[src] = Y0 + 8 * q; continue
            R[src] = X + 8 * src
            for hh in range(2):
                a(f"ds_read_b128 {vr(X+8*src+4*hh,4)}, v{vXW} offset:{slot(q,src)+1024*hh}")
        a("s_waitcnt lgkmcnt(0)")
        so = [sA, sA, sB, sB, sC, sC, sE, sE]
        for rr in range(8):
            a(f"v_add_f32 v{R[0]+rr}, v{R[0]+rr}, v{R[1]+rr}")
            a(f"v_add_f32 v{R[2]+rr}, v{R[2]+rr}, v{R[3]+rr}")
            a(f"v_cvt_pk_bf16_f32 v{U+rr}, v{R[0]+rr}, v{R[2]+rr}")
            if rr & 3 == 3: a(f"buffer_store_dwordx4 {vr(U+rr-3,4)}, v{vG}, s[{SWS}:{SWS+3}], s{sA} offen offset:{1024*(rr>>2)} {OPT.get('st_y', 'sc1')}")
        if q < 3: a("s_branch L_k2_cend")
    a.label("L_k2_cend")
    stamp(a, 11)
    stamp_out(a, 1, SWS, sWV)
    a.label("L_k2_end")
    a("s_endpgm")
    return a.l, 112

K3_LDS = 65536 + 16384
def gen_k3():
    a = Asm()
    SWS, SW, SO = 4, 8, 12
    sWV, sTT, sCB, sT, sT2, sTS, sKH, sOO, sWO, sM0 = 16, 17, 18, 19, 20, 21, 22, 23, 24, 25
    a("s_cmp_ge_u32 s2, 256")
    a("s_cbranch_scc1 L_k3_end")
    stamp_init(a)
    srd(a, SWS, 112, 0); srd(a, SW, 88, 0); srd(a, SO, 96, 0)
    srd_fin(a, SWS, wsz()); srd_fin(a, SW, 512 * 512 * 2); srd_fin(a, SO, 2048 * 1024 * 2)
    vL, vL16, vW, vT, vT2, vA0, vA1, vXW, vXR, vST = 1, 2, 3, 4, 5, 6, 7, 8, 9, 10
    D = [12, 28]; OFR = 44; WF = 108
    a(f"v_and_b32 v{vL}, 63, v0")
    a(f"v_lshrrev_b32 v{vT}, 6, v0")
    a(f"v_readfirstlane_b32 s{sWV}, v{vT}")
    a(f"v_lshlrev_b32 v{vL16}, 4, v{vL}")
    a(f"s_and_b32 s{sT}, s2, 7")
    a(f"s_lshr_b32 s{sT2}, s2, 3")
    a(f"s_lshl_b32 s{sTT}, s{sT}, 2")
    a(f"s_and_b32 s{sT}, s{sT2}, 3")
    a(f"s_add_u32 s{sTT}, s{sTT}, s{sT}")
    a(f"s_lshr_b32 s{sCB}, s{sT2}, 2")
    a(f"s_and_b32 s{sTS}, s{sWV}, 1")
    a(f"s_lshr_b32 s{sKH}, s{sWV}, 1")
    a(f"s_lshl_b32 s{sTT}, s{sTT}, 1")
    a(f"s_add_u32 s{sTT}, s{sTT}, s{sTS}")
    a(f"s_lshl_b32 s{sOO}, s{sTT}, 15")
    a(f"s_lshl_b32 s{sT}, s{sKH}, 14")
    a(f"s_add_u32 s{sOO}, s{sOO}, s{sT}")
    a(f"s_add_u32 s{sOO}, s{sOO}, {OF}")
    a(f"v_bfe_u32 v{vT}, v{vL}, 4, 1")
    a(f"v_lshlrev_b32 v{vT}, 2, v{vT}")
    a(f"v_and_b32 v{vT2}, 7, v{vL}")
    a(f"v_xor_b32 v{vT}, v{vT}, v{vT2}")
    a(f"v_lshlrev_b32 v{vT}, 4, v{vT}")
    a(f"v_lshrrev_b32 v{vT2}, 3, v{vL}")
    a(f"v_lshl_add_u32 v{vW}, v{vT2}, 10, v{vT}")
    a(f"s_lshl_b32 s{sT}, s{sKH}, 8")
    a(f"s_lshl_b32 s{sT2}, s{sTS}, 5")
    a(f"s_add_u32 s{sT}, s{sT}, s{sT2}")
    a(f"s_lshl_b32 s{sM0}, s{sT}, 7")
    a(f"s_lshl_b32 s{sWO}, s{sT}, 10")
    a(f"s_lshl_b32 s{sT2}, s{sCB}, 7")
    a(f"s_add_u32 s{sWO}, s{sWO}, s{sT2}")
    stamp(a, 8)
    a("s_waitcnt lgkmcnt(0)")
    stamp(a, 9)
    for g in range(4):
        if g: stamp(a, 9 + g)
        a(f"s_add_u32 s26, s{sCB}, {g}")
        a(f"s_and_b32 s26, s26, 3")
        a(f"s_lshl_b32 s27, s26, 12")
        a(f"s_add_u32 s{sT}, s{sOO}, s27")
        for q in range(4):
            a(f"buffer_load_dwordx4 {vr(OFR+16*g+4*q,4)}, v{vL16}, s[{SWS}:{SWS+3}], s{sT} offen offset:{1024*q}")
        a(f"s_add_u32 m0, s{sM0}, {g*8192}")
        a(f"s_lshl_b32 s27, s26, 16")
        a(f"s_add_u32 s27, s27, s{sWO}")
        for q in range(4):
            a(f"s_add_u32 s{sT}, s27, {q*7168}")
            a(f"buffer_load_dwordx4 v{vW}, s[{SW}:{SW+3}], s{sT} offen offset:{1024*q} lds")
        for q in range(0):
            a(f"buffer_load_dwordx4 {vr(OFR+16*g+4*q,4)}, v{vL16}, s[{SWS}:{SWS+3}], s{sT} offen offset:{1024*q}")
    YR, vYL, vYS, sY = 172, 180, 181, 28
    a(f"v_and_b32 v{vT}, 31, v{vL}")
    a(f"v_lshrrev_b32 v{vT2}, 5, v{vL}")
    a(f"v_lshlrev_b32 v{vYL}, 13, v{vT}")
    a(f"v_lshl_add_u32 v{vYL}, v{vT2}, 4, v{vYL}")
    a(f"s_lshr_b32 s26, s{sTT}, 5")
    a(f"s_lshl_b32 s{sT}, s{sCB}, 6")
    a(f"s_add_u32 s{sT}, s{sT}, s26")
    a(f"s_lshl2_add_u32 s{sT}, s{sT}, s{sWV}")
    a(f"s_bfe_u32 s26, s{sTT}, {1 | (4 << 16)}")
    a(f"s_lshl4_add_u32 s{sT}, s{sT}, s26")
    a(f"s_lshl_b32 s{sT}, s{sT}, 6")
    a(f"s_add_u32 s{sT}, s{sT}, {YT}")
    for i in range(2):
        a(f"buffer_load_dwordx4 {vr(YR+4*i,4)}, v{vYL}, s[{SWS}:{SWS+3}], s{sT} offen offset:{32*i}")
    a(f"v_lshlrev_b32 v{vYS}, 2, v{vT}")
    a(f"v_lshl_add_u32 v{vYS}, v{vT2}, 13, v{vYS}")
    a(f"s_lshr_b32 s26, s{sTT}, 1")
    a(f"s_lshl3_add_u32 s26, s26, s{sWV}")
    a(f"s_lshl_b32 s26, s26, 7")
    a(f"s_add_u32 s26, s26, s{sCB}")
    a(f"s_lshl_b32 s{sY}, s26, 7")
    a(f"s_add_u32 s{sY+1}, s{sY}, 4096")
    a(f"s_add_u32 s{sY+2}, s{sY}, 65536")
    a(f"s_add_u32 s{sY+3}, s{sY}, {65536+4096}")
    yst = [f"buffer_store_dword v{YR+k}, v{vYS}, s[{SO}:{SO+3}], s{sY+(k>>1)} offen offset:{2048*(k&1)} {OPT.get('st_y3', '')}" for k in range(8)]
    stamp(a, 13)
    a(f"v_lshrrev_b32 v{vT}, 5, v{vL}")
    a(f"v_lshlrev_b32 v{vT}, 10, v{vT}")
    a(f"v_bfe_u32 v{vT2}, v{vL}, 2, 2")
    a(f"v_lshl_add_u32 v{vT}, v{vT2}, 7, v{vT}")
    a(f"v_bfe_u32 v{vT2}, v{vL}, 3, 1")
    a(f"v_lshl_add_u32 v{vT}, v{vT2}, 6, v{vT}")
    a(f"v_bfe_u32 v{vT2}, v{vL}, 4, 1")
    a(f"v_lshl_add_u32 v{vT}, v{vT2}, 5, v{vT}")
    a(f"v_and_b32 v{vT2}, 1, v{vL}")
    a(f"v_lshl_add_u32 v{vT}, v{vT2}, 4, v{vT}")
    a(f"v_bfe_u32 v{vT2}, v{vL}, 1, 1")
    a(f"v_lshl_add_u32 v{vT}, v{vT2}, 3, v{vT}")
    a(f"s_mul_i32 s{sT}, s{sKH}, {32768+64}")
    a(f"v_xor_b32 v{vA0}, s{sT}, v{vT}")
    a(f"v_xor_b32 v{vA1}, 64, v{vA0}")
    a(f"s_lshl_b32 s{sT}, s{sWV}, 12")
    a(f"s_add_u32 s{sT}, s{sT}, 65536")
    a(f"v_add_u32 v{vXW}, s{sT}, v{vL16}")
    a(f"s_xor_b32 s{sT}, s{sT}, 8192")
    a(f"v_add_u32 v{vXR}, s{sT}, v{vL16}")
    a(f"v_and_b32 v{vT}, 31, v{vL}")
    a(f"v_lshlrev_b32 v{vT}, 11, v{vT}")
    a(f"v_lshrrev_b32 v{vT2}, 5, v{vL}")
    a(f"v_lshl_add_u32 v{vST}, v{vT2}, 4, v{vT}")
    a(f"s_lshl_b32 s{sOO}, s{sTT}, 16")
    a(f"s_lshl_b32 s{sT}, s{sCB}, 7")
    a(f"s_add_u32 s{sOO}, s{sOO}, s{sT}")
    a(f"s_lshl_b32 s{sT}, s{sKH}, 6")
    a(f"s_add_u32 s{sOO}, s{sOO}, s{sT}")
    def reads(g):
        o = []; b = WF + 32 * (g & 1)
        for ks in range(4):
            for ct, va in enumerate((vA0, vA1)):
                for h in range(2):
                    o.append(f"ds_read_b64_tr_b16 {vr(b+8*ks+4*ct+2*h,2)}, v{va} offset:{g*8192+ks*2048+h*512}")
        return o
    def mfmas(g):
        o = []; b = WF + 32 * (g & 1)
        for ks in range(4):
            for ct in (1, 0):
                cc = "0" if (g == 0 and ks == 0) else vr(D[ct], 16)
                o.append(f"{MF} {vr(D[ct],16)}, {vr(b+8*ks+4*ct,4)}, {vr(OFR+16*g+4*ks,4)}, {cc}")
        return o
    stamp(a, 1)
    a("s_waitcnt vmcnt(26)")
    a("s_barrier")
    stamp(a, 2)
    for x in reads(0): a(x)
    for g in range(4):
        if g < 3:
            a(f"s_waitcnt lgkmcnt(0) vmcnt({8*(2-g)+2})")
            a("s_barrier")
            stamp(a, 3 + g)
            for x in merge(mfmas(g), reads(g + 1)): a(x)
        else:
            a("s_waitcnt lgkmcnt(0) vmcnt(0)")
            for x in merge(mfmas(g), yst): a(x)
    for k in range(4):
        a(f"ds_write_b128 v{vXW}, {vr(D[1]+4*k,4)} offset:{1024*k}")
    a("s_waitcnt lgkmcnt(0)")
    a("s_barrier")
    stamp(a, 6)
    for k in range(4):
        a(f"ds_read_b128 {vr(D[1]+4*k,4)}, v{vXR} offset:{1024*k}")
    a("s_waitcnt lgkmcnt(0)")
    for k in range(8):
        a(f"v_pk_add_f32 {vr(D[0]+2*k,2)}, {vr(D[0]+2*k,2)}, {vr(D[1]+2*k,2)}")
    for k in range(8):
        a(f"v_cvt_pk_bf16_f32 v{OFR+k}, v{D[0]+2*k}, v{D[0]+2*k+1}")
    a(f"buffer_store_dwordx4 {vr(OFR,4)}, v{vST}, s[{SO}:{SO+3}], s{sOO} offen offset:1024 {OPT['st_k3']}")
    a(f"buffer_store_dwordx4 {vr(OFR+4,4)}, v{vST}, s[{SO}:{SO+3}], s{sOO} offen offset:1056 {OPT['st_k3']}")
    stamp(a, 7)
    stamp_out(a, 2, SWS, sWV)
    a.label("L_k3_end")
    a("s_endpgm")
    return a.l, 182

def build(path, extra_empty=0):
    ref = open(f"cdna_kernels/{NAME}.s.ref").read().split("\n")
    head = [l for l in ref if l.startswith(";") and "@launch" not in l]
    ks = [("qkv_kgen_kernel", gen_k1, 512, K1_LDS), ("attn_conv_kernel", gen_k2, 768, K2_LDS), (f"{NAME}_kernel", gen_k3, 256, K3_LDS)]
    out = list(head)
    for n, g, blk, lds in ks:
        out.append(f"; @launch kernel={n} grid=(256,1,1) block=({blk},1,1) lds={lds}")
    for i in range(extra_empty):
        out.append(f"; @launch kernel=empty_kernel grid=(256,1,1) block=(256,1,1) lds=0")
    out += ['.amdgcn_target "amdgcn-amd-amdhsa--gfx950"', ".text"]
    kds = []
    if extra_empty:
        ks = ks + [("empty_kernel", lambda: (["s_endpgm"], 8), 256, 0)]
    for n, g, blk, lds in ks:
        lines, nv = g()
        lines = pad(lines)
        out += [f".globl {n}", ".p2align 8", f".type {n},@function", f"{n}:"]
        out += [l if l.endswith(":") else "    " + l for l in lines]
        nv4 = (nv + 7) // 8 * 8
        kds += [".p2align 6", f".amdhsa_kernel {n}", f"  .amdhsa_next_free_vgpr {nv4}", "  .amdhsa_next_free_sgpr 102",
                f"  .amdhsa_accum_offset {nv4}", "  .amdhsa_group_segment_fixed_size 0", "  .amdhsa_kernarg_size 120",
                "  .amdhsa_user_sgpr_count 2", "  .amdhsa_user_sgpr_kernarg_segment_ptr 1",
                "  .amdhsa_system_sgpr_workgroup_id_x 1", ".end_amdhsa_kernel"]
    out += ['.section .rodata,"a"'] + kds
    open(path, "w").write("\n".join(out) + "\n")

if __name__ == "__main__":
    build(f"cdna_kernels/{NAME}.s")
```

```python
import sys, struct, math
sys.path.insert(0, "gen")
from asmlib import *

NAME = "concat_heads__ssm_conv_s4__mha_block__prompt"
QF = 0x000000; KV = 0x200000; OF = 0x600000; KC = 0x800000; UT = 0xA00000; YT = 0xC00000; WS_SIZE = 0xE00000
PROF = False; PROF_OFF = 0xE00000
LOG2E = 1.4426950408889634
def f32(x): return struct.unpack("<I", struct.pack("<f", x))[0]
def hx(x): return "0x%08x" % (x & 0xffffffff)
def swap23(m): return (m & ~12) | ((m & 4) << 1) | ((m & 8) >> 1)
MF = "v_mfma_f32_32x32x16_bf16"
OPT = dict(st_k1="sc1", st_kc="sc1", st_k2="sc1", st_k3="")

def srd(a, base, koff, size):
    a(f"s_load_dwordx2 s[{base}:{base+1}], s[0:1], {koff}")
def srd_fin(a, base, size):
    a(f"s_mov_b32 s{base+2}, {hx(size)}")
    a(f"s_mov_b32 s{base+3}, 0x00020000")

def wsz(): return WS_SIZE + (0x100000 if PROF else 0)
def stamp(a, i):
    if PROF: a(f"s_memrealtime s[{70+2*i}:{71+2*i}]")
def stampc(a, i):
    if PROF: a(f"s_memtime s[{70+2*i}:{71+2*i}]")
def stamp_init(a):
    if PROF:
        for i in range(70, 100): a(f"s_mov_b32 s{i}, 0")
        stamp(a, 0)
        a("s_memtime s[100:101]")
def stamp_out(a, kidx, sws, swv, wait=True):
    if not PROF: return
    if wait: a("s_waitcnt vmcnt(0)")
    stamp(a, 14)
    a("s_memtime s[68:69]")
    a("s_waitcnt lgkmcnt(0)")
    a("s_sub_u32 s69, s68, s100")
    a(f"s_lshl_b32 s68, s2, 4")
    a(f"s_add_u32 s68, s68, s{swv}")
    a(f"s_lshl_b32 s68, s68, 6")
    a(f"s_add_u32 s68, s68, {PROF_OFF + kidx*0x40000}")
    for i in range(15): a(f"v_mov_b32 v{4+i}, s{70+2*i}")
    a("v_mov_b32 v19, s69")
    for k in range(4): a(f"buffer_store_dwordx4 v[{4+4*k}:{7+4*k}], off, s[{sws}:{sws+3}], s68 offset:{16*k}")

def cmul(dst, x, y, t):
    return [f"v_pk_mul_f32 {vr(t,2)}, {vr(x,2)}, {vr(y,2)} op_sel:[0,0] op_sel_hi:[0,1]",
            f"v_pk_fma_f32 {vr(dst,2)}, {vr(x,2)}, {vr(y,2)}, {vr(t,2)} op_sel:[1,1,0] op_sel_hi:[1,0,1] neg_lo:[0,1,0]"]

K1_SLOT = 32768; K1_KTW = 60 * 272; K1_RB = 4 * K1_KTW; K1_LDS = K1_RB + 3 * K1_SLOT

def gen_k1():
    a = Asm()
    SWS = 12
    sWV, sTB, sHQ, sXO, sWO, sM0, sT, sT2 = 44, 45, 46, 47, 48, 49, 50, 51
    sC0 = 56
    vL = 1; vT0 = 7; vT1 = 23
    SX, SW = 4, 8
    DRY = OPT.get("k1dry", 1)
    def tbhq():
        a(f"s_bfe_u32 s{sTB}, s2, {1 | (2 << 16)}")
        a(f"s_lshl_b32 s{sTB}, s{sTB}, 3")
        a(f"s_bfe_u32 s{sT}, s2, {3 | (3 << 16)}")
        a(f"s_add_u32 s{sTB}, s{sTB}, s{sT}")
        a(f"s_and_b32 s{sHQ}, s2, 1")
        a(f"s_lshl_b32 s{sHQ}, s{sHQ}, 2")
        a(f"s_lshr_b32 s{sT2}, s2, 6")
        a(f"s_add_u32 s{sHQ}, s{sHQ}, s{sT2}")
    SP0, SLD, SDS = 16, 40, 4
    sD, sMH, sKT, sMASK, sTAB, sG = 52, 53, 54, 58, 60, 44
    sSL, sDL, sCN, sIT = 61, 62, 63, 3
    PA, PB, PC, PLD, PDS = 72, 74, 76, 78, 21
    a("s_cmp_ge_u32 s2, 256")
    a("s_cbranch_scc1 L_k1_end")
    a(f"v_lshrrev_b32 v7, 6, v0")
    a(f"v_and_b32 v1, 63, v0")
    a(f"v_readfirstlane_b32 s{sWV}, v7")
    sRL = 40
    if DRY:
        a(f"s_mov_b32 s{sIT}, 64")
        a(f"s_mov_b32 s{sCN}, 64")
    a(f"s_cmp_ge_u32 s{sWV}, 4")
    a("s_cbranch_scc1 L_k1_ld")
    a("s_setprio 3")
    a(f"s_load_dwordx16 s[{SP0}:{SP0+15}], s[0:1], 8")
    srd(a, SWS, 112, 0)
    stamp_init(a)
    SEGC = OPT.get("segc", []); SEGL = OPT.get("segl", [2, 3, 4, 6]); SEGS = sorted(SEGC + SEGL)
    TAILW = OPT.get("tailw", 1)
    def walk(segs):
        a("s_mov_b64 exec, 0")
        for p in range(3):
            a(f"s_cmp_eq_u32 s{sWV}, {p}")
            a(f"s_cbranch_scc1 L_k1_g{segs[p]}")
        a(f"s_branch L_k1_g{segs[3]}")
    if DRY and SEGC:
        walk(SEGC)
        a.label("L_k1_go")
        a("s_mov_b64 exec, -1")
    stamp(a, 1)
    for r in range(72, 80, 2): a(f"v_mov_b64 {vr(r,2)}, 0")
    a(f"v_mov_b32 v{PDS}, 0")
    a(f"s_lshl_b32 s{sT}, s2, 8")
    a(f"v_add_lshl_u32 v{vT0}, v0, s{sT}, 1")
    a(f"s_lshr_b32 s{sD}, s{sG}, 1")
    a(f"s_lshl1_add_u32 s{sD}, s2, s{sD}")
    a(f"v_lshlrev_b32_e64 v{vT1}, 1, s{sD}")
    a("s_waitcnt lgkmcnt(0)")
    a(f"global_load_short_d16_hi v{PLD}, v{vT1}, s[{SP0+12}:{SP0+13}]")
    for i in range(6):
        a(f"global_load_short_d16_hi v{72+i}, v{vT0}, s[{SP0+2*i}:{SP0+2*i+1}]")
    a(f"s_andn2_b32 exec_lo, 1, s{sG}")
    a(f"s_mov_b32 exec_hi, 0")
    a(f"global_load_short_d16_hi v{PDS}, v{vT1}, s[{SP0+14}:{SP0+15}]")
    a("s_mov_b64 exec, -1")
    a("s_setprio 0")
    LEND = OPT.get("k1lend", 0)
    if not LEND: a("s_branch L_k1_g0")
    i_ld0 = len(a.l)
    a.label("L_k1_ld")
    srd(a, SX, 72, 0); srd(a, SW, 80, 0)
    if PROF: srd(a, SWS, 112, 0)
    stamp_init(a)
    tbhq()
    srd_fin(a, SX, 2048 * 512 * 2); srd_fin(a, SW, 512 * 1536 * 2)
    if PROF: srd_fin(a, SWS, wsz())
    a(f"s_and_b32 s{sWV}, s{sWV}, 3")
    vX = 2; vW = 4
    a(f"s_setprio {OPT.get('k1lprio', 2)}")
    sC0R = 52
    a(f"s_lshl_b32 s{sT2}, s{sT2}, 1")
    a(f"s_add_u32 s{sC0R}, s{sT}, s{sT2}")
    a(f"v_lshrrev_b32 v{vT0}, 4, v{vL}")
    a(f"v_and_b32 v{vT1}, 7, v{vL}")
    a(f"v_xor_b32 v{vT0}, v{vT0}, v{vT1}")
    a(f"v_lshlrev_b32 v{vT0}, 4, v{vT0}")
    a(f"v_lshrrev_b32 v5, 3, v{vL}")
    a(f"v_lshl_add_u32 v{vX}, v5, 10, v{vT0}")
    a(f"v_xor_b32 v{vT0}, 64, v{vX}")
    a(f"v_add_u32 v{vX+1}, 7168, v{vT0}")
    a(f"v_bfe_u32 v{vT0}, v{vL}, 4, 1")
    a(f"v_lshlrev_b32 v{vT0}, 2, v{vT0}")
    a(f"v_xor_b32 v{vT0}, v{vT0}, v{vT1}")
    a(f"v_mul_u32_u24 v5, 3072, v5")
    a(f"v_lshl_add_u32 v{vW}, v{vT0}, 4, v5")
    a(f"s_lshl_b32 s{sXO}, s{sTB}, 2")
    a(f"s_add_u32 s{sXO}, s{sXO}, s{sWV}")
    a(f"s_lshl_b32 s{sXO}, s{sXO}, 14")
    a(f"s_mul_i32 s{sWO}, s{sWV}, {16*3072}")
    a(f"s_lshl_b32 s{sT}, s{sHQ}, 7")
    a(f"s_add_u32 s{sWO}, s{sWO}, s{sT}")
    a(f"s_lshl_b32 s{sM0}, s{sWV}, 13")
    a(f"s_add_u32 s{sM0}, s{sM0}, {K1_RB}")
    sN, sME = 53, 54
    a(f"s_add_u32 s{sME}, s{sM0}, {3*K1_SLOT}")
    a(f"s_mov_b32 s{sN}, 0")
    if DRY:
        walk(SEGL)
        a.label("L_k1_ld2")
        a("s_mov_b64 exec, -1")
    stamp(a, 10)
    a("s_waitcnt lgkmcnt(0)")
    stamp(a, 1)
    if PROF: a("s_mov_b32 s55, 0")
    a.label("L_k1_ll")
    a(f"s_and_b32 s{sT2}, s{sC0R}, 7")
    a(f"s_lshl_b32 s{sT}, s{sT2}, 7")
    a(f"s_add_u32 s{sT}, s{sT}, s{sXO}")
    a(f"s_mov_b32 m0, s{sM0}")
    a(f"s_mul_i32 s{sT2}, s{sT2}, {64*3072}")
    for q in range(2):
        a(f"buffer_load_dwordx4 v{vX+q}, s[{SX}:{SX+3}], s{sT} offen offset:{q*1024} lds")
    a(f"s_add_u32 m0, s{sM0}, 2048")
    a(f"s_add_u32 s{sT}, s{sT2}, s{sWO}")
    for st in range(3):
        a(f"buffer_load_dwordx4 v{vW}, s[{SW}:{SW+3}], s{sT} offen offset:{st*1024} lds")
    a(f"s_add_u32 m0, s{sM0}, 5120")
    a(f"s_add_u32 s{sT}, s{sT}, {8*3072}")
    for st in range(3):
        a(f"buffer_load_dwordx4 v{vW}, s[{SW}:{SW+3}], s{sT} offen offset:{st*1024} lds")
    a(f"s_add_u32 s{sC0R}, s{sC0R}, 1")
    a(f"s_add_u32 s{sM0}, s{sM0}, {K1_SLOT}")
    a(f"s_cmp_eq_u32 s{sM0}, s{sME}")
    a(f"s_cselect_b32 s{sT}, {3*K1_SLOT}, 0")
    a(f"s_sub_u32 s{sM0}, s{sM0}, s{sT}")
    a(f"s_add_u32 s{sN}, s{sN}, 1")
    B0AT = OPT.get("k1b0at", 2)
    NI = OPT.get("k1ni", 2)
    a(f"s_cmp_lg_u32 s{sN}, {B0AT}")
    a("s_cbranch_scc1 L_k1_l1")
    stamp(a, 12)
    a("s_barrier")
    a.label("L_k1_l1")
    a(f"s_cmp_lt_u32 s{sN}, {NI}")
    a("s_cbranch_scc1 L_k1_ll")
    if NI == 3:
        a(f"s_cmp_gt_u32 s{sN}, {NI}")
        a("s_cbranch_scc1 L_k1_l2")
        a("s_waitcnt vmcnt(16)")
        stamp(a, 13)
        a("s_barrier")
        a.label("L_k1_l2")
    if PROF:
        a("s_waitcnt lgkmcnt(0)")
        a("s_mov_b32 m0, s55")
        a("s_add_u32 s55, s55, 2")
        a("s_movreld_b32 s74, s66")
    a(f"s_cmp_lt_u32 s{sN}, 8")
    a("s_waitcnt vmcnt(8)")
    if PROF: a("s_memrealtime s[66:67]")
    a("s_barrier")
    a("s_cbranch_scc1 L_k1_ll")
    a("s_waitcnt vmcnt(0)")
    stamp(a, 11)
    a("s_barrier")
    if PROF: a(f"s_add_u32 s{sWV}, s{sWV}, 4")
    stamp_out(a, 0, SWS, sWV)
    a.label("L_k1_end")
    a("s_endpgm")
    ldcode = []
    if LEND:
        ldcode = a.l[i_ld0:]; del a.l[i_ld0:]
    def ret(n):
        o = [x for x in SEGS if x <= n]
        return None if not o else "L_k1_go" if o[-1] in SEGC else "L_k1_ld2"
    def cut(n):
        if DRY and n in SEGS:
            if ret(n-1): a(f"s_cbranch_execz {ret(n-1)}")
            a.label(f"L_k1_g{n}")
    def guard(lst, lab):
        if DRY: a(f"s_cbranch_execz {lab}")
        for x in lst: a(x)
        if DRY and lab not in ("L_k1_go", "L_k1_ld2"): a.label(lab)
    a.label("L_k1_g0")
    srd_fin(a, SWS, wsz())
    vXA, vWA, vKB, vKA, vST, vSV = 8, 12, 13, 14, 18, 19
    ACC = 24; BUF = [72, 88, 152, 168]; KD = 136
    a(f"s_and_b32 s{sMH}, s{sG}, 1")
    a(f"s_mul_i32 s{sKT}, s{sG}, {K1_KTW}")
    a(f"s_mov_b32 m0, s{sKT}")
    a(f"s_andn2_b32 s{sT}, s{sG}, 1")
    a(f"s_mul_i32 s{sKT}, s{sT}, {K1_KTW}")
    a(f"v_lshrrev_b32 v5, 5, v{vL}")
    a(f"v_lshl_add_u32 v6, v5, 4, s{sKT}")
    a(f"v_and_b32 v{vT0}, 31, v{vL}")
    a(f"v_mul_u32_u24 v{vT1}, 272, v{vT0}")
    a(f"v_add_u32 v{vKB}, v{vT1}, v6")
    RE, RG, R8, R4 = 32, 40, 48, 56
    def hrow(tile, m):
        c = swap23(m); al = c >> 3; i = c & 7; aa = 4 * tile + al
        if aa == 0: return RE + i
        if aa == 1: return [RG + 1, RG + 1, RG, R4 + 1, R4 + 1, R4 + 1, R8, R8 + 1][i]
        if aa in (2, 3): return [RG, RG, RG, R4, R4, R4, R8, R8][i] + aa
        return (R8 if i >= 5 else RG) + aa
    tab = {t: [sum((hrow(t, 8 * q + m) - 32) << (8 * m) for m in range(8)) for q in range(4)] for t in range(2)}
    kinds = {}
    for t in range(2):
        val = 0
        for m in range(32):
            r = hrow(t, m)
            val |= ((r - 32) >> 3) << (2 * m)
        kinds[t] = val
    a(f"s_cmp_eq_u32 s{sMH}, 1")
    for w in range(2):
        a(f"s_mov_b32 s{sTAB+w}, {hx(kinds[0] >> (32*w))}")
        a(f"s_cselect_b32 s{sTAB+w}, {hx(kinds[1] >> (32*w))}, s{sTAB+w}")
    lows = {}
    for t in range(2):
        lo = [0, 0]
        for m in range(32):
            lo[m >> 4] |= ((hrow(t, m) - 32) & 7) << (4 * (m & 15))
        lows[t] = lo
    sLW = 64
    for hi in range(2):
        for w in range(2):
            d = (sTAB + 2 + w) if hi == 0 else (sLW + w)
            a(f"s_mov_b32 s{d}, {hx(lows[0][hi] >> (32*w))}")
            a(f"s_cselect_b32 s{d}, {hx(lows[1][hi] >> (32*w))}, s{d}")
    a(f"s_cselect_b32 s{sMASK}, 0xaaaaaaaa, 0")
    a(f"s_mov_b32 s{sMASK+1}, s{sMASK}")
    a(f"v_and_b32 v{vT1}, 15, v{vL}")
    a(f"v_lshlrev_b32 v{vT1}, 2, v{vT1}")
    a(f"v_cmp_lt_u32 vcc, 15, v{vT0}")
    a(f"v_lshrrev_b64 v[64:65], v{vT1}, s[{sTAB+2}:{sTAB+3}]")
    a(f"v_lshrrev_b64 v[66:67], v{vT1}, s[{sLW}:{sLW+1}]")
    a(f"v_lshlrev_b32 v{vT0}, 1, v{vT0}")
    a(f"v_cndmask_b32 v64, v64, v66, vcc")
    a(f"v_lshrrev_b64 v[66:67], v{vT0}, s[{sTAB}:{sTAB+1}]")
    a(f"v_and_b32 v64, 7, v64")
    a(f"v_and_b32 v66, 3, v66")
    a(f"v_lshl_add_u32 v64, v66, 3, v64")
    a(f"v_mad_u32_u24 v{vKA}, v64, s{sC0}, v6") if False else None
    a(f"v_mul_u32_u24 v64, 272, v64")
    a(f"v_add3_u32 v{vKA}, v64, v6, s{sC0}") if False else None
    a(f"v_add_u32 v{vKA}, v64, v6")
    sKO = 55
    a(f"s_lshl_b32 s{sT}, s{sD}, 12")
    a(f"s_lshl_b32 s{sKO}, s{sMH}, 11")
    a(f"s_add_u32 s{sKO}, s{sKO}, s{sT}")
    a(f"s_add_u32 s{sKO}, s{sKO}, {KC}")
    sTS, sHP = sMH, 60
    a(f"s_lshr_b32 s{sHP}, s{sWV}, 1")
    a(f"v_and_b32 v{vT0}, 15, v{vL}")
    a(f"v_bfe_u32 v{vT1}, v{vL}, 1, 3")
    a(f"v_xor_b32 v{vT1}, v{vT1}, v5")
    a(f"v_lshlrev_b32 v{vT1}, 4, v{vT1}")
    a(f"v_lshl_add_u32 v{vT0}, v{vT0}, 7, v{vT1}")
    a(f"v_bfe_u32 v{vT1}, v{vL}, 4, 1")
    a(f"v_lshl_add_u32 v{vT0}, v{vT1}, 13, v{vT0}")
    a(f"s_lshl_b32 s{sC0}, s{sTS}, 14")
    a(f"s_add_u32 s{sC0}, s{sC0}, {K1_RB}")
    for s in range(1, 4):
        a(f"v_xor_b32 v{vXA+s}, {32*s}, v{vT0}")
    a(f"v_add_u32 v{vXA}, s{sC0}, v{vT0}")
    for s in range(1, 4):
        a(f"v_add_u32 v{vXA+s}, s{sC0}, v{vXA+s}")
    cut(1)
    a(f"v_mul_u32_u24 v{vT0}, 3072, v5")
    a(f"v_bfe_u32 v{vT1}, v{vL}, 2, 2")
    a(f"v_lshl_add_u32 v{vT0}, v{vT1}, 7, v{vT0}")
    a(f"v_bfe_u32 v{vT1}, v{vL}, 3, 1")
    a(f"v_xor_b32 v{vT1}, s{sHP}, v{vT1}")
    a(f"v_lshl_add_u32 v{vT0}, v{vT1}, 6, v{vT0}")
    a(f"v_bfe_u32 v{vT1}, v{vL}, 4, 1")
    a(f"v_lshl_add_u32 v{vT0}, v{vT1}, 5, v{vT0}")
    a(f"v_and_b32 v{vT1}, 1, v{vL}")
    a(f"v_lshl_add_u32 v{vT0}, v{vT1}, 4, v{vT0}")
    a(f"v_bfe_u32 v{vT1}, v{vL}, 1, 1")
    a(f"v_lshl_add_u32 v{vT0}, v{vT1}, 3, v{vT0}")
    a(f"v_add_u32 v{vWA}, {2048+K1_RB}, v{vT0}")
    a(f"v_lshlrev_b32 v{vST}, 4, v{vL}")
    vSK = vST
    if OPT.get("kperm", 1):
        vSK = 20
        a(f"v_lshrrev_b32 v{vT1}, 1, v{vL}")
        a(f"v_xor_b32 v{vT1}, v{vT1}, v{vL}")
        a(f"v_bfe_u32 v{vT1}, v{vT1}, 2, 1")
        a(f"v_mul_u32_u24 v{vT1}, 192, v{vT1}")
        a(f"v_xor_b32 v{vSK}, v{vT1}, v{vST}")
    a(f"v_bfe_u32 v{vT1}, v{vL}, 4, 1")
    a(f"v_lshlrev_b32 v{vT1}, 17, v{vT1}")
    a(f"v_lshl_add_u32 v{vT1}, v5, 9, v{vT1}")
    a(f"v_and_b32 v{vT0}, 15, v{vL}")
    a(f"v_lshl_add_u32 v{vSV}, v{vT0}, 4, v{vT1}")
    tbhq()
    a(f"s_lshl_b32 s{sT}, s{sHQ}, 1")
    a(f"s_add_u32 s{sT}, s{sT}, s{sHP}")
    a(f"s_lshl_b32 s{sT}, s{sT}, 17")
    a(f"s_lshl_b32 s{sT2}, s{sTB}, 1")
    a(f"s_add_u32 s{sT2}, s{sT2}, s{sTS}")
    a(f"s_lshl_b32 s{sT2}, s{sT2}, 10")
    a(f"s_add_u32 s{sXO}, s{sT}, s{sT2}")
    a(f"s_add_u32 s{sWO}, s{sXO}, 65536")
    a(f"s_lshl_b32 s{sT}, s{sXO}, 1")
    a(f"s_add_u32 s{sT}, s{sT}, {KV}")
    a(f"s_add_u32 s{sT2}, s{sT}, 131072")
    for r in list(range(ACC, ACC + 48, 2)) + list(range(KD, BUF[3] + 16, 2)):
        a(f"v_mov_b64 {vr(r,2)}, 0")
    a(f"s_mov_b32 s{sSL}, 0")
    a(f"s_mov_b32 s{sCN}, 0")
    a(f"s_mov_b32 s{sIT}, 0")
    a(f"s_mov_b32 s{sKT}, {K1_SLOT}")
    cut(2)
    DT, Z, E1, E4, E8, E64, G1 = 79, 80, 84, 86, 88, 90, 92
    CA = [94, 96, 98, 100]; CE, CG, P8, P4 = 102, 104, 106, 108
    TT = [110, 112, 114, 116, 118, 120, 122, 124]
    CV = list(range(126, 134))
    l2e_hi = struct.unpack("<f", struct.pack("<f", LOG2E))[0]
    a(f"s_mov_b32 s{sC0}, {hx(f32(LOG2E))}")
    a(f"s_mov_b32 s{sC0+1}, {hx(f32(LOG2E - l2e_hi))}")
    a(f"v_mov_b32 v{CE}, 1.0")
    a(f"v_mov_b32 v{CE+1}, 0")
    a(f"v_mov_b32 v{CG}, 1.0")
    a(f"v_mov_b32 v{CG+1}, 0")
    stamp(a, 2)
    a("s_waitcnt vmcnt(1)")
    stamp(a, 3)
    m = []
    m.append(f"v_mul_f32 v120, s{sC0}, v{PLD}")
    m.append(f"v_fma_f32 v121, v{PLD}, s{sC0}, -v120")
    m.append(f"v_exp_f32 v122, v120")
    m.append(f"v_fma_f32 v121, v{PLD}, s{sC0+1}, v121")
    m.append(f"v_mul_f32 v121, {hx(f32(math.log(2.0)))}, v121")
    m.append(f"v_fma_f32 v122, v122, v121, v122")
    m.append(f"v_cvt_pk_bf16_f32 v122, v122, v122")
    m.append(f"v_lshlrev_b32 v{DT}, 16, v122")
    m.append(f"v_mul_f32 v{Z}, v{DT}, v{PA}")
    m.append(f"v_mul_f32 v{Z+1}, v{DT}, v{PA+1}")
    m.append(f"v_mul_f32 v{PB}, v{DT}, v{PB}")
    m.append(f"v_mul_f32 v{PB+1}, v{DT}, v{PB+1}")
    m.append(f"v_mul_f32 v{Z}, s{sC0}, v{Z}")
    m.append(f"v_mul_f32 v{Z+1}, {hx(f32(1.0/(2*math.pi)))}, v{Z+1}")
    m += cmul(CA[0], PC, PB, TT[6])
    def direct(dst, lg, t):
        o = []
        if lg == 0:
            o.append(f"v_exp_f32 v{t}, v{Z}")
            o.append(f"v_fract_f32 v{t+1}, v{Z+1}")
        else:
            o.append(f"v_ldexp_f32 v{t}, v{Z}, {lg}")
            o.append(f"v_ldexp_f32 v{t+1}, v{Z+1}, {lg}")
            o.append(f"v_exp_f32 v{t}, v{t}")
            o.append(f"v_fract_f32 v{t+1}, v{t+1}")
        o.append(f"v_cos_f32 v{dst}, v{t+1}")
        o.append(f"v_sin_f32 v{dst+1}, v{t+1}")
        o.append(f"v_pk_mul_f32 {vr(dst,2)}, {vr(dst,2)}, {vr(t,2)} op_sel:[0,0] op_sel_hi:[1,0]")
        return o
    E128 = P4
    m += merge(direct(E64, 6, TT[0]), direct(E128, 7, TT[1]), direct(E8, 3, TT[2]), direct(G1, 8, TT[3]),
               direct(E1, 0, TT[4]), direct(E4, 2, TT[5]))
    m += merge(cmul(CA[1], CA[0], E64, TT[0]), cmul(CA[2], CA[0], E128, TT[1]))
    m += cmul(CA[3], CA[2], E64, TT[0])
    for x in m: a(x)
    def put(row, src, neg, r):
        return [f"v_cvt_pk_bf16_f32 v{r}, v{src}, {'-' if neg else ''}v{src+1}", f"ds_write_addtid_b32 v{r} offset:{row*272}"]
    cut(3)
    a.label("L_k1_m")
    ch = [put(8 * c, CA[c], False, CV[c]) + cmul(CA[c], CA[c], E8, TT[c]) for c in range(4)]
    ch.append(put(RE, CE, True, CV[4]) + cmul(CE, CE, E1, TT[4]))
    ch.append(cmul(P8, CG, E8, TT[5]) + put(RG, CG, True, CV[5]) + put(R8, P8, True, CV[6]))
    a(f"s_cmp_gt_u32 s{sIT}, 3")
    a("s_cbranch_scc1 L_k1_m2")
    for x in cmul(P4, CG, E4, TT[6]) + put(R4, P4, True, CV[7]): a(x)
    a.label("L_k1_m2")
    body = merge(*ch) + cmul(CG, CG, G1, TT[7])
    for x in body[:-2]: a(x)
    a(f"s_add_u32 s{sIT}, s{sIT}, 1")
    a(body[-2])
    a("s_add_u32 m0, m0, 272")
    a(f"s_cmp_lt_u32 s{sIT}, 8")
    a(body[-1])
    a("s_cbranch_scc1 L_k1_m")
    a(f"s_sub_u32 m0, m0, {8*272}")
    E2 = CE
    for x in merge(cmul(E2, E1, E1, TT[0]), cmul(P4, G1, E4, TT[1])): a(x)
    for x in merge(cmul(P8, G1, E2, TT[0]) + put(RG, P8, True, CV[0]), cmul(CG, P4, E2, TT[1]) + put(R8, CG, True, CV[1])): a(x)
    a(f"s_mov_b32 s{sC0}, {hx(f32(0.25*LOG2E))}")
    a(f"s_mov_b32 s{sC0+1}, {hx(f32(0.25*LOG2E))}")
    stamp(a, 4)
    guard(["s_waitcnt vmcnt(0) lgkmcnt(0)", "s_barrier"], ret(3))
    if DRY: a.label("L_k1_g4")
    KFR = [72 + 8 * i for i in range(8)]
    def rk(n, nxt):
        t, ks = n & 1, n >> 1; r = KFR[n + 4 * nxt]
        return [f"ds_read_b128 {vr(r,4)}, v{vKA} offset:{32*272+t*K1_KTW+32*ks+64*nxt}",
                f"ds_read_b128 {vr(r+4,4)}, v{vKB} offset:{t*K1_KTW+32*ks+64*nxt}"]
    def mk_(n):
        r = KFR[n]
        return f"{MF} {vr(KD,16)}, {vr(r,4)}, {vr(r+4,4)}, {vr(KD,16)}"
    for n in range(4):
        for x in rk(n, 0): a(x)
    a.label("L_k1_p")
    for n in range(4):
        for x in rk(n, 1): a(x)
        a(f"s_waitcnt lgkmcnt(8)")
        a(mk_(n))
    a(f"v_add_u32 v{vKA}, 128, v{vKA}")
    a(f"v_add_u32 v{vKB}, 128, v{vKB}")
    a(f"s_add_u32 s{sIT}, s{sIT}, 1")
    a(f"s_cmp_lt_u32 s{sIT}, 10")
    for n in range(4):
        for x in rk(n, 0): a(x)
        a(f"s_waitcnt lgkmcnt(8)")
        a(mk_(4 + n))
    a("s_cbranch_scc1 L_k1_p")
    KO = 104
    kfin = [f"v_add_f32 v{KD}, v{KD}, v{PDS}",
            f"v_cndmask_b32 v{KD+4}, v{KD+4}, v{KD+5}, s[{sMASK}:{sMASK+1}]",
            f"v_cndmask_b32 v{KD+12}, v{KD+12}, v{KD+13}, s[{sMASK}:{sMASK+1}]"]
    kfin += [f"v_cvt_pk_bf16_f32 v{KO+k}, v{KD+2*k}, v{KD+2*k+1}" for k in range(8)]
    kst = [f"buffer_store_dwordx4 {vr(KO,4)}, v{vST}, s[{SWS}:{SWS+3}], s{sKO} offen {OPT.get('st_kc','')}",
           f"buffer_store_dwordx4 {vr(KO+4,4)}, v{vST}, s[{SWS}:{SWS+3}], s{sKO} offen offset:1024 {OPT.get('st_kc','')}"]
    cut(5)
    for x in kfin: a(x)
    if DRY: a(f"s_cbranch_execz {ret(5)}")
    for x in kst: a(x)
    if PROF:
        a("s_mov_b32 m0, 0")
        a("s_memrealtime s[66:67]")
    def rd(ks):
        b = BUF[ks]
        o = [f"ds_read_b128 {vr(b,4)}, v{vXA+ks}"]
        for st in range(3):
            for hh in range(2):
                o.append(f"ds_read_b64_tr_b16 {vr(b+4+4*st+2*hh,2)}, v{vWA} offset:{ks*8192+st*1024+hh*512}")
        return o
    upd = [f"s_add_u32 s{sSL}, s{sSL}, 1", f"s_cmp_eq_u32 s{sSL}, 3", f"s_cselect_b32 s{sSL}, 0, s{sSL}",
           f"s_cselect_b32 s{sDL}, {hx(-2*K1_SLOT)}, s{sKT}"]
    upd += [f"v_add_u32 v{r}, s{sDL}, v{r}" for r in range(vXA, vXA + 5)]
    upd += [f"s_add_u32 s{sCN}, s{sCN}, 1", f"s_cmp_lt_u32 s{sCN}, 8"]
    def mf(ks):
        b = BUF[ks]; o = []
        x = vr(b, 4)
        for st in range(3):
            w = vr(b + 4 + 4 * st, 4); d = vr(ACC + 16 * st, 16)
            o.append(f"{MF} {d}, {w}, {x}, {d}" if st < 2 else f"{MF} {d}, {x}, {w}, {d}")
        return o
    def gaps(ms, groups):
        for m_, g in zip(ms, groups):
            a(m_)
            for x in g: a(x)
    a.label("L_k1_loop")
    a("s_waitcnt lgkmcnt(0)")
    if PROF:
        a("s_movreld_b32 s80, s66")
        a("s_mov_b64 exec, -1")
        a("s_add_u32 m0, m0, 2")
    a("s_barrier")
    a.label("L_k1_g6")
    R = rd(0) + rd(1) + rd(2) + rd(3)
    for x in R[0:2]: a(x)
    gaps(mf(2), [R[2:5], R[5:8], R[8:11]])
    gaps(mf(3), [R[11:14], R[14:17], R[17:20]])
    a("s_waitcnt lgkmcnt(13)")
    gaps(mf(0), [R[20:23], R[23:26], R[26:28]])
    a("s_waitcnt lgkmcnt(14)")
    gaps(mf(1), [upd[:5] + (["s_memrealtime s[66:67]"] if PROF else []), upd[5:], []])
    a("s_cbranch_scc1 L_k1_loop")
    guard(["s_waitcnt lgkmcnt(0)"], "L_k1_t0" if TAILW else ret(6))
    if not TAILW: DRY = 0
    O = 72
    qfin = [f"v_pk_mul_f32 {vr(ACC+2*k,2)}, {vr(ACC+2*k,2)}, s[{sC0}:{sC0+1}]" for k in range(8)]
    qfin += [f"v_cvt_pk_bf16_f32 v{O+k}, v{ACC+2*k}, v{ACC+2*k+1}" for k in range(8)]
    qfin += [f"buffer_store_dwordx4 {vr(O,4)}, v{vST}, s[{SWS}:{SWS+3}], s{sXO} offen {OPT['st_k1']}",
             f"buffer_store_dwordx4 {vr(O+4,4)}, v{vST}, s[{SWS}:{SWS+3}], s{sWO} offen {OPT['st_k1']}"]
    kk = [f"v_cvt_pk_bf16_f32 v{O+8+k}, v{ACC+16+2*k}, v{ACC+16+2*k+1}" for k in range(8)]
    kk += [f"buffer_store_dwordx4 {vr(O+8,4)}, v{vSK}, s[{SWS}:{SWS+3}], s{sT} offen {OPT['st_k1']}",
           f"buffer_store_dwordx4 {vr(O+12,4)}, v{vSK}, s[{SWS}:{SWS+3}], s{sT2} offen {OPT['st_k1']}"]
    vv = [f"v_cvt_pk_bf16_f32 v{O+16+k}, v{ACC+32+2*k}, v{ACC+32+2*k+1}" for k in range(8)]
    vv += [f"buffer_store_dwordx4 {vr(O+16,4)}, v{vSV}, s[{SWS}:{SWS+3}], s{sT} offen offset:1024 {OPT['st_k1']}",
           f"buffer_store_dwordx4 {vr(O+20,4)}, v{vSV}, s[{SWS}:{SWS+3}], s{sT} offen offset:1280 {OPT['st_k1']}"]
    m2, m3 = mf(2), mf(3)
    for x in (m2[0], m3[0], m2[1], m3[1]): a(x)
    gaps([m2[2], m3[2]], [qfin[:6], qfin[6:-2]])
    guard(qfin[-2:], "L_k1_t1")
    for x in kk[:-2]: a(x)
    guard(kk[-2:], "L_k1_t2")
    for x in vv[:-2]: a(x)
    guard(vv[-2:], ret(7))
    stamp(a, 13)
    stamp_out(a, 0, SWS, sWV)
    a("s_endpgm")
    a.l += ldcode
    return a.l, 184

K2_LDS = 163840
CA0 = 131072; CH = 13600
EOFF = 64; OOFF = 64 + 4096 + 64; UOFF = OOFF + 4096
FLG = 163840 - 64
BAR_ITERS = dict()

def gen_k2():
    a = Asm()
    SWS, SU, SO, SWO = 4, 8, 12, 40
    sWV, sH, sQB, sT, sT2, sIT, sOFF, sPASS, sD0 = 16, 17, 18, 19, 20, 21, 22, 23, 24
    sVM = 26
    sA, sB, sC, sE = 32, 33, 34, 35
    a("s_cmp_ge_u32 s2, 256")
    a("s_cbranch_scc1 L_k2_end")
    srd(a, SWS, 112, 0); srd(a, SU, 0, 0); srd(a, SWO, 88, 0)
    stamp_init(a)
    vL = 1; vL16 = 2
    a(f"v_lshrrev_b32 v3, 6, v0")
    a(f"v_and_b32 v{vL}, 63, v0")
    a(f"v_readfirstlane_b32 s{sWV}, v3")
    a(f"v_lshlrev_b32 v{vL16}, 4, v{vL}")
    srd_fin(a, SWS, wsz())
    a(f"s_and_b32 s{sT}, s2, 7")
    a(f"s_lshr_b32 s{sT2}, s2, 3")
    a(f"s_lshl_b32 s{sH}, s{sT}, 2")
    a(f"s_and_b32 s{sQB}, s{sT2}, 3")
    a(f"s_add_u32 s{sH}, s{sH}, s{sQB}")
    a(f"s_lshr_b32 s{sQB}, s{sT2}, 2")
    a(f"s_lshl_b32 s{sA}, s{sH}, 17")
    a(f"s_add_u32 s{sA}, s{sA}, {KV}")
    a(f"s_cmp_ge_u32 s{sWV}, 8")
    a("s_cbranch_scc1 L_k2_conv")
    from attnloop import loop_body, align8, Q, NM, S, P, O, KF, VF, vA, vN, vT, vMK
    sSTEP, sEND, sMID, sFIN = 36, 37, 38, 39
    a(f"s_lshl_b32 s{sQB}, s{sQB}, 3")
    a(f"s_add_u32 s{sQB}, s{sQB}, s{sWV}")
    a(f"s_lshl_b32 s{sT}, s{sH}, 16")
    a(f"s_lshl_b32 s{sT2}, s{sQB}, 10")
    a(f"s_add_u32 s{sT}, s{sT}, s{sT2}")
    a(f"s_lshl_b32 s{sB}, s{sWV}, 13")
    a(f"s_add_u32 s{sC}, s{sA}, s{sB}")
    a(f"s_add_u32 s{sE}, s{sC}, 4096")
    a(f"s_mov_b32 m0, s{sB}")
    a("s_waitcnt lgkmcnt(0)")
    a(f"buffer_load_dwordx4 {vr(Q,4)}, v{vL16}, s[{SWS}:{SWS+3}], s{sT} offen")
    for k in range(4):
        a(f"buffer_load_dwordx4 v{vL16}, s[{SWS}:{SWS+3}], s{sC} offen offset:{1024*k} lds")
    a(f"s_add_u32 m0, s{sB}, 4096")
    for k in range(4):
        a(f"buffer_load_dwordx4 v{vL16}, s[{SWS}:{SWS+3}], s{sE} offen offset:{1024*k} lds")
    a(f"s_mov_b32 s{sVM}, 0x0000ffff")
    a(f"s_mov_b32 s{sVM+1}, 0x0000ffff")
    a(f"v_and_b32 v{vT}, 27, v{vL}")
    a(f"v_cmp_eq_u32 vcc, 16, v{vT}")
    a(f"v_mov_b32 v{vT}, 0x3f803f80")
    a(f"v_cndmask_b32 v{vT}, 0, v{vT}, vcc")
    for r in range(16): a(f"v_mov_b32 v{VF[0]+r}, v{vT}")
    a(f"v_mov_b32 v{vMK}, 0x1ffff")
    a(f"s_cmp_lt_u32 s{sWV}, 4")
    a(f"s_movk_i32 s{sSTEP}, 8192")
    a(f"s_cselect_b32 s{sSTEP}, s{sSTEP}, -8192")
    if OPT.get("prio", 6):
        a("s_cbranch_scc1 L_k2_old")
        a("s_setprio 1")
        a.label("L_k2_old")
    a(f"s_mul_i32 s{sMID}, s{sSTEP}, {2*(OPT.get('prio', 6) or 6)}")
    a(f"s_add_u32 s{sMID}, s{sMID}, s{sB}")
    a(f"s_lshl_b32 s{sFIN}, s{sSTEP}, 4")
    a(f"s_add_u32 s{sFIN}, s{sFIN}, s{sB}")
    X1 = f"s_mov_b64 exec, s[{sVM}:{sVM+1}]"; X2 = "s_mov_b64 exec, -1"
    SEQ = OPT.get("seq", "e e e S2 s e e W X V V x M1 K e e e e e e S3 e e e e e")
    SPARSE = "S2" in SEQ
    def body(first):
        tag = "a" if first else "b"
        cc = "0" if first else vr(NM, 16)
        for r in range(16): a(f"v_mov_b32 v{O+r}, 0")
        if SPARSE:
            for r in range(8, 16, 2): a(f"v_mov_b64 {vr(S[1]+r,2)}, 0")
            a(f"v_mov_b32 v{P}, {OPT.get('sidx', '0xdddddddd')}")
        else:
            for r in range(4, 8): a(f"v_mov_b32 v{P+r}, 0")
        a(f"v_add_u32 v{vA}, s{sB}, v{vL16}")
        a(f"s_mov_b32 s{sOFF}, s{sB}")
        if first:
            a(f"s_lshl_b32 s{sEND}, s{sSTEP}, 2")
            a(f"s_add_u32 s{sEND}, s{sEND}, s{sB}")
            a("s_mov_b64 vcc, 0")
            if PROF: a("s_mov_b32 m0, 0")
            stamp(a, 1)
            a("s_waitcnt vmcnt(4)")
            stamp(a, 3)
            stampc(a, 12)
        else:
            a(f"s_mov_b32 s{sEND}, s{sFIN}")
        a(f"ds_read_b128 {vr(KF[0],4)}, v{vA}")
        a(f"ds_read_b128 {vr(KF[1],4)}, v{vA} offset:2048")
        a(X1)
        a(f"ds_read_b128 {vr(VF[0],4)}, v{vA} offset:1024")
        a(f"ds_read_b128 {vr(VF[0]+4,4)}, v{vA} offset:1280")
        a(X2)
        a("s_waitcnt lgkmcnt(3)")
        a(f"{MF} {vr(S[0],16)}, {vr(KF[0],4)}, {vr(Q,4)}, {cc}")
        if first: a("s_waitcnt vmcnt(0)")
        a("s_waitcnt lgkmcnt(0)")
        a("s_nop 7")
        a("s_nop 3")
        a(".p2align 6")
        a.label(f"L_k2_loop{tag}")
        hooks = {7: [f"s_cmp_lg_u32 s{sOFF}, s{sEND}"]}
        if first: hooks[2] = ["s_cbranch_vccz L_k2_bar", "L_k2_barx:"]
        if first and PROF:
            hooks[0] = ["s_memtime s[64:65]", "s_memrealtime s[66:67]"]
            hooks[3] = ["s_movreld_b32 s48, s64", "s_movreld_b32 s49, s66", "s_add_u32 m0, m0, 2", "s_nop 0"]
        for x in align8(loop_body(SEQ, cc, sOFF, sSTEP, vL16, X1, X2, hooks)): a(x)
        a(f"s_cbranch_scc1 L_k2_loop{tag}")
        if first:
            a(f"s_cmp_lg_u32 s{sEND}, s{sFIN}")
            a(f"s_cbranch_scc1 L_k2_seg")
        if SPARSE: a(f"v_smfmac_f32_32x32x32_bf16 {vr(O,16)}, {vr(VF[1]+4,4)}, {vr(S[1]+8,8)}, v{P}")
        else: a(f"{MF} {vr(O,16)}, {vr(VF[1]+4,4)}, {vr(P+4,4)}, {vr(O,16)}")
        a("s_waitcnt lgkmcnt(0)")
    body(True)
    stamp(a, 4)
    stampc(a, 13)
    a(f"s_mov_b32 s{sT}, {hx(f32(2.0**-40))}")
    a(f"s_mov_b32 s{sT2}, {hx(f32(2.0**40))}")
    a(f"v_mov_b32 v{vT}, v{O+8}")
    for r in range(8): a(f"v_fma_f32 v{vT}, v{O+r}, 0, v{vT}")
    a(f"v_cmp_nle_f32 vcc, s{sT}, v{vT}")
    a(f"v_cmp_nge_f32 s[28:29], s{sT2}, v{vT}")
    a("s_nop 3")
    a(f"s_or_b64 vcc, vcc, s[28:29]")
    a("s_cbranch_scc1 L_k2_slow")
    a.label("L_k2_fin")
    a(f"v_rcp_f32 v{vT}, v{O+8}")
    a(f"s_lshl_b32 s{sT}, s{sQB}, 5")
    a(f"s_add_u32 s{sT}, s{sT}, s{sH}")
    a(f"s_lshl_b32 s{sT}, s{sT}, 10")
    a(f"s_add_u32 s{sT}, s{sT}, {OF}")
    for r in range(8): a(f"v_mul_f32 v{O+r}, v{O+r}, v{vT}")
    for r in range(4): a(f"v_cvt_pk_bf16_f32 v{P+r}, v{O+2*r}, v{O+2*r+1}")
    a(f"buffer_store_dwordx4 {vr(P,4)}, v{vL16}, s[{SWS}:{SWS+3}], s{sT} offen {OPT['st_k2']}")
    stamp_out(a, 1, SWS, sWV)
    if PROF:
        a(f"s_add_u32 s68, s68, {2*0x40000}")
        for i in range(16): a(f"v_mov_b32 v{24+i}, s{48+i}")
        for k in range(4): a(f"buffer_store_dwordx4 v[{24+4*k}:{27+4*k}], off, s[{SWS}:{SWS+3}], s68 offset:{16*k}")
    a("s_endpgm")
    a.label("L_k2_bar")
    a("s_barrier")
    a("s_mov_b64 vcc, -1")
    a("s_branch L_k2_barx")
    a.label("L_k2_seg")
    a(f"s_cmp_eq_u32 s{sEND}, s{sMID}")
    a(f"s_cbranch_scc1 L_k2_seg2")
    a(f"s_mov_b32 s{sEND}, s{sMID}")
    a.label("L_k2_poll")
    a(f"v_mov_b32 v{vT}, {FLG+4}")
    a(f"ds_read_b32 v{vT}, v{vT}")
    a("s_waitcnt lgkmcnt(0)")
    a(f"v_readfirstlane_b32 s{sT}, v{vT}")
    a(f"s_cmp_lt_u32 s{sT}, 4")
    a("s_cbranch_scc1 L_k2_poll")
    stamp(a, 5)
    a("s_branch L_k2_loopa")
    a.label("L_k2_seg2")
    a("s_setprio 0")
    stamp(a, 6)
    a(f"s_mov_b32 s{sEND}, s{sFIN}")
    a("s_branch L_k2_loopa")
    a.label("L_k2_slow")
    a(f"v_mov_b32 v{vA}, v{vL16}")
    a(f"v_mov_b32 v{vT}, 0xff800000")
    a(f"s_mov_b32 s{sIT}, 0")
    a.label("L_k2_max")
    a(f"ds_read_b128 {vr(KF[0],4)}, v{vA}")
    a(f"v_add_u32 v{vA}, 2048, v{vA}")
    a("s_waitcnt lgkmcnt(0)")
    a(f"{MF} {vr(S[0],16)}, {vr(KF[0],4)}, {vr(Q,4)}, 0")
    a(f"s_add_u32 s{sIT}, s{sIT}, 1")
    for r in range(8): a(f"v_max3_f32 v{vT}, v{S[0]+2*r}, v{S[0]+2*r+1}, v{vT}")
    a(f"s_cmp_lt_u32 s{sIT}, 64")
    a("s_cbranch_scc1 L_k2_max")
    a(f"v_xor_b32 v{vA}, 32, v{vL}")
    a(f"v_lshlrev_b32 v{vA}, 2, v{vA}")
    a(f"ds_bpermute_b32 v{vN}, v{vA}, v{vT}")
    a("s_waitcnt lgkmcnt(0)")
    a(f"v_max_f32 v{vT}, v{vT}, v{vN}")
    for r in range(16): a(f"v_sub_f32 v{NM+r}, 0, v{vT}")
    a(X1)
    for r in range(4, 8): a(f"v_mov_b32 v{VF[1]+r}, 0")
    a(X2)
    body(False)
    a("s_nop 7")
    a("s_nop 3")
    a("s_branch L_k2_fin")
    a.label("L_k2_conv")
    sQ, sCC, sHW, sCB = 36, 37, 38, 39
    U = 4; Y0 = 12; Y1 = 28; FR = 44; vG = 76; vUW = 77; vZ = 78; vZA = 92; vFX = 80
    vAL, vAH, vB0, vB1, vJ, vHF, vT, vT2, vXW, vFL, vONE = 81, 82, 83, 84, 85, 86, 87, 88, 89, 90, 91
    a(f"s_setprio {OPT.get('cprio', 3)}")
    a(f"s_sub_u32 s{sQ}, s{sWV}, 8")
    sKB, sKG = 44, 45
    a(f"s_lshl_b32 s{sKB}, s{sQ}, 12")
    a(f"s_add_u32 s{sKB}, s{sKB}, 65536")
    a(f"s_mov_b32 s{sKG}, s{sA}")
    a(f"v_mov_b32 v{vZ}, 0")
    a(f"v_mov_b32 v{vZ+1}, 0")
    a(f"v_mov_b32 v{vFL}, {FLG}")
    a(f"v_mov_b32 v{vONE}, 1")
    a(f"ds_write_b64 v{vFL}, {vr(vZ,2)}")
    a("s_waitcnt lgkmcnt(0)")
    def kvdma(rnd):
        a(f"s_add_u32 m0, s{sKB}, {rnd*16384}")
        a(f"s_add_u32 s46, s{sKG}, m0")
        for k in range(4):
            a(f"buffer_load_dwordx4 v{vL16}, s[{SWS}:{SWS+3}], s46 offen offset:{1024*k} lds")
    NPRE = OPT.get("npre", 0)
    for rnd in range(NPRE): kvdma(rnd)
    if OPT.get("noconv"):
        a("s_barrier")
        for rnd in range(NPRE, 4): kvdma(rnd)
        a("s_waitcnt vmcnt(0)")
        a("s_mov_b64 exec, 1")
        a(f"ds_add_u32 v{vFL}, v{vONE} offset:4")
        a("s_endpgm")
    srd_fin(a, SU, 2048 * 512 * 2); srd_fin(a, SWO, 512 * 512 * 2)
    a(f"s_lshl_b32 s{sD0}, s{sT}, 5")
    a(f"s_add_u32 s{sD0}, s{sD0}, s{sT2}")
    a(f"s_lshl_b32 s{sPASS}, s{sT2}, 14")
    a(f"s_lshr_b32 s{sCC}, s{sQ}, 1")
    a(f"s_and_b32 s{sHW}, s{sQ}, 1")
    a(f"s_mul_i32 s{sCB}, s{sCC}, {CH}")
    a(f"s_add_u32 s{sCB}, s{sCB}, {CA0}")
    a(f"s_mul_i32 s{sE}, s{sHW}, {OOFF-EOFF}")
    a(f"s_add_u32 s{sE}, s{sE}, s{sCB}")
    a(f"s_add_u32 s{sE}, s{sE}, {EOFF}")
    a(f"s_lshl_b32 s{sT2}, s{sD0}, 1")
    a(f"s_add_u32 s{sT2}, s{sT2}, s{sCC}")
    a(f"s_lshl_b32 s{sT2}, s{sT2}, 12")
    a(f"s_add_u32 s{sT2}, s{sT2}, {KC}")
    a(f"s_lshl_b32 s{sIT}, s{sHW}, 1")
    a(f"s_sub_u32 s{sT2}, s{sT2}, s{sIT}")
    a(f"s_mov_b32 s47, s{sE}")
    a(f"s_mov_b32 s48, s{sT2}")
    a(f"v_and_b32 v{vJ}, 31, v{vL}")
    a(f"v_lshrrev_b32 v{vHF}, 5, v{vL}")
    a(f"s_lshl_b32 s{sT}, s{sD0}, 2")
    a(f"v_lshlrev_b32 v{vT}, 12, v{vHF}")
    a(f"v_lshl_add_u32 v{vG}, v{vJ}, 15, v{vT}")
    a(f"s_lshl_b32 s{sA}, s{sCC}, 20")
    a(f"s_lshl_b32 s{sB}, s{sHW}, 14")
    a(f"s_add_u32 s{sA}, s{sA}, s{sB}")
    a(f"s_add_u32 s{sB}, s{sA}, s{sT}")
    a(f"s_add_u32 s{sC}, s{sB}, 8192")
    a(f"s_mul_i32 s{sT2}, s{sHW}, 80")
    a(f"s_add_u32 s{sT2}, s{sT2}, s{sCB}")
    a(f"s_add_u32 s{sT2}, s{sT2}, {UOFF+64*80-64}")
    a(f"v_min_u32 v{vT}, 35, v{vL}")
    a(f"v_lshl_add_u32 v{vZA}, v{vT}, 2, s{sT2}")
    a(f"s_sub_u32 s{sT2}, s{sE}, 64")
    a(f"v_lshl_add_u32 v{vT2}, v{vL}, 2, s{sT2}")
    a(f"v_cmp_gt_u32 vcc, 16, v{vL}")
    a(f"v_cndmask_b32 v{vZA}, v{vZA}, v{vT2}, vcc")
    a(f"ds_write_b32 v{vZA}, v{vZ}")
    a(f"s_lshl_b32 s{sT2}, s{sHW}, 1")
    a(f"s_add_u32 s{sT2}, s{sT2}, s{sE}")
    a(f"s_sub_u32 s{sT2}, s{sT2}, 2")
    a(f"v_mov_b32 v{vFX}, s{sT2}")
    a(f"v_mul_u32_u24 v{vT}, 80, v{vJ}")
    a(f"v_lshl_add_u32 v{vT}, v{vHF}, 3, v{vT}")
    a(f"s_mul_i32 s{sE}, s{sCC}, {80*32}")
    a(f"s_lshl_b32 s{sT2}, s{sHW}, 5")
    a(f"s_add_u32 s{sE}, s{sE}, s{sT2}")
    a(f"s_sub_u32 s{sE}, {CA0+UOFF+80*63+62-22}, s{sE}")
    a(f"v_sub_u32 v{vUW}, s{sE}, v{vT}")
    stamp(a, 1)
    a("s_barrier")
    stamp(a, 2)
    for rnd in range(NPRE, 4): kvdma(rnd)
    a(f"s_mov_b32 m0, s47")
    for k in range(4):
        a(f"buffer_load_dwordx4 v{vL16}, s[{SWS}:{SWS+3}], s48 offen offset:{1024*k} lds")
    a("s_waitcnt vmcnt(4)")
    a("s_mov_b64 exec, 1")
    a(f"ds_add_u32 v{vFL}, v{vONE} offset:4")
    a("s_mov_b64 exec, -1")
    stamp(a, 3)
    for rr in range(8):
        a(f"buffer_load_dword v{U+rr}, v{vG}, s[{SU}:{SU+3}], s{sB if rr < 4 else sC} offen offset:{1024*(rr&3)}")
    a(f"v_and_b32 v{vT}, 1, v{vJ}")
    a(f"v_and_b32 v{vT2}, 30, v{vJ}")
    a(f"v_lshlrev_b32 v{vT2}, 1, v{vT2}")
    a(f"v_lshl_add_u32 v{vT2}, v{vHF}, 4, v{vT2}")
    a(f"v_mul_u32_u24 v{vT}, {OOFF-EOFF}, v{vT}")
    a(f"v_sub_u32 v{vT2}, v{vT2}, v{vT}")
    a(f"s_lshl_b32 s{sT2}, s{sHW}, 10")
    a(f"s_add_u32 s{sT2}, s{sT2}, s{sCB}")
    a(f"s_add_u32 s{sT2}, s{sT2}, {OOFF-60}")
    a(f"v_add_u32 v{vAL}, s{sT2}, v{vT2}")
    a(f"v_add_u32 v{vAH}, 2048, v{vAL}")
    a(f"v_mul_u32_u24 v{vT}, 80, v{vJ}")
    a(f"v_lshlrev_b32 v{vT2}, 4, v{vHF}")
    a(f"v_sub_u32 v{vT}, v{vT2}, v{vT}")
    a(f"s_mul_i32 s{sT2}, s{sHW}, {16*80}")
    a(f"s_add_u32 s{sT2}, s{sT2}, s{sCB}")
    a(f"s_add_u32 s{sT2}, s{sT2}, {UOFF+80*31}")
    a(f"v_add_u32 v{vB1}, s{sT2}, v{vT}")
    a(f"s_add_u32 s{sE}, s{sCB}, {UOFF+64*80}")
    a(f"v_add_u32 v{vB0}, {32*80}, v{vB1}")
    a(f"v_min_u32 v{vB0}, s{sE}, v{vB0}")
    a(f"v_add_u32 v{vXW}, {CA0}, v{vL16}")
    for r in range(32): a(f"v_mov_b32 v{Y0+r}, 0")
    stamp(a, 4)
    a("s_waitcnt vmcnt(8)")
    a(f"ds_write_b16 v{vFX}, v{vZ}")
    for rr in range(8):
        a(f"s_waitcnt vmcnt({7-rr})")
        off = 2 * (11 - ((rr & 3) + 8 * (rr >> 2)))
        a(f"ds_write_b16 v{vUW}, v{U+rr} offset:{off}")
        a(f"ds_write_b16_d16_hi v{vUW}, v{U+rr} offset:{off+CH}")
    a(f"s_lshl_b32 s{sT2}, s{sQ}, 12")
    a(f"s_add_u32 s{sT2}, s{sT2}, s{sPASS}")
    if not OPT.get("nopf"):
        for k in range(4):
            a(f"buffer_load_dwordx4 {vr(96+4*k,4)}, v{vL16}, s[{SWO}:{SWO+3}], s{sT2} offen offset:{1024*k}")
    nsync = [0]
    def sync(n):
        nsync[0] += 1
        a("s_waitcnt lgkmcnt(0)")
        a("s_mov_b64 exec, 1")
        a(f"ds_add_u32 v{vFL}, v{vONE}")
        a.label(f"L_k2_spin{nsync[0]}")
        a(f"ds_read_b32 v{vT}, v{vFL}")
        a("s_waitcnt lgkmcnt(0)")
        a(f"v_readfirstlane_b32 s{sT2}, v{vT}")
        a(f"s_cmp_lt_u32 s{sT2}, {4*n}")
        a(f"s_cbranch_scc1 L_k2_spin{nsync[0]}")
        a("s_mov_b64 exec, -1")
    stamp(a, 5)
    sync(1)
    stamp(a, 6)
    a(f"s_mov_b32 s{sIT}, 0")
    a.label("L_k2_cloop")
    for st in range(4):
        f = FR + 16 * (st & 1)
        bo = (st >> 1) * 80 + (st & 1) * 32
        a(f"ds_read2_b32 {vr(f,2)}, v{vAL} offset0:{8*st} offset1:{8*st+1}")
        a(f"ds_read2_b32 {vr(f+2,2)}, v{vAL} offset0:{8*st+2} offset1:{8*st+3}")
        a(f"ds_read_b128 {vr(f+12,4)}, v{vB1} offset:{bo}")
        a("s_waitcnt lgkmcnt(0)")
        a(f"{MF} {vr(Y1,16)}, {vr(f,4)}, {vr(f+12,4)}, {vr(Y1,16)}")
        a(f"ds_read_b128 {vr(f+8,4)}, v{vB0} offset:{bo}")
        a("s_waitcnt lgkmcnt(0)")
        a(f"{MF} {vr(Y0,16)}, {vr(f,4)}, {vr(f+8,4)}, {vr(Y0,16)}")
        a(f"ds_read2_b32 {vr(f+4,2)}, v{vAH} offset0:{8*st} offset1:{8*st+1}")
        a(f"ds_read2_b32 {vr(f+6,2)}, v{vAH} offset0:{8*st+2} offset1:{8*st+3}")
        if st == 3:
            a(f"v_add_u32 v{vAL}, 128, v{vAL}")
            a(f"v_add_u32 v{vAH}, 128, v{vAH}")
            a(f"v_add_u32 v{vB1}, 160, v{vB1}")
            a(f"v_add_u32 v{vB0}, 160, v{vB0}")
            a(f"v_min_u32 v{vB0}, s{sE}, v{vB0}")
            a(f"s_add_u32 s{sIT}, s{sIT}, 1")
            a(f"s_cmp_lt_u32 s{sIT}, 8")
        a("s_waitcnt lgkmcnt(0)")
        a(f"{MF} {vr(Y1,16)}, {vr(f+4,4)}, {vr(f+8,4)}, {vr(Y1,16)}")
    a("s_cbranch_scc1 L_k2_cloop")
    stamp(a, 7)
    sync(2)
    stamp(a, 8)
    a(f"v_lshlrev_b32 v{vG}, 4, v{vHF}")
    a(f"v_lshl_add_u32 v{vG}, v{vJ}, 5, v{vG}")
    a(f"s_lshl2_add_u32 s{sA}, s{sD0}, s{sQ}")
    a(f"s_lshl_b32 s{sA}, s{sA}, 11")
    a(f"s_add_u32 s{sA}, s{sA}, {YT}")
    for q in range(1, 4):
        a(f"s_cmp_eq_u32 s{sQ}, {q}")
        a(f"s_cbranch_scc1 L_k2_x{q}")
    def slot(dst, src): return (3 * dst + (src if src < dst else src - 1)) * 2048
    X = 44
    for q in range(4):
        if q: a.label(f"L_k2_x{q}")
        for qq in range(4):
            if qq == q: continue
            for hh in range(2):
                a(f"ds_write_b128 v{vXW}, {vr(Y0+8*qq+4*hh,4)} offset:{slot(qq,q)+1024*hh}")
        stamp(a, 9)
        sync(3)
        stamp(a, 10)
        R = {}
        for src in range(4):
            if src == q: R[src] = Y0 + 8 * q; continue
            R[src] = X + 8 * src
            for hh in range(2):
                a(f"ds_read_b128 {vr(X+8*src+4*hh,4)}, v{vXW} offset:{slot(q,src)+1024*hh}")
        a("s_waitcnt lgkmcnt(0)")
        so = [sA, sA, sB, sB, sC, sC, sE, sE]
        for rr in range(8):
            a(f"v_add_f32 v{R[0]+rr}, v{R[0]+rr}, v{R[1]+rr}")
            a(f"v_add_f32 v{R[2]+rr}, v{R[2]+rr}, v{R[3]+rr}")
            a(f"v_cvt_pk_bf16_f32 v{U+rr}, v{R[0]+rr}, v{R[2]+rr}")
            if rr & 3 == 3: a(f"buffer_store_dwordx4 {vr(U+rr-3,4)}, v{vG}, s[{SWS}:{SWS+3}], s{sA} offen offset:{1024*(rr>>2)} {OPT.get('st_y', 'sc1')}")
        if q < 3: a("s_branch L_k2_cend")
    a.label("L_k2_cend")
    stamp(a, 11)
    stamp_out(a, 1, SWS, sWV)
    a.label("L_k2_end")
    a("s_endpgm")
    return a.l, 112

K3_LDS = 65536 + 16384
def gen_k3():
    a = Asm()
    SWS, SW, SO = 4, 8, 12
    sWV, sTT, sCB, sT, sT2, sTS, sKH, sOO, sWO, sM0 = 16, 17, 18, 19, 20, 21, 22, 23, 24, 25
    a("s_cmp_ge_u32 s2, 256")
    a("s_cbranch_scc1 L_k3_end")
    stamp_init(a)
    srd(a, SWS, 112, 0); srd(a, SW, 88, 0); srd(a, SO, 96, 0)
    srd_fin(a, SWS, wsz()); srd_fin(a, SW, 512 * 512 * 2); srd_fin(a, SO, 2048 * 1024 * 2)
    vL, vL16, vW, vT, vT2, vA0, vA1, vXW, vXR, vST = 1, 2, 3, 4, 5, 6, 7, 8, 9, 10
    D = [12, 28]; OFR = 44; WF = 108
    a(f"v_and_b32 v{vL}, 63, v0")
    a(f"v_lshrrev_b32 v{vT}, 6, v0")
    a(f"v_readfirstlane_b32 s{sWV}, v{vT}")
    a(f"v_lshlrev_b32 v{vL16}, 4, v{vL}")
    a(f"s_and_b32 s{sT}, s2, 7")
    a(f"s_lshr_b32 s{sT2}, s2, 3")
    a(f"s_lshl_b32 s{sTT}, s{sT}, 2")
    a(f"s_and_b32 s{sT}, s{sT2}, 3")
    a(f"s_add_u32 s{sTT}, s{sTT}, s{sT}")
    a(f"s_lshr_b32 s{sCB}, s{sT2}, 2")
    a(f"s_and_b32 s{sTS}, s{sWV}, 1")
    a(f"s_lshr_b32 s{sKH}, s{sWV}, 1")
    a(f"s_lshl_b32 s{sTT}, s{sTT}, 1")
    a(f"s_add_u32 s{sTT}, s{sTT}, s{sTS}")
    a(f"s_lshl_b32 s{sOO}, s{sTT}, 15")
    a(f"s_lshl_b32 s{sT}, s{sKH}, 14")
    a(f"s_add_u32 s{sOO}, s{sOO}, s{sT}")
    a(f"s_add_u32 s{sOO}, s{sOO}, {OF}")
    a(f"v_bfe_u32 v{vT}, v{vL}, 4, 1")
    a(f"v_lshlrev_b32 v{vT}, 2, v{vT}")
    a(f"v_and_b32 v{vT2}, 7, v{vL}")
    a(f"v_xor_b32 v{vT}, v{vT}, v{vT2}")
    a(f"v_lshlrev_b32 v{vT}, 4, v{vT}")
    a(f"v_lshrrev_b32 v{vT2}, 3, v{vL}")
    a(f"v_lshl_add_u32 v{vW}, v{vT2}, 10, v{vT}")
    a(f"s_lshl_b32 s{sT}, s{sKH}, 8")
    a(f"s_lshl_b32 s{sT2}, s{sTS}, 5")
    a(f"s_add_u32 s{sT}, s{sT}, s{sT2}")
    a(f"s_lshl_b32 s{sM0}, s{sT}, 7")
    a(f"s_lshl_b32 s{sWO}, s{sT}, 10")
    a(f"s_lshl_b32 s{sT2}, s{sCB}, 7")
    a(f"s_add_u32 s{sWO}, s{sWO}, s{sT2}")
    stamp(a, 8)
    a("s_waitcnt lgkmcnt(0)")
    stamp(a, 9)
    for g in range(4):
        if g: stamp(a, 9 + g)
        a(f"s_add_u32 s26, s{sCB}, {g}")
        a(f"s_and_b32 s26, s26, 3")
        a(f"s_lshl_b32 s27, s26, 12")
        a(f"s_add_u32 s{sT}, s{sOO}, s27")
        for q in range(4):
            a(f"buffer_load_dwordx4 {vr(OFR+16*g+4*q,4)}, v{vL16}, s[{SWS}:{SWS+3}], s{sT} offen offset:{1024*q}")
        a(f"s_add_u32 m0, s{sM0}, {g*8192}")
        a(f"s_lshl_b32 s27, s26, 16")
        a(f"s_add_u32 s27, s27, s{sWO}")
        for q in range(4):
            a(f"s_add_u32 s{sT}, s27, {q*7168}")
            a(f"buffer_load_dwordx4 v{vW}, s[{SW}:{SW+3}], s{sT} offen offset:{1024*q} lds")
        for q in range(0):
            a(f"buffer_load_dwordx4 {vr(OFR+16*g+4*q,4)}, v{vL16}, s[{SWS}:{SWS+3}], s{sT} offen offset:{1024*q}")
    YR, vYL, vYS, sY = 172, 180, 181, 28
    a(f"v_and_b32 v{vT}, 31, v{vL}")
    a(f"v_lshrrev_b32 v{vT2}, 5, v{vL}")
    a(f"v_lshlrev_b32 v{vYL}, 13, v{vT}")
    a(f"v_lshl_add_u32 v{vYL}, v{vT2}, 4, v{vYL}")
    a(f"s_lshr_b32 s26, s{sTT}, 5")
    a(f"s_lshl_b32 s{sT}, s{sCB}, 6")
    a(f"s_add_u32 s{sT}, s{sT}, s26")
    a(f"s_lshl2_add_u32 s{sT}, s{sT}, s{sWV}")
    a(f"s_bfe_u32 s26, s{sTT}, {1 | (4 << 16)}")
    a(f"s_lshl4_add_u32 s{sT}, s{sT}, s26")
    a(f"s_lshl_b32 s{sT}, s{sT}, 6")
    a(f"s_add_u32 s{sT}, s{sT}, {YT}")
    for i in range(2):
        a(f"buffer_load_dwordx4 {vr(YR+4*i,4)}, v{vYL}, s[{SWS}:{SWS+3}], s{sT} offen offset:{32*i}")
    a(f"v_lshlrev_b32 v{vYS}, 2, v{vT}")
    a(f"v_lshl_add_u32 v{vYS}, v{vT2}, 13, v{vYS}")
    a(f"s_lshr_b32 s26, s{sTT}, 1")
    a(f"s_lshl3_add_u32 s26, s26, s{sWV}")
    a(f"s_lshl_b32 s26, s26, 7")
    a(f"s_add_u32 s26, s26, s{sCB}")
    a(f"s_lshl_b32 s{sY}, s26, 7")
    a(f"s_add_u32 s{sY+1}, s{sY}, 4096")
    a(f"s_add_u32 s{sY+2}, s{sY}, 65536")
    a(f"s_add_u32 s{sY+3}, s{sY}, {65536+4096}")
    yst = [f"buffer_store_dword v{YR+k}, v{vYS}, s[{SO}:{SO+3}], s{sY+(k>>1)} offen offset:{2048*(k&1)} {OPT.get('st_y3', 'sc1')}" for k in range(8)]
    stamp(a, 13)
    a(f"v_lshrrev_b32 v{vT}, 5, v{vL}")
    a(f"v_lshlrev_b32 v{vT}, 10, v{vT}")
    a(f"v_bfe_u32 v{vT2}, v{vL}, 2, 2")
    a(f"v_lshl_add_u32 v{vT}, v{vT2}, 7, v{vT}")
    a(f"v_bfe_u32 v{vT2}, v{vL}, 3, 1")
    a(f"v_lshl_add_u32 v{vT}, v{vT2}, 6, v{vT}")
    a(f"v_bfe_u32 v{vT2}, v{vL}, 4, 1")
    a(f"v_lshl_add_u32 v{vT}, v{vT2}, 5, v{vT}")
    a(f"v_and_b32 v{vT2}, 1, v{vL}")
    a(f"v_lshl_add_u32 v{vT}, v{vT2}, 4, v{vT}")
    a(f"v_bfe_u32 v{vT2}, v{vL}, 1, 1")
    a(f"v_lshl_add_u32 v{vT}, v{vT2}, 3, v{vT}")
    a(f"s_mul_i32 s{sT}, s{sKH}, {32768+64}")
    a(f"v_xor_b32 v{vA0}, s{sT}, v{vT}")
    a(f"v_xor_b32 v{vA1}, 64, v{vA0}")
    a(f"s_lshl_b32 s{sT}, s{sWV}, 12")
    a(f"s_add_u32 s{sT}, s{sT}, 65536")
    a(f"v_add_u32 v{vXW}, s{sT}, v{vL16}")
    a(f"s_xor_b32 s{sT}, s{sT}, 8192")
    a(f"v_add_u32 v{vXR}, s{sT}, v{vL16}")
    W64 = OPT.get("w64", 1)
    a(f"v_and_b32 v{vT}, {15 if W64 else 31}, v{vL}")
    a(f"v_lshlrev_b32 v{vT}, 11, v{vT}")
    a(f"v_lshrrev_b32 v{vT2}, 5, v{vL}")
    a(f"v_lshl_add_u32 v{vST}, v{vT2}, 4, v{vT}")
    if W64:
        a(f"v_and_b32 v{vT}, 16, v{vL}")
        a(f"v_lshl_add_u32 v{vST}, v{vT}, 1, v{vST}")
    a(f"s_lshl_b32 s{sOO}, s{sTT}, 16")
    a(f"s_lshl_b32 s{sT}, s{sCB}, 7")
    a(f"s_add_u32 s{sOO}, s{sOO}, s{sT}")
    a(f"s_lshl_b32 s{sT}, s{sKH}, 6")
    a(f"s_add_u32 s{sOO}, s{sOO}, s{sT}")
    def reads(g):
        o = []; b = WF + 32 * (g & 1)
        for ks in range(4):
            for ct, va in enumerate((vA0, vA1)):
                for h in range(2):
                    o.append(f"ds_read_b64_tr_b16 {vr(b+8*ks+4*ct+2*h,2)}, v{va} offset:{g*8192+ks*2048+h*512}")
        return o
    def mfmas(g):
        o = []; b = WF + 32 * (g & 1)
        for ks in range(4):
            for ct in (1, 0):
                cc = "0" if (g == 0 and ks == 0) else vr(D[ct], 16)
                o.append(f"{MF} {vr(D[ct],16)}, {vr(b+8*ks+4*ct,4)}, {vr(OFR+16*g+4*ks,4)}, {cc}")
        return o
    stamp(a, 1)
    a("s_waitcnt vmcnt(26)")
    a("s_barrier")
    stamp(a, 2)
    for x in reads(0): a(x)
    for g in range(4):
        if g < 3:
            a(f"s_waitcnt lgkmcnt(0) vmcnt({8*(2-g)+2})")
            a("s_barrier")
            stamp(a, 3 + g)
            for x in merge(mfmas(g), reads(g + 1)): a(x)
        else:
            a("s_waitcnt lgkmcnt(0) vmcnt(0)")
            for x in merge(mfmas(g), yst): a(x)
    for k in range(4):
        a(f"ds_write_b128 v{vXW}, {vr(D[1]+4*k,4)} offset:{1024*k}")
    a("s_waitcnt lgkmcnt(0)")
    a("s_barrier")
    stamp(a, 6)
    for k in range(4):
        a(f"ds_read_b128 {vr(D[1]+4*k,4)}, v{vXR} offset:{1024*k}")
    a("s_waitcnt lgkmcnt(0)")
    for k in range(8):
        a(f"v_pk_add_f32 {vr(D[0]+2*k,2)}, {vr(D[0]+2*k,2)}, {vr(D[1]+2*k,2)}")
    for k in (0, 4, 1, 5, 2, 6, 3, 7):
        a(f"v_cvt_pk_bf16_f32 v{OFR+k}, v{D[0]+2*k}, v{D[0]+2*k+1}")
    if W64:
        a(f"s_add_u32 s{sT}, s{sOO}, 32768")
        for k in range(4): a(f"v_permlane16_swap_b32 v{OFR+k}, v{OFR+4+k}")
        a(f"buffer_store_dwordx4 {vr(OFR,4)}, v{vST}, s[{SO}:{SO+3}], s{sOO} offen offset:1024 {OPT['st_k3']}")
        a(f"buffer_store_dwordx4 {vr(OFR+4,4)}, v{vST}, s[{SO}:{SO+3}], s{sT} offen offset:1024 {OPT['st_k3']}")
    else:
        a(f"buffer_store_dwordx4 {vr(OFR,4)}, v{vST}, s[{SO}:{SO+3}], s{sOO} offen offset:1024 {OPT['st_k3']}")
        a(f"buffer_store_dwordx4 {vr(OFR+4,4)}, v{vST}, s[{SO}:{SO+3}], s{sOO} offen offset:1056 {OPT['st_k3']}")
    stamp(a, 7)
    stamp_out(a, 2, SWS, sWV)
    a.label("L_k3_end")
    a("s_endpgm")
    return a.l, 182

def build(path, extra_empty=0):
    ref = open(f"cdna_kernels/{NAME}.s.ref").read().split("\n")
    head = [l for l in ref if l.startswith(";") and "@launch" not in l]
    ks = [("qkv_kgen_kernel", gen_k1, 512, K1_LDS), ("attn_conv_kernel", gen_k2, 768, K2_LDS), (f"{NAME}_kernel", gen_k3, 256, K3_LDS)]
    out = list(head)
    for n, g, blk, lds in ks:
        out.append(f"; @launch kernel={n} grid=(256,1,1) block=({blk},1,1) lds={lds}")
    for i in range(extra_empty):
        out.append(f"; @launch kernel=empty_kernel grid=(256,1,1) block=(256,1,1) lds=0")
    out += ['.amdgcn_target "amdgcn-amd-amdhsa--gfx950"', ".text"]
    kds = []
    if extra_empty:
        ks = ks + [("empty_kernel", lambda: (["s_endpgm"], 8), 256, 0)]
    for n, g, blk, lds in ks:
        lines, nv = g()
        lines = pad(lines)
        out += [f".globl {n}", ".p2align 8", f".type {n},@function", f"{n}:"]
        out += [l if l.endswith(":") else "    " + l for l in lines]
        nv4 = (nv + 7) // 8 * 8
        kds += [".p2align 6", f".amdhsa_kernel {n}", f"  .amdhsa_next_free_vgpr {nv4}", "  .amdhsa_next_free_sgpr 102",
                f"  .amdhsa_accum_offset {nv4}", "  .amdhsa_group_segment_fixed_size 0", "  .amdhsa_kernarg_size 120",
                "  .amdhsa_user_sgpr_count 2", "  .amdhsa_user_sgpr_kernarg_segment_ptr 1",
                "  .amdhsa_system_sgpr_workgroup_id_x 1", ".end_amdhsa_kernel"]
    out += ['.section .rodata,"a"'] + kds
    open(path, "w").write("\n".join(out) + "\n")

if __name__ == "__main__":
    build(f"cdna_kernels/{NAME}.s")
```

```python
import sys, struct, math
sys.path.insert(0, "gen")
from asmlib import *

NAME = "concat_heads__ssm_conv_s4__mha_block__prompt"
QF = 0x000000; KV = 0x200000; OF = 0x600000; KC = 0x800000; UT = 0xA00000; YT = 0xC00000; WS_SIZE = 0xE00000
PROF = False; PROF_OFF = 0xE00000
LOG2E = 1.4426950408889634
def f32(x): return struct.unpack("<I", struct.pack("<f", x))[0]
def hx(x): return "0x%08x" % (x & 0xffffffff)
def swap23(m): return (m & ~12) | ((m & 4) << 1) | ((m & 8) >> 1)
MF = "v_mfma_f32_32x32x16_bf16"
OPT = dict(st_k1="sc1", st_kc="sc1", st_k2="sc1", st_k3="sc1")

def srd(a, base, koff, size):
    a(f"s_load_dwordx2 s[{base}:{base+1}], s[0:1], {koff}")
def srd_fin(a, base, size):
    a(f"s_mov_b32 s{base+2}, {hx(size)}")
    a(f"s_mov_b32 s{base+3}, 0x00020000")

def wsz(): return WS_SIZE + (0x100000 if PROF else 0)
def stamp(a, i):
    if PROF: a(f"s_memrealtime s[{70+2*i}:{71+2*i}]")
def stampc(a, i):
    if PROF: a(f"s_memtime s[{70+2*i}:{71+2*i}]")
def stamp_init(a):
    if PROF:
        for i in range(70, 100): a(f"s_mov_b32 s{i}, 0")
        stamp(a, 0)
        a("s_memtime s[100:101]")
def stamp_out(a, kidx, sws, swv, wait=True):
    if not PROF: return
    if wait: a("s_waitcnt vmcnt(0)")
    stamp(a, 14)
    a("s_memtime s[68:69]")
    a("s_waitcnt lgkmcnt(0)")
    a("s_sub_u32 s69, s68, s100")
    a(f"s_lshl_b32 s68, s2, 4")
    a(f"s_add_u32 s68, s68, s{swv}")
    a(f"s_lshl_b32 s68, s68, 6")
    a(f"s_add_u32 s68, s68, {PROF_OFF + kidx*0x40000}")
    for i in range(15): a(f"v_mov_b32 v{4+i}, s{70+2*i}")
    a("v_mov_b32 v19, s69")
    for k in range(4): a(f"buffer_store_dwordx4 v[{4+4*k}:{7+4*k}], off, s[{sws}:{sws+3}], s68 offset:{16*k}")

def cmul(dst, x, y, t):
    return [f"v_pk_mul_f32 {vr(t,2)}, {vr(x,2)}, {vr(y,2)} op_sel:[0,0] op_sel_hi:[0,1]",
            f"v_pk_fma_f32 {vr(dst,2)}, {vr(x,2)}, {vr(y,2)}, {vr(t,2)} op_sel:[1,1,0] op_sel_hi:[1,0,1] neg_lo:[0,1,0]"]

K1_SLOT = 32768; K1_KTW = 60 * 272; K1_RB = 4 * K1_KTW; K1_LDS = K1_RB + 3 * K1_SLOT

def gen_k1():
    a = Asm()
    SWS = 12
    sWV, sTB, sHQ, sXO, sWO, sM0, sT, sT2 = 44, 45, 46, 47, 48, 49, 50, 51
    sC0 = 56
    vL = 1; vT0 = 7; vT1 = 23
    SX, SW = 4, 8
    DRY = OPT.get("k1dry", 1)
    def tbhq():
        a(f"s_bfe_u32 s{sTB}, s2, {1 | (2 << 16)}")
        a(f"s_lshl_b32 s{sTB}, s{sTB}, 3")
        a(f"s_bfe_u32 s{sT}, s2, {3 | (3 << 16)}")
        a(f"s_add_u32 s{sTB}, s{sTB}, s{sT}")
        a(f"s_and_b32 s{sHQ}, s2, 1")
        a(f"s_lshl_b32 s{sHQ}, s{sHQ}, 2")
        a(f"s_lshr_b32 s{sT2}, s2, 6")
        a(f"s_add_u32 s{sHQ}, s{sHQ}, s{sT2}")
    SP0, SLD, SDS = 16, 40, 4
    sD, sMH, sKT, sMASK, sTAB, sG = 52, 53, 54, 58, 60, 44
    sSL, sDL, sCN, sIT = 61, 62, 63, 3
    PA, PB, PC, PLD, PDS = 72, 74, 76, 78, 21
    a("s_cmp_ge_u32 s2, 256")
    a("s_cbranch_scc1 L_k1_end")
    a(f"v_lshrrev_b32 v7, 6, v0")
    a(f"v_and_b32 v1, 63, v0")
    a(f"v_readfirstlane_b32 s{sWV}, v7")
    sRL = 40
    if DRY:
        a(f"s_mov_b32 s{sIT}, 64")
        a(f"s_mov_b32 s{sCN}, 64")
    a(f"s_cmp_ge_u32 s{sWV}, 4")
    a("s_cbranch_scc1 L_k1_ld")
    a("s_setprio 3")
    a(f"s_load_dwordx16 s[{SP0}:{SP0+15}], s[0:1], 8")
    srd(a, SWS, 112, 0)
    stamp_init(a)
    SEGC = OPT.get("segc", []); SEGL = OPT.get("segl", [2, 3, 4, 6]); SEGS = sorted(SEGC + SEGL)
    TAILW = OPT.get("tailw", 1)
    def walk(segs):
        a("s_mov_b64 exec, 0")
        for p in range(3):
            a(f"s_cmp_eq_u32 s{sWV}, {p}")
            a(f"s_cbranch_scc1 L_k1_g{segs[p]}")
        a(f"s_branch L_k1_g{segs[3]}")
    if DRY and SEGC:
        walk(SEGC)
        a.label("L_k1_go")
        a("s_mov_b64 exec, -1")
    stamp(a, 1)
    for r in range(72, 80, 2): a(f"v_mov_b64 {vr(r,2)}, 0")
    a(f"v_mov_b32 v{PDS}, 0")
    a(f"s_lshl_b32 s{sT}, s2, 8")
    a(f"v_add_lshl_u32 v{vT0}, v0, s{sT}, 1")
    a(f"s_lshr_b32 s{sD}, s{sG}, 1")
    a(f"s_lshl1_add_u32 s{sD}, s2, s{sD}")
    a(f"v_lshlrev_b32_e64 v{vT1}, 1, s{sD}")
    a("s_waitcnt lgkmcnt(0)")
    a(f"global_load_short_d16_hi v{PLD}, v{vT1}, s[{SP0+12}:{SP0+13}]")
    for i in range(6):
        a(f"global_load_short_d16_hi v{72+i}, v{vT0}, s[{SP0+2*i}:{SP0+2*i+1}]")
    a(f"s_andn2_b32 exec_lo, 1, s{sG}")
    a(f"s_mov_b32 exec_hi, 0")
    a(f"global_load_short_d16_hi v{PDS}, v{vT1}, s[{SP0+14}:{SP0+15}]")
    a("s_mov_b64 exec, -1")
    a("s_setprio 0")
    LEND = OPT.get("k1lend", 0)
    if not LEND: a("s_branch L_k1_g0")
    i_ld0 = len(a.l)
    a.label("L_k1_ld")
    srd(a, SX, 72, 0); srd(a, SW, 80, 0)
    if PROF: srd(a, SWS, 112, 0)
    stamp_init(a)
    tbhq()
    srd_fin(a, SX, 2048 * 512 * 2); srd_fin(a, SW, 512 * 1536 * 2)
    if PROF: srd_fin(a, SWS, wsz())
    a(f"s_and_b32 s{sWV}, s{sWV}, 3")
    vX = 2; vW = 4
    a(f"s_setprio {OPT.get('k1lprio', 2)}")
    sC0R = 52
    a(f"s_lshl_b32 s{sT2}, s{sT2}, 1")
    a(f"s_add_u32 s{sC0R}, s{sT}, s{sT2}")
    a(f"v_lshrrev_b32 v{vT0}, 4, v{vL}")
    a(f"v_and_b32 v{vT1}, 7, v{vL}")
    a(f"v_xor_b32 v{vT0}, v{vT0}, v{vT1}")
    a(f"v_lshlrev_b32 v{vT0}, 4, v{vT0}")
    a(f"v_lshrrev_b32 v5, 3, v{vL}")
    a(f"v_lshl_add_u32 v{vX}, v5, 10, v{vT0}")
    a(f"v_xor_b32 v{vT0}, 64, v{vX}")
    a(f"v_add_u32 v{vX+1}, 7168, v{vT0}")
    a(f"v_bfe_u32 v{vT0}, v{vL}, 4, 1")
    a(f"v_lshlrev_b32 v{vT0}, 2, v{vT0}")
    a(f"v_xor_b32 v{vT0}, v{vT0}, v{vT1}")
    a(f"v_mul_u32_u24 v5, 3072, v5")
    a(f"v_lshl_add_u32 v{vW}, v{vT0}, 4, v5")
    a(f"s_lshl_b32 s{sXO}, s{sTB}, 2")
    a(f"s_add_u32 s{sXO}, s{sXO}, s{sWV}")
    a(f"s_lshl_b32 s{sXO}, s{sXO}, 14")
    a(f"s_mul_i32 s{sWO}, s{sWV}, {16*3072}")
    a(f"s_lshl_b32 s{sT}, s{sHQ}, 7")
    a(f"s_add_u32 s{sWO}, s{sWO}, s{sT}")
    a(f"s_lshl_b32 s{sM0}, s{sWV}, 13")
    a(f"s_add_u32 s{sM0}, s{sM0}, {K1_RB}")
    sN, sME = 53, 54
    a(f"s_add_u32 s{sME}, s{sM0}, {3*K1_SLOT}")
    a(f"s_mov_b32 s{sN}, 0")
    if DRY:
        walk(SEGL)
        a.label("L_k1_ld2")
        a("s_mov_b64 exec, -1")
    stamp(a, 10)
    a("s_waitcnt lgkmcnt(0)")
    stamp(a, 1)
    if PROF: a("s_mov_b32 s55, 0")
    a.label("L_k1_ll")
    a(f"s_and_b32 s{sT2}, s{sC0R}, 7")
    a(f"s_lshl_b32 s{sT}, s{sT2}, 7")
    a(f"s_add_u32 s{sT}, s{sT}, s{sXO}")
    a(f"s_mov_b32 m0, s{sM0}")
    a(f"s_mul_i32 s{sT2}, s{sT2}, {64*3072}")
    for q in range(2):
        a(f"buffer_load_dwordx4 v{vX+q}, s[{SX}:{SX+3}], s{sT} offen offset:{q*1024} {OPT.get('ld_k1','')} lds")
    a(f"s_add_u32 m0, s{sM0}, 2048")
    a(f"s_add_u32 s{sT}, s{sT2}, s{sWO}")
    for st in range(3):
        a(f"buffer_load_dwordx4 v{vW}, s[{SW}:{SW+3}], s{sT} offen offset:{st*1024} {OPT.get('ld_k1','')} lds")
    a(f"s_add_u32 m0, s{sM0}, 5120")
    a(f"s_add_u32 s{sT}, s{sT}, {8*3072}")
    for st in range(3):
        a(f"buffer_load_dwordx4 v{vW}, s[{SW}:{SW+3}], s{sT} offen offset:{st*1024} {OPT.get('ld_k1','')} lds")
    a(f"s_add_u32 s{sC0R}, s{sC0R}, 1")
    a(f"s_add_u32 s{sM0}, s{sM0}, {K1_SLOT}")
    a(f"s_cmp_eq_u32 s{sM0}, s{sME}")
    a(f"s_cselect_b32 s{sT}, {3*K1_SLOT}, 0")
    a(f"s_sub_u32 s{sM0}, s{sM0}, s{sT}")
    a(f"s_add_u32 s{sN}, s{sN}, 1")
    B0AT = OPT.get("k1b0at", 2)
    NI = OPT.get("k1ni", 2)
    a(f"s_cmp_lg_u32 s{sN}, {B0AT}")
    a("s_cbranch_scc1 L_k1_l1")
    stamp(a, 12)
    a("s_barrier")
    a.label("L_k1_l1")
    a(f"s_cmp_lt_u32 s{sN}, {NI}")
    a("s_cbranch_scc1 L_k1_ll")
    if NI == 3:
        a(f"s_cmp_gt_u32 s{sN}, {NI}")
        a("s_cbranch_scc1 L_k1_l2")
        a("s_waitcnt vmcnt(16)")
        stamp(a, 13)
        a("s_barrier")
        a.label("L_k1_l2")
    if PROF:
        a("s_waitcnt lgkmcnt(0)")
        a("s_mov_b32 m0, s55")
        a("s_add_u32 s55, s55, 2")
        a("s_movreld_b32 s74, s66")
    a(f"s_cmp_lt_u32 s{sN}, 8")
    a("s_waitcnt vmcnt(8)")
    if PROF: a("s_memrealtime s[66:67]")
    a("s_barrier")
    a("s_cbranch_scc1 L_k1_ll")
    a("s_waitcnt vmcnt(0)")
    stamp(a, 11)
    a("s_barrier")
    if PROF: a(f"s_add_u32 s{sWV}, s{sWV}, 4")
    stamp_out(a, 0, SWS, sWV)
    a.label("L_k1_end")
    a("s_endpgm")
    ldcode = []
    if LEND:
        ldcode = a.l[i_ld0:]; del a.l[i_ld0:]
    def ret(n):
        o = [x for x in SEGS if x <= n]
        return None if not o else "L_k1_go" if o[-1] in SEGC else "L_k1_ld2"
    def cut(n):
        if DRY and n in SEGS:
            if ret(n-1): a(f"s_cbranch_execz {ret(n-1)}")
            a.label(f"L_k1_g{n}")
    def guard(lst, lab):
        if DRY: a(f"s_cbranch_execz {lab}")
        for x in lst: a(x)
        if DRY and lab not in ("L_k1_go", "L_k1_ld2"): a.label(lab)
    a.label("L_k1_g0")
    srd_fin(a, SWS, wsz())
    vXA, vWA, vKB, vKA, vST, vSV = 8, 12, 13, 14, 18, 19
    ACC = 24; BUF = [72, 88, 152, 168]; KD = 136
    a(f"s_and_b32 s{sMH}, s{sG}, 1")
    a(f"s_mul_i32 s{sKT}, s{sG}, {K1_KTW}")
    a(f"s_mov_b32 m0, s{sKT}")
    a(f"s_andn2_b32 s{sT}, s{sG}, 1")
    a(f"s_mul_i32 s{sKT}, s{sT}, {K1_KTW}")
    a(f"v_lshrrev_b32 v5, 5, v{vL}")
    a(f"v_lshl_add_u32 v6, v5, 4, s{sKT}")
    a(f"v_and_b32 v{vT0}, 31, v{vL}")
    a(f"v_mul_u32_u24 v{vT1}, 272, v{vT0}")
    a(f"v_add_u32 v{vKB}, v{vT1}, v6")
    RE, RG, R8, R4 = 32, 40, 48, 56
    def hrow(tile, m):
        c = swap23(m); al = c >> 3; i = c & 7; aa = 4 * tile + al
        if aa == 0: return RE + i
        if aa == 1: return [RG + 1, RG + 1, RG, R4 + 1, R4 + 1, R4 + 1, R8, R8 + 1][i]
        if aa in (2, 3): return [RG, RG, RG, R4, R4, R4, R8, R8][i] + aa
        return (R8 if i >= 5 else RG) + aa
    tab = {t: [sum((hrow(t, 8 * q + m) - 32) << (8 * m) for m in range(8)) for q in range(4)] for t in range(2)}
    kinds = {}
    for t in range(2):
        val = 0
        for m in range(32):
            r = hrow(t, m)
            val |= ((r - 32) >> 3) << (2 * m)
        kinds[t] = val
    a(f"s_cmp_eq_u32 s{sMH}, 1")
    for w in range(2):
        a(f"s_mov_b32 s{sTAB+w}, {hx(kinds[0] >> (32*w))}")
        a(f"s_cselect_b32 s{sTAB+w}, {hx(kinds[1] >> (32*w))}, s{sTAB+w}")
    lows = {}
    for t in range(2):
        lo = [0, 0]
        for m in range(32):
            lo[m >> 4] |= ((hrow(t, m) - 32) & 7) << (4 * (m & 15))
        lows[t] = lo
    sLW = 64
    for hi in range(2):
        for w in range(2):
            d = (sTAB + 2 + w) if hi == 0 else (sLW + w)
            a(f"s_mov_b32 s{d}, {hx(lows[0][hi] >> (32*w))}")
            a(f"s_cselect_b32 s{d}, {hx(lows[1][hi] >> (32*w))}, s{d}")
    a(f"s_cselect_b32 s{sMASK}, 0xaaaaaaaa, 0")
    a(f"s_mov_b32 s{sMASK+1}, s{sMASK}")
    a(f"v_and_b32 v{vT1}, 15, v{vL}")
    a(f"v_lshlrev_b32 v{vT1}, 2, v{vT1}")
    a(f"v_cmp_lt_u32 vcc, 15, v{vT0}")
    a(f"v_lshrrev_b64 v[64:65], v{vT1}, s[{sTAB+2}:{sTAB+3}]")
    a(f"v_lshrrev_b64 v[66:67], v{vT1}, s[{sLW}:{sLW+1}]")
    a(f"v_lshlrev_b32 v{vT0}, 1, v{vT0}")
    a(f"v_cndmask_b32 v64, v64, v66, vcc")
    a(f"v_lshrrev_b64 v[66:67], v{vT0}, s[{sTAB}:{sTAB+1}]")
    a(f"v_and_b32 v64, 7, v64")
    a(f"v_and_b32 v66, 3, v66")
    a(f"v_lshl_add_u32 v64, v66, 3, v64")
    a(f"v_mad_u32_u24 v{vKA}, v64, s{sC0}, v6") if False else None
    a(f"v_mul_u32_u24 v64, 272, v64")
    a(f"v_add3_u32 v{vKA}, v64, v6, s{sC0}") if False else None
    a(f"v_add_u32 v{vKA}, v64, v6")
    sKO = 55
    a(f"s_lshl_b32 s{sT}, s{sD}, 12")
    a(f"s_lshl_b32 s{sKO}, s{sMH}, 11")
    a(f"s_add_u32 s{sKO}, s{sKO}, s{sT}")
    a(f"s_add_u32 s{sKO}, s{sKO}, {KC}")
    sTS, sHP = sMH, 60
    a(f"s_lshr_b32 s{sHP}, s{sWV}, 1")
    a(f"v_and_b32 v{vT0}, 15, v{vL}")
    a(f"v_bfe_u32 v{vT1}, v{vL}, 1, 3")
    a(f"v_xor_b32 v{vT1}, v{vT1}, v5")
    a(f"v_lshlrev_b32 v{vT1}, 4, v{vT1}")
    a(f"v_lshl_add_u32 v{vT0}, v{vT0}, 7, v{vT1}")
    a(f"v_bfe_u32 v{vT1}, v{vL}, 4, 1")
    a(f"v_lshl_add_u32 v{vT0}, v{vT1}, 13, v{vT0}")
    a(f"s_lshl_b32 s{sC0}, s{sTS}, 14")
    a(f"s_add_u32 s{sC0}, s{sC0}, {K1_RB}")
    for s in range(1, 4):
        a(f"v_xor_b32 v{vXA+s}, {32*s}, v{vT0}")
    a(f"v_add_u32 v{vXA}, s{sC0}, v{vT0}")
    for s in range(1, 4):
        a(f"v_add_u32 v{vXA+s}, s{sC0}, v{vXA+s}")
    cut(1)
    a(f"v_mul_u32_u24 v{vT0}, 3072, v5")
    a(f"v_bfe_u32 v{vT1}, v{vL}, 2, 2")
    a(f"v_lshl_add_u32 v{vT0}, v{vT1}, 7, v{vT0}")
    a(f"v_bfe_u32 v{vT1}, v{vL}, 3, 1")
    a(f"v_xor_b32 v{vT1}, s{sHP}, v{vT1}")
    a(f"v_lshl_add_u32 v{vT0}, v{vT1}, 6, v{vT0}")
    a(f"v_bfe_u32 v{vT1}, v{vL}, 4, 1")
    a(f"v_lshl_add_u32 v{vT0}, v{vT1}, 5, v{vT0}")
    a(f"v_and_b32 v{vT1}, 1, v{vL}")
    a(f"v_lshl_add_u32 v{vT0}, v{vT1}, 4, v{vT0}")
    a(f"v_bfe_u32 v{vT1}, v{vL}, 1, 1")
    a(f"v_lshl_add_u32 v{vT0}, v{vT1}, 3, v{vT0}")
    a(f"v_add_u32 v{vWA}, {2048+K1_RB}, v{vT0}")
    a(f"v_lshlrev_b32 v{vST}, 4, v{vL}")
    vSK = vST
    if OPT.get("kperm", 1):
        vSK = 20
        a(f"v_lshrrev_b32 v{vT1}, 1, v{vL}")
        a(f"v_xor_b32 v{vT1}, v{vT1}, v{vL}")
        a(f"v_bfe_u32 v{vT1}, v{vT1}, 2, 1")
        a(f"v_mul_u32_u24 v{vT1}, 192, v{vT1}")
        a(f"v_xor_b32 v{vSK}, v{vT1}, v{vST}")
    a(f"v_bfe_u32 v{vT1}, v{vL}, 4, 1")
    a(f"v_lshlrev_b32 v{vT1}, 17, v{vT1}")
    a(f"v_lshl_add_u32 v{vT1}, v5, 9, v{vT1}")
    a(f"v_and_b32 v{vT0}, 15, v{vL}")
    a(f"v_lshl_add_u32 v{vSV}, v{vT0}, 4, v{vT1}")
    tbhq()
    a(f"s_lshl_b32 s{sT}, s{sHQ}, 1")
    a(f"s_add_u32 s{sT}, s{sT}, s{sHP}")
    a(f"s_lshl_b32 s{sT}, s{sT}, 17")
    a(f"s_lshl_b32 s{sT2}, s{sTB}, 1")
    a(f"s_add_u32 s{sT2}, s{sT2}, s{sTS}")
    a(f"s_lshl_b32 s{sT2}, s{sT2}, 10")
    a(f"s_add_u32 s{sXO}, s{sT}, s{sT2}")
    a(f"s_add_u32 s{sWO}, s{sXO}, 65536")
    a(f"s_lshl_b32 s{sT}, s{sXO}, 1")
    a(f"s_add_u32 s{sT}, s{sT}, {KV}")
    a(f"s_add_u32 s{sT2}, s{sT}, 131072")
    for r in list(range(ACC, ACC + 48, 2)) + list(range(KD, BUF[3] + 16, 2)):
        a(f"v_mov_b64 {vr(r,2)}, 0")
    a(f"s_mov_b32 s{sSL}, 0")
    a(f"s_mov_b32 s{sCN}, 0")
    a(f"s_mov_b32 s{sIT}, 0")
    a(f"s_mov_b32 s{sKT}, {K1_SLOT}")
    cut(2)
    DT, Z, E1, E4, E8, E64, G1 = 79, 80, 84, 86, 88, 90, 92
    CA = [94, 96, 98, 100]; CE, CG, P8, P4 = 102, 104, 106, 108
    TT = [110, 112, 114, 116, 118, 120, 122, 124]
    CV = list(range(126, 134))
    l2e_hi = struct.unpack("<f", struct.pack("<f", LOG2E))[0]
    a(f"s_mov_b32 s{sC0}, {hx(f32(LOG2E))}")
    a(f"s_mov_b32 s{sC0+1}, {hx(f32(LOG2E - l2e_hi))}")
    a(f"v_mov_b32 v{CE}, 1.0")
    a(f"v_mov_b32 v{CE+1}, 0")
    a(f"v_mov_b32 v{CG}, 1.0")
    a(f"v_mov_b32 v{CG+1}, 0")
    stamp(a, 2)
    a("s_waitcnt vmcnt(1)")
    stamp(a, 3)
    m = []
    m.append(f"v_mul_f32 v120, s{sC0}, v{PLD}")
    m.append(f"v_fma_f32 v121, v{PLD}, s{sC0}, -v120")
    m.append(f"v_exp_f32 v122, v120")
    m.append(f"v_fma_f32 v121, v{PLD}, s{sC0+1}, v121")
    m.append(f"v_mul_f32 v121, {hx(f32(math.log(2.0)))}, v121")
    m.append(f"v_fma_f32 v122, v122, v121, v122")
    m.append(f"v_cvt_pk_bf16_f32 v122, v122, v122")
    m.append(f"v_lshlrev_b32 v{DT}, 16, v122")
    m.append(f"v_mul_f32 v{Z}, v{DT}, v{PA}")
    m.append(f"v_mul_f32 v{Z+1}, v{DT}, v{PA+1}")
    m.append(f"v_mul_f32 v{PB}, v{DT}, v{PB}")
    m.append(f"v_mul_f32 v{PB+1}, v{DT}, v{PB+1}")
    m.append(f"v_mul_f32 v{Z}, s{sC0}, v{Z}")
    m.append(f"v_mul_f32 v{Z+1}, {hx(f32(1.0/(2*math.pi)))}, v{Z+1}")
    m += cmul(CA[0], PC, PB, TT[6])
    def direct(dst, lg, t):
        o = []
        if lg == 0:
            o.append(f"v_exp_f32 v{t}, v{Z}")
            o.append(f"v_fract_f32 v{t+1}, v{Z+1}")
        else:
            o.append(f"v_ldexp_f32 v{t}, v{Z}, {lg}")
            o.append(f"v_ldexp_f32 v{t+1}, v{Z+1}, {lg}")
            o.append(f"v_exp_f32 v{t}, v{t}")
            o.append(f"v_fract_f32 v{t+1}, v{t+1}")
        o.append(f"v_cos_f32 v{dst}, v{t+1}")
        o.append(f"v_sin_f32 v{dst+1}, v{t+1}")
        o.append(f"v_pk_mul_f32 {vr(dst,2)}, {vr(dst,2)}, {vr(t,2)} op_sel:[0,0] op_sel_hi:[1,0]")
        return o
    E128 = P4
    m += merge(direct(E64, 6, TT[0]), direct(E128, 7, TT[1]), direct(E8, 3, TT[2]), direct(G1, 8, TT[3]),
               direct(E1, 0, TT[4]), direct(E4, 2, TT[5]))
    m += merge(cmul(CA[1], CA[0], E64, TT[0]), cmul(CA[2], CA[0], E128, TT[1]))
    m += cmul(CA[3], CA[2], E64, TT[0])
    for x in m: a(x)
    def put(row, src, neg, r):
        return [f"v_cvt_pk_bf16_f32 v{r}, v{src}, {'-' if neg else ''}v{src+1}", f"ds_write_addtid_b32 v{r} offset:{row*272}"]
    cut(3)
    a.label("L_k1_m")
    ch = [put(8 * c, CA[c], False, CV[c]) + cmul(CA[c], CA[c], E8, TT[c]) for c in range(4)]
    ch.append(put(RE, CE, True, CV[4]) + cmul(CE, CE, E1, TT[4]))
    ch.append(cmul(P8, CG, E8, TT[5]) + put(RG, CG, True, CV[5]) + put(R8, P8, True, CV[6]))
    a(f"s_cmp_gt_u32 s{sIT}, 3")
    a("s_cbranch_scc1 L_k1_m2")
    for x in cmul(P4, CG, E4, TT[6]) + put(R4, P4, True, CV[7]): a(x)
    a.label("L_k1_m2")
    body = merge(*ch) + cmul(CG, CG, G1, TT[7])
    for x in body[:-2]: a(x)
    a(f"s_add_u32 s{sIT}, s{sIT}, 1")
    a(body[-2])
    a("s_add_u32 m0, m0, 272")
    a(f"s_cmp_lt_u32 s{sIT}, 8")
    a(body[-1])
    a("s_cbranch_scc1 L_k1_m")
    a(f"s_sub_u32 m0, m0, {8*272}")
    E2 = CE
    for x in merge(cmul(E2, E1, E1, TT[0]), cmul(P4, G1, E4, TT[1])): a(x)
    for x in merge(cmul(P8, G1, E2, TT[0]) + put(RG, P8, True, CV[0]), cmul(CG, P4, E2, TT[1]) + put(R8, CG, True, CV[1])): a(x)
    a(f"s_mov_b32 s{sC0}, {hx(f32(0.25*LOG2E))}")
    a(f"s_mov_b32 s{sC0+1}, {hx(f32(0.25*LOG2E))}")
    stamp(a, 4)
    guard(["s_waitcnt vmcnt(0) lgkmcnt(0)", "s_barrier"], ret(3))
    if DRY: a.label("L_k1_g4")
    KFR = [72 + 8 * i for i in range(8)]
    def rk(n, nxt):
        t, ks = n & 1, n >> 1; r = KFR[n + 4 * nxt]
        return [f"ds_read_b128 {vr(r,4)}, v{vKA} offset:{32*272+t*K1_KTW+32*ks+64*nxt}",
                f"ds_read_b128 {vr(r+4,4)}, v{vKB} offset:{t*K1_KTW+32*ks+64*nxt}"]
    def mk_(n):
        r = KFR[n]
        return f"{MF} {vr(KD,16)}, {vr(r,4)}, {vr(r+4,4)}, {vr(KD,16)}"
    for n in range(4):
        for x in rk(n, 0): a(x)
    a.label("L_k1_p")
    for n in range(4):
        for x in rk(n, 1): a(x)
        a(f"s_waitcnt lgkmcnt(8)")
        a(mk_(n))
    a(f"v_add_u32 v{vKA}, 128, v{vKA}")
    a(f"v_add_u32 v{vKB}, 128, v{vKB}")
    a(f"s_add_u32 s{sIT}, s{sIT}, 1")
    a(f"s_cmp_lt_u32 s{sIT}, 10")
    for n in range(4):
        for x in rk(n, 0): a(x)
        a(f"s_waitcnt lgkmcnt(8)")
        a(mk_(4 + n))
    a("s_cbranch_scc1 L_k1_p")
    KO = 104
    kfin = [f"v_add_f32 v{KD}, v{KD}, v{PDS}",
            f"v_cndmask_b32 v{KD+4}, v{KD+4}, v{KD+5}, s[{sMASK}:{sMASK+1}]",
            f"v_cndmask_b32 v{KD+12}, v{KD+12}, v{KD+13}, s[{sMASK}:{sMASK+1}]"]
    kfin += [f"v_cvt_pk_bf16_f32 v{KO+k}, v{KD+2*k}, v{KD+2*k+1}" for k in range(8)]
    kst = [f"buffer_store_dwordx4 {vr(KO,4)}, v{vST}, s[{SWS}:{SWS+3}], s{sKO} offen {OPT.get('st_kc','')}",
           f"buffer_store_dwordx4 {vr(KO+4,4)}, v{vST}, s[{SWS}:{SWS+3}], s{sKO} offen offset:1024 {OPT.get('st_kc','')}"]
    cut(5)
    for x in kfin: a(x)
    if DRY: a(f"s_cbranch_execz {ret(5)}")
    for x in kst: a(x)
    if PROF:
        a("s_mov_b32 m0, 0")
        a("s_memrealtime s[66:67]")
    def rd(ks):
        b = BUF[ks]
        o = [f"ds_read_b128 {vr(b,4)}, v{vXA+ks}"]
        for st in range(3):
            for hh in range(2):
                o.append(f"ds_read_b64_tr_b16 {vr(b+4+4*st+2*hh,2)}, v{vWA} offset:{ks*8192+st*1024+hh*512}")
        return o
    upd = [f"s_add_u32 s{sSL}, s{sSL}, 1", f"s_cmp_eq_u32 s{sSL}, 3", f"s_cselect_b32 s{sSL}, 0, s{sSL}",
           f"s_cselect_b32 s{sDL}, {hx(-2*K1_SLOT)}, s{sKT}"]
    upd += [f"v_add_u32 v{r}, s{sDL}, v{r}" for r in range(vXA, vXA + 5)]
    upd += [f"s_add_u32 s{sCN}, s{sCN}, 1", f"s_cmp_lt_u32 s{sCN}, 8"]
    def mf(ks):
        b = BUF[ks]; o = []
        x = vr(b, 4)
        for st in range(3):
            w = vr(b + 4 + 4 * st, 4); d = vr(ACC + 16 * st, 16)
            o.append(f"{MF} {d}, {w}, {x}, {d}" if st < 2 else f"{MF} {d}, {x}, {w}, {d}")
        return o
    def gaps(ms, groups):
        for m_, g in zip(ms, groups):
            a(m_)
            for x in g: a(x)
    a.label("L_k1_loop")
    a("s_waitcnt lgkmcnt(0)")
    if PROF:
        a("s_movreld_b32 s80, s66")
        a("s_mov_b64 exec, -1")
        a("s_add_u32 m0, m0, 2")
    a("s_barrier")
    a.label("L_k1_g6")
    R = rd(0) + rd(1) + rd(2) + rd(3)
    for x in R[0:2]: a(x)
    gaps(mf(2), [R[2:5], R[5:8], R[8:11]])
    gaps(mf(3), [R[11:14], R[14:17], R[17:20]])
    a("s_waitcnt lgkmcnt(13)")
    gaps(mf(0), [R[20:23], R[23:26], R[26:28]])
    a("s_waitcnt lgkmcnt(14)")
    gaps(mf(1), [upd[:5] + (["s_memrealtime s[66:67]"] if PROF else []), upd[5:], []])
    a("s_cbranch_scc1 L_k1_loop")
    guard(["s_waitcnt lgkmcnt(0)"], "L_k1_t0" if TAILW else ret(6))
    if not TAILW: DRY = 0
    O = 72
    qfin = [f"v_pk_mul_f32 {vr(ACC+2*k,2)}, {vr(ACC+2*k,2)}, s[{sC0}:{sC0+1}]" for k in range(8)]
    qfin += [f"v_cvt_pk_bf16_f32 v{O+k}, v{ACC+2*k}, v{ACC+2*k+1}" for k in range(8)]
    qfin += [f"buffer_store_dwordx4 {vr(O,4)}, v{vST}, s[{SWS}:{SWS+3}], s{sXO} offen {OPT['st_k1']}",
             f"buffer_store_dwordx4 {vr(O+4,4)}, v{vST}, s[{SWS}:{SWS+3}], s{sWO} offen {OPT['st_k1']}"]
    kk = [f"v_cvt_pk_bf16_f32 v{O+8+k}, v{ACC+16+2*k}, v{ACC+16+2*k+1}" for k in range(8)]
    kk += [f"buffer_store_dwordx4 {vr(O+8,4)}, v{vSK}, s[{SWS}:{SWS+3}], s{sT} offen {OPT['st_k1']}",
           f"buffer_store_dwordx4 {vr(O+12,4)}, v{vSK}, s[{SWS}:{SWS+3}], s{sT2} offen {OPT['st_k1']}"]
    vv = [f"v_cvt_pk_bf16_f32 v{O+16+k}, v{ACC+32+2*k}, v{ACC+32+2*k+1}" for k in range(8)]
    vv += [f"buffer_store_dwordx4 {vr(O+16,4)}, v{vSV}, s[{SWS}:{SWS+3}], s{sT} offen offset:1024 {OPT['st_k1']}",
           f"buffer_store_dwordx4 {vr(O+20,4)}, v{vSV}, s[{SWS}:{SWS+3}], s{sT} offen offset:1280 {OPT['st_k1']}"]
    m2, m3 = mf(2), mf(3)
    for x in (m2[0], m3[0], m2[1], m3[1]): a(x)
    gaps([m2[2], m3[2]], [qfin[:6], qfin[6:-2]])
    guard(qfin[-2:], "L_k1_t1")
    for x in kk[:-2]: a(x)
    guard(kk[-2:], "L_k1_t2")
    for x in vv[:-2]: a(x)
    guard(vv[-2:], ret(7))
    stamp(a, 13)
    stamp_out(a, 0, SWS, sWV)
    a("s_endpgm")
    a.l += ldcode
    return a.l, 184

K2_LDS = 163840
CA0 = 131072; CH = 13600
EOFF = 64; OOFF = 64 + 4096 + 64; UOFF = OOFF + 4096
FLG = 163840 - 64
BAR_ITERS = dict()

def gen_k2():
    a = Asm()
    SWS, SU, SO, SWO = 4, 8, 12, 40
    sWV, sH, sQB, sT, sT2, sIT, sOFF, sPASS, sD0 = 16, 17, 18, 19, 20, 21, 22, 23, 24
    sVM = 26
    sA, sB, sC, sE = 32, 33, 34, 35
    a("s_cmp_ge_u32 s2, 256")
    a("s_cbranch_scc1 L_k2_end")
    srd(a, SWS, 112, 0); srd(a, SU, 0, 0); srd(a, SWO, 88, 0)
    stamp_init(a)
    vL = 1; vL16 = 2
    a(f"v_lshrrev_b32 v3, 6, v0")
    a(f"v_and_b32 v{vL}, 63, v0")
    a(f"v_readfirstlane_b32 s{sWV}, v3")
    a(f"v_lshlrev_b32 v{vL16}, 4, v{vL}")
    srd_fin(a, SWS, wsz())
    a(f"s_and_b32 s{sT}, s2, 7")
    a(f"s_lshr_b32 s{sT2}, s2, 3")
    a(f"s_lshl_b32 s{sH}, s{sT}, 2")
    a(f"s_and_b32 s{sQB}, s{sT2}, 3")
    a(f"s_add_u32 s{sH}, s{sH}, s{sQB}")
    a(f"s_lshr_b32 s{sQB}, s{sT2}, 2")
    a(f"s_lshl_b32 s{sA}, s{sH}, 17")
    a(f"s_add_u32 s{sA}, s{sA}, {KV}")
    a(f"s_cmp_ge_u32 s{sWV}, 8")
    a("s_cbranch_scc1 L_k2_conv")
    from attnloop import loop_body, align8, Q, NM, S, P, O, KF, VF, vA, vN, vT, vMK
    sSTEP, sEND, sMID, sFIN = 36, 37, 38, 39
    a(f"s_lshl_b32 s{sQB}, s{sQB}, 3")
    a(f"s_add_u32 s{sQB}, s{sQB}, s{sWV}")
    a(f"s_lshl_b32 s{sT}, s{sH}, 16")
    a(f"s_lshl_b32 s{sT2}, s{sQB}, 10")
    a(f"s_add_u32 s{sT}, s{sT}, s{sT2}")
    a(f"s_lshl_b32 s{sB}, s{sWV}, 13")
    a(f"s_add_u32 s{sC}, s{sA}, s{sB}")
    a(f"s_add_u32 s{sE}, s{sC}, 4096")
    a(f"s_mov_b32 m0, s{sB}")
    a("s_waitcnt lgkmcnt(0)")
    a(f"buffer_load_dwordx4 {vr(Q,4)}, v{vL16}, s[{SWS}:{SWS+3}], s{sT} offen")
    for k in range(4):
        a(f"buffer_load_dwordx4 v{vL16}, s[{SWS}:{SWS+3}], s{sC} offen offset:{1024*k} lds")
    a(f"s_add_u32 m0, s{sB}, 4096")
    for k in range(4):
        a(f"buffer_load_dwordx4 v{vL16}, s[{SWS}:{SWS+3}], s{sE} offen offset:{1024*k} lds")
    a(f"s_mov_b32 s{sVM}, 0x0000ffff")
    a(f"s_mov_b32 s{sVM+1}, 0x0000ffff")
    a(f"v_and_b32 v{vT}, 27, v{vL}")
    a(f"v_cmp_eq_u32 vcc, 16, v{vT}")
    a(f"v_mov_b32 v{vT}, 0x3f803f80")
    a(f"v_cndmask_b32 v{vT}, 0, v{vT}, vcc")
    for r in range(16): a(f"v_mov_b32 v{VF[0]+r}, v{vT}")
    a(f"v_mov_b32 v{vMK}, 0x1ffff")
    a(f"s_cmp_lt_u32 s{sWV}, 4")
    a(f"s_movk_i32 s{sSTEP}, 8192")
    a(f"s_cselect_b32 s{sSTEP}, s{sSTEP}, -8192")
    if OPT.get("prio", 6):
        a("s_cbranch_scc1 L_k2_old")
        a("s_setprio 1")
        a.label("L_k2_old")
    a(f"s_mul_i32 s{sMID}, s{sSTEP}, {2*(OPT.get('prio', 6) or 6)}")
    a(f"s_add_u32 s{sMID}, s{sMID}, s{sB}")
    a(f"s_lshl_b32 s{sFIN}, s{sSTEP}, 4")
    a(f"s_add_u32 s{sFIN}, s{sFIN}, s{sB}")
    X1 = f"s_mov_b64 exec, s[{sVM}:{sVM+1}]"; X2 = "s_mov_b64 exec, -1"
    SEQ = OPT.get("seq", "e e e S2 s e e W X V V x M1 K e e e e e e S3 e e e e e")
    SPARSE = "S2" in SEQ
    def body(first):
        tag = "a" if first else "b"
        cc = "0" if first else vr(NM, 16)
        for r in range(16): a(f"v_mov_b32 v{O+r}, 0")
        if SPARSE:
            for r in range(8, 16, 2): a(f"v_mov_b64 {vr(S[1]+r,2)}, 0")
            a(f"v_mov_b32 v{P}, {OPT.get('sidx', '0xdddddddd')}")
        else:
            for r in range(4, 8): a(f"v_mov_b32 v{P+r}, 0")
        a(f"v_add_u32 v{vA}, s{sB}, v{vL16}")
        a(f"s_mov_b32 s{sOFF}, s{sB}")
        if first:
            a(f"s_lshl_b32 s{sEND}, s{sSTEP}, 2")
            a(f"s_add_u32 s{sEND}, s{sEND}, s{sB}")
            a("s_mov_b64 vcc, 0")
            if PROF: a("s_mov_b32 m0, 0")
            stamp(a, 1)
            a("s_waitcnt vmcnt(4)")
            stamp(a, 3)
            stampc(a, 12)
        else:
            a(f"s_mov_b32 s{sEND}, s{sFIN}")
        a(f"ds_read_b128 {vr(KF[0],4)}, v{vA}")
        a(f"ds_read_b128 {vr(KF[1],4)}, v{vA} offset:2048")
        a(X1)
        a(f"ds_read_b128 {vr(VF[0],4)}, v{vA} offset:1024")
        a(f"ds_read_b128 {vr(VF[0]+4,4)}, v{vA} offset:1280")
        a(X2)
        a("s_waitcnt lgkmcnt(3)")
        a(f"{MF} {vr(S[0],16)}, {vr(KF[0],4)}, {vr(Q,4)}, {cc}")
        if first: a("s_waitcnt vmcnt(0)")
        a("s_waitcnt lgkmcnt(0)")
        a("s_nop 7")
        a("s_nop 3")
        a(".p2align 6")
        a.label(f"L_k2_loop{tag}")
        hooks = {7: [f"s_cmp_lg_u32 s{sOFF}, s{sEND}"]}
        if first: hooks[2] = ["s_cbranch_vccz L_k2_bar", "L_k2_barx:"]
        if first and PROF:
            hooks[0] = ["s_memtime s[64:65]", "s_memrealtime s[66:67]"]
            hooks[3] = ["s_movreld_b32 s48, s64", "s_movreld_b32 s49, s66", "s_add_u32 m0, m0, 2", "s_nop 0"]
        for x in align8(loop_body(SEQ, cc, sOFF, sSTEP, vL16, X1, X2, hooks)): a(x)
        a(f"s_cbranch_scc1 L_k2_loop{tag}")
        if first:
            a(f"s_cmp_lg_u32 s{sEND}, s{sFIN}")
            a(f"s_cbranch_scc1 L_k2_seg")
        if SPARSE: a(f"v_smfmac_f32_32x32x32_bf16 {vr(O,16)}, {vr(VF[1]+4,4)}, {vr(S[1]+8,8)}, v{P}")
        else: a(f"{MF} {vr(O,16)}, {vr(VF[1]+4,4)}, {vr(P+4,4)}, {vr(O,16)}")
        a("s_waitcnt lgkmcnt(0)")
    body(True)
    stamp(a, 4)
    stampc(a, 13)
    a(f"s_mov_b32 s{sT}, {hx(f32(2.0**-40))}")
    a(f"s_mov_b32 s{sT2}, {hx(f32(2.0**40))}")
    a(f"v_mov_b32 v{vT}, v{O+8}")
    for r in range(8): a(f"v_fma_f32 v{vT}, v{O+r}, 0, v{vT}")
    a(f"v_cmp_nle_f32 vcc, s{sT}, v{vT}")
    a(f"v_cmp_nge_f32 s[28:29], s{sT2}, v{vT}")
    a("s_nop 3")
    a(f"s_or_b64 vcc, vcc, s[28:29]")
    a("s_cbranch_scc1 L_k2_slow")
    a.label("L_k2_fin")
    a(f"v_rcp_f32 v{vT}, v{O+8}")
    a(f"s_lshl_b32 s{sT}, s{sQB}, 5")
    a(f"s_add_u32 s{sT}, s{sT}, s{sH}")
    a(f"s_lshl_b32 s{sT}, s{sT}, 10")
    a(f"s_add_u32 s{sT}, s{sT}, {OF}")
    for r in range(8): a(f"v_mul_f32 v{O+r}, v{O+r}, v{vT}")
    for r in range(4): a(f"v_cvt_pk_bf16_f32 v{P+r}, v{O+2*r}, v{O+2*r+1}")
    a(f"buffer_store_dwordx4 {vr(P,4)}, v{vL16}, s[{SWS}:{SWS+3}], s{sT} offen {OPT['st_k2']}")
    stamp_out(a, 1, SWS, sWV)
    if PROF:
        a(f"s_add_u32 s68, s68, {2*0x40000}")
        for i in range(16): a(f"v_mov_b32 v{24+i}, s{48+i}")
        for k in range(4): a(f"buffer_store_dwordx4 v[{24+4*k}:{27+4*k}], off, s[{SWS}:{SWS+3}], s68 offset:{16*k}")
    a("s_endpgm")
    a.label("L_k2_bar")
    a("s_barrier")
    a("s_mov_b64 vcc, -1")
    a("s_branch L_k2_barx")
    a.label("L_k2_seg")
    a(f"s_cmp_eq_u32 s{sEND}, s{sMID}")
    a(f"s_cbranch_scc1 L_k2_seg2")
    a(f"s_mov_b32 s{sEND}, s{sMID}")
    a.label("L_k2_poll")
    a(f"v_mov_b32 v{vT}, {FLG+4}")
    a(f"ds_read_b32 v{vT}, v{vT}")
    a("s_waitcnt lgkmcnt(0)")
    a(f"v_readfirstlane_b32 s{sT}, v{vT}")
    a(f"s_cmp_lt_u32 s{sT}, 4")
    a("s_cbranch_scc1 L_k2_poll")
    stamp(a, 5)
    a("s_branch L_k2_loopa")
    a.label("L_k2_seg2")
    a("s_setprio 0")
    stamp(a, 6)
    a(f"s_mov_b32 s{sEND}, s{sFIN}")
    a("s_branch L_k2_loopa")
    a.label("L_k2_slow")
    a(f"v_mov_b32 v{vA}, v{vL16}")
    a(f"v_mov_b32 v{vT}, 0xff800000")
    a(f"s_mov_b32 s{sIT}, 0")
    a.label("L_k2_max")
    a(f"ds_read_b128 {vr(KF[0],4)}, v{vA}")
    a(f"v_add_u32 v{vA}, 2048, v{vA}")
    a("s_waitcnt lgkmcnt(0)")
    a(f"{MF} {vr(S[0],16)}, {vr(KF[0],4)}, {vr(Q,4)}, 0")
    a(f"s_add_u32 s{sIT}, s{sIT}, 1")
    for r in range(8): a(f"v_max3_f32 v{vT}, v{S[0]+2*r}, v{S[0]+2*r+1}, v{vT}")
    a(f"s_cmp_lt_u32 s{sIT}, 64")
    a("s_cbranch_scc1 L_k2_max")
    a(f"v_xor_b32 v{vA}, 32, v{vL}")
    a(f"v_lshlrev_b32 v{vA}, 2, v{vA}")
    a(f"ds_bpermute_b32 v{vN}, v{vA}, v{vT}")
    a("s_waitcnt lgkmcnt(0)")
    a(f"v_max_f32 v{vT}, v{vT}, v{vN}")
    for r in range(16): a(f"v_sub_f32 v{NM+r}, 0, v{vT}")
    a(X1)
    for r in range(4, 8): a(f"v_mov_b32 v{VF[1]+r}, 0")
    a(X2)
    body(False)
    a("s_nop 7")
    a("s_nop 3")
    a("s_branch L_k2_fin")
    a.label("L_k2_conv")
    sQ, sCC, sHW, sCB = 36, 37, 38, 39
    U = 4; Y0 = 12; Y1 = 28; FR = 44; vG = 76; vUW = 77; vZ = 78; vZA = 92; vFX = 80
    vAL, vAH, vB0, vB1, vJ, vHF, vT, vT2, vXW, vFL, vONE = 81, 82, 83, 84, 85, 86, 87, 88, 89, 90, 91
    a(f"s_setprio {OPT.get('cprio', 3)}")
    a(f"s_sub_u32 s{sQ}, s{sWV}, 8")
    sKB, sKG = 44, 45
    a(f"s_lshl_b32 s{sKB}, s{sQ}, 12")
    a(f"s_add_u32 s{sKB}, s{sKB}, 65536")
    a(f"s_mov_b32 s{sKG}, s{sA}")
    a(f"v_mov_b32 v{vZ}, 0")
    a(f"v_mov_b32 v{vZ+1}, 0")
    a(f"v_mov_b32 v{vFL}, {FLG}")
    a(f"v_mov_b32 v{vONE}, 1")
    a(f"ds_write_b64 v{vFL}, {vr(vZ,2)}")
    a("s_waitcnt lgkmcnt(0)")
    def kvdma(rnd):
        a(f"s_add_u32 m0, s{sKB}, {rnd*16384}")
        a(f"s_add_u32 s46, s{sKG}, m0")
        for k in range(4):
            a(f"buffer_load_dwordx4 v{vL16}, s[{SWS}:{SWS+3}], s46 offen offset:{1024*k} lds")
    NPRE = OPT.get("npre", 0)
    for rnd in range(NPRE): kvdma(rnd)
    if OPT.get("noconv"):
        a("s_barrier")
        for rnd in range(NPRE, 4): kvdma(rnd)
        a("s_waitcnt vmcnt(0)")
        a("s_mov_b64 exec, 1")
        a(f"ds_add_u32 v{vFL}, v{vONE} offset:4")
        a("s_endpgm")
    srd_fin(a, SU, 2048 * 512 * 2); srd_fin(a, SWO, 512 * 512 * 2)
    a(f"s_lshl_b32 s{sD0}, s{sT}, 5")
    a(f"s_add_u32 s{sD0}, s{sD0}, s{sT2}")
    a(f"s_lshl_b32 s{sPASS}, s{sT2}, 14")
    a(f"s_lshr_b32 s{sCC}, s{sQ}, 1")
    a(f"s_and_b32 s{sHW}, s{sQ}, 1")
    a(f"s_mul_i32 s{sCB}, s{sCC}, {CH}")
    a(f"s_add_u32 s{sCB}, s{sCB}, {CA0}")
    a(f"s_mul_i32 s{sE}, s{sHW}, {OOFF-EOFF}")
    a(f"s_add_u32 s{sE}, s{sE}, s{sCB}")
    a(f"s_add_u32 s{sE}, s{sE}, {EOFF}")
    a(f"s_lshl_b32 s{sT2}, s{sD0}, 1")
    a(f"s_add_u32 s{sT2}, s{sT2}, s{sCC}")
    a(f"s_lshl_b32 s{sT2}, s{sT2}, 12")
    a(f"s_add_u32 s{sT2}, s{sT2}, {KC}")
    a(f"s_lshl_b32 s{sIT}, s{sHW}, 1")
    a(f"s_sub_u32 s{sT2}, s{sT2}, s{sIT}")
    a(f"s_mov_b32 s47, s{sE}")
    a(f"s_mov_b32 s48, s{sT2}")
    a(f"v_and_b32 v{vJ}, 31, v{vL}")
    a(f"v_lshrrev_b32 v{vHF}, 5, v{vL}")
    a(f"s_lshl_b32 s{sT}, s{sD0}, 2")
    a(f"v_lshlrev_b32 v{vT}, 12, v{vHF}")
    a(f"v_lshl_add_u32 v{vG}, v{vJ}, 15, v{vT}")
    a(f"s_lshl_b32 s{sA}, s{sCC}, 20")
    a(f"s_lshl_b32 s{sB}, s{sHW}, 14")
    a(f"s_add_u32 s{sA}, s{sA}, s{sB}")
    a(f"s_add_u32 s{sB}, s{sA}, s{sT}")
    a(f"s_add_u32 s{sC}, s{sB}, 8192")
    a(f"s_mul_i32 s{sT2}, s{sHW}, 80")
    a(f"s_add_u32 s{sT2}, s{sT2}, s{sCB}")
    a(f"s_add_u32 s{sT2}, s{sT2}, {UOFF+64*80-64}")
    a(f"v_min_u32 v{vT}, 35, v{vL}")
    a(f"v_lshl_add_u32 v{vZA}, v{vT}, 2, s{sT2}")
    a(f"s_sub_u32 s{sT2}, s{sE}, 64")
    a(f"v_lshl_add_u32 v{vT2}, v{vL}, 2, s{sT2}")
    a(f"v_cmp_gt_u32 vcc, 16, v{vL}")
    a(f"v_cndmask_b32 v{vZA}, v{vZA}, v{vT2}, vcc")
    a(f"ds_write_b32 v{vZA}, v{vZ}")
    a(f"s_lshl_b32 s{sT2}, s{sHW}, 1")
    a(f"s_add_u32 s{sT2}, s{sT2}, s{sE}")
    a(f"s_sub_u32 s{sT2}, s{sT2}, 2")
    a(f"v_mov_b32 v{vFX}, s{sT2}")
    a(f"v_mul_u32_u24 v{vT}, 80, v{vJ}")
    a(f"v_lshl_add_u32 v{vT}, v{vHF}, 3, v{vT}")
    a(f"s_mul_i32 s{sE}, s{sCC}, {80*32}")
    a(f"s_lshl_b32 s{sT2}, s{sHW}, 5")
    a(f"s_add_u32 s{sE}, s{sE}, s{sT2}")
    a(f"s_sub_u32 s{sE}, {CA0+UOFF+80*63+62-22}, s{sE}")
    a(f"v_sub_u32 v{vUW}, s{sE}, v{vT}")
    stamp(a, 1)
    a("s_barrier")
    stamp(a, 2)
    for rnd in range(NPRE, 4): kvdma(rnd)
    a(f"s_mov_b32 m0, s47")
    for k in range(4):
        a(f"buffer_load_dwordx4 v{vL16}, s[{SWS}:{SWS+3}], s48 offen offset:{1024*k} lds")
    a("s_waitcnt vmcnt(4)")
    a("s_mov_b64 exec, 1")
    a(f"ds_add_u32 v{vFL}, v{vONE} offset:4")
    a("s_mov_b64 exec, -1")
    stamp(a, 3)
    for rr in range(8):
        a(f"buffer_load_dword v{U+rr}, v{vG}, s[{SU}:{SU+3}], s{sB if rr < 4 else sC} offen offset:{1024*(rr&3)}")
    a(f"v_and_b32 v{vT}, 1, v{vJ}")
    a(f"v_and_b32 v{vT2}, 30, v{vJ}")
    a(f"v_lshlrev_b32 v{vT2}, 1, v{vT2}")
    a(f"v_lshl_add_u32 v{vT2}, v{vHF}, 4, v{vT2}")
    a(f"v_mul_u32_u24 v{vT}, {OOFF-EOFF}, v{vT}")
    a(f"v_sub_u32 v{vT2}, v{vT2}, v{vT}")
    a(f"s_lshl_b32 s{sT2}, s{sHW}, 10")
    a(f"s_add_u32 s{sT2}, s{sT2}, s{sCB}")
    a(f"s_add_u32 s{sT2}, s{sT2}, {OOFF-60}")
    a(f"v_add_u32 v{vAL}, s{sT2}, v{vT2}")
    a(f"v_add_u32 v{vAH}, 2048, v{vAL}")
    a(f"v_mul_u32_u24 v{vT}, 80, v{vJ}")
    a(f"v_lshlrev_b32 v{vT2}, 4, v{vHF}")
    a(f"v_sub_u32 v{vT}, v{vT2}, v{vT}")
    a(f"s_mul_i32 s{sT2}, s{sHW}, {16*80}")
    a(f"s_add_u32 s{sT2}, s{sT2}, s{sCB}")
    a(f"s_add_u32 s{sT2}, s{sT2}, {UOFF+80*31}")
    a(f"v_add_u32 v{vB1}, s{sT2}, v{vT}")
    a(f"s_add_u32 s{sE}, s{sCB}, {UOFF+64*80}")
    a(f"v_add_u32 v{vB0}, {32*80}, v{vB1}")
    a(f"v_min_u32 v{vB0}, s{sE}, v{vB0}")
    a(f"v_add_u32 v{vXW}, {CA0}, v{vL16}")
    for r in range(32): a(f"v_mov_b32 v{Y0+r}, 0")
    stamp(a, 4)
    a("s_waitcnt vmcnt(8)")
    a(f"ds_write_b16 v{vFX}, v{vZ}")
    for rr in range(8):
        a(f"s_waitcnt vmcnt({7-rr})")
        off = 2 * (11 - ((rr & 3) + 8 * (rr >> 2)))
        a(f"ds_write_b16 v{vUW}, v{U+rr} offset:{off}")
        a(f"ds_write_b16_d16_hi v{vUW}, v{U+rr} offset:{off+CH}")
    a(f"s_lshl_b32 s{sT2}, s{sQ}, 12")
    a(f"s_add_u32 s{sT2}, s{sT2}, s{sPASS}")
    if not OPT.get("nopf"):
        for k in range(4):
            a(f"buffer_load_dwordx4 {vr(96+4*k,4)}, v{vL16}, s[{SWO}:{SWO+3}], s{sT2} offen offset:{1024*k}")
    nsync = [0]
    def sync(n):
        nsync[0] += 1
        a("s_waitcnt lgkmcnt(0)")
        a("s_mov_b64 exec, 1")
        a(f"ds_add_u32 v{vFL}, v{vONE}")
        a.label(f"L_k2_spin{nsync[0]}")
        a(f"ds_read_b32 v{vT}, v{vFL}")
        a("s_waitcnt lgkmcnt(0)")
        a(f"v_readfirstlane_b32 s{sT2}, v{vT}")
        a(f"s_cmp_lt_u32 s{sT2}, {4*n}")
        a(f"s_cbranch_scc1 L_k2_spin{nsync[0]}")
        a("s_mov_b64 exec, -1")
    stamp(a, 5)
    sync(1)
    stamp(a, 6)
    a(f"s_mov_b32 s{sIT}, 0")
    a.label("L_k2_cloop")
    for st in range(4):
        f = FR + 16 * (st & 1)
        bo = (st >> 1) * 80 + (st & 1) * 32
        a(f"ds_read2_b32 {vr(f,2)}, v{vAL} offset0:{8*st} offset1:{8*st+1}")
        a(f"ds_read2_b32 {vr(f+2,2)}, v{vAL} offset0:{8*st+2} offset1:{8*st+3}")
        a(f"ds_read_b128 {vr(f+12,4)}, v{vB1} offset:{bo}")
        a("s_waitcnt lgkmcnt(0)")
        a(f"{MF} {vr(Y1,16)}, {vr(f,4)}, {vr(f+12,4)}, {vr(Y1,16)}")
        a(f"ds_read_b128 {vr(f+8,4)}, v{vB0} offset:{bo}")
        a("s_waitcnt lgkmcnt(0)")
        a(f"{MF} {vr(Y0,16)}, {vr(f,4)}, {vr(f+8,4)}, {vr(Y0,16)}")
        a(f"ds_read2_b32 {vr(f+4,2)}, v{vAH} offset0:{8*st} offset1:{8*st+1}")
        a(f"ds_read2_b32 {vr(f+6,2)}, v{vAH} offset0:{8*st+2} offset1:{8*st+3}")
        if st == 3:
            a(f"v_add_u32 v{vAL}, 128, v{vAL}")
            a(f"v_add_u32 v{vAH}, 128, v{vAH}")
            a(f"v_add_u32 v{vB1}, 160, v{vB1}")
            a(f"v_add_u32 v{vB0}, 160, v{vB0}")
            a(f"v_min_u32 v{vB0}, s{sE}, v{vB0}")
            a(f"s_add_u32 s{sIT}, s{sIT}, 1")
            a(f"s_cmp_lt_u32 s{sIT}, 8")
        a("s_waitcnt lgkmcnt(0)")
        a(f"{MF} {vr(Y1,16)}, {vr(f+4,4)}, {vr(f+8,4)}, {vr(Y1,16)}")
    a("s_cbranch_scc1 L_k2_cloop")
    stamp(a, 7)
    sync(2)
    stamp(a, 8)
    a(f"v_lshlrev_b32 v{vG}, 4, v{vHF}")
    a(f"v_lshl_add_u32 v{vG}, v{vJ}, 5, v{vG}")
    a(f"s_lshl2_add_u32 s{sA}, s{sD0}, s{sQ}")
    a(f"s_lshl_b32 s{sA}, s{sA}, 11")
    a(f"s_add_u32 s{sA}, s{sA}, {YT}")
    for q in range(1, 4):
        a(f"s_cmp_eq_u32 s{sQ}, {q}")
        a(f"s_cbranch_scc1 L_k2_x{q}")
    def slot(dst, src): return (3 * dst + (src if src < dst else src - 1)) * 2048
    X = 44
    for q in range(4):
        if q: a.label(f"L_k2_x{q}")
        for qq in range(4):
            if qq == q: continue
            for hh in range(2):
                a(f"ds_write_b128 v{vXW}, {vr(Y0+8*qq+4*hh,4)} offset:{slot(qq,q)+1024*hh}")
        stamp(a, 9)
        sync(3)
        stamp(a, 10)
        R = {}
        for src in range(4):
            if src == q: R[src] = Y0 + 8 * q; continue
            R[src] = X + 8 * src
            for hh in range(2):
                a(f"ds_read_b128 {vr(X+8*src+4*hh,4)}, v{vXW} offset:{slot(q,src)+1024*hh}")
        a("s_waitcnt lgkmcnt(0)")
        so = [sA, sA, sB, sB, sC, sC, sE, sE]
        for rr in range(8):
            a(f"v_add_f32 v{R[0]+rr}, v{R[0]+rr}, v{R[1]+rr}")
            a(f"v_add_f32 v{R[2]+rr}, v{R[2]+rr}, v{R[3]+rr}")
            a(f"v_cvt_pk_bf16_f32 v{U+rr}, v{R[0]+rr}, v{R[2]+rr}")
            if rr & 3 == 3: a(f"buffer_store_dwordx4 {vr(U+rr-3,4)}, v{vG}, s[{SWS}:{SWS+3}], s{sA} offen offset:{1024*(rr>>2)} {OPT.get('st_y', 'sc1')}")
        if q < 3: a("s_branch L_k2_cend")
    a.label("L_k2_cend")
    stamp(a, 11)
    stamp_out(a, 1, SWS, sWV)
    a.label("L_k2_end")
    a("s_endpgm")
    return a.l, 112

K3_LDS = 65536 + 16384
def gen_k3():
    a = Asm()
    SWS, SW, SO = 4, 8, 12
    sWV, sTT, sCB, sT, sT2, sTS, sKH, sOO, sWO, sM0 = 16, 17, 18, 19, 20, 21, 22, 23, 24, 25
    a("s_cmp_ge_u32 s2, 256")
    a("s_cbranch_scc1 L_k3_end")
    stamp_init(a)
    srd(a, SWS, 112, 0); srd(a, SW, 88, 0); srd(a, SO, 96, 0)
    srd_fin(a, SWS, wsz()); srd_fin(a, SW, 512 * 512 * 2); srd_fin(a, SO, 2048 * 1024 * 2)
    vL, vL16, vW, vT, vT2, vA0, vA1, vXW, vXR, vST = 1, 2, 3, 4, 5, 6, 7, 8, 9, 10
    D = [12, 28]; OFR = 44; WF = 108
    a(f"v_and_b32 v{vL}, 63, v0")
    a(f"v_lshrrev_b32 v{vT}, 6, v0")
    a(f"v_readfirstlane_b32 s{sWV}, v{vT}")
    a(f"v_lshlrev_b32 v{vL16}, 4, v{vL}")
    a(f"s_and_b32 s{sT}, s2, 7")
    a(f"s_lshr_b32 s{sT2}, s2, 3")
    a(f"s_lshl_b32 s{sTT}, s{sT}, 2")
    a(f"s_and_b32 s{sT}, s{sT2}, 3")
    a(f"s_add_u32 s{sTT}, s{sTT}, s{sT}")
    a(f"s_lshr_b32 s{sCB}, s{sT2}, 2")
    a(f"s_and_b32 s{sTS}, s{sWV}, 1")
    a(f"s_lshr_b32 s{sKH}, s{sWV}, 1")
    a(f"s_lshl_b32 s{sTT}, s{sTT}, 1")
    a(f"s_add_u32 s{sTT}, s{sTT}, s{sTS}")
    a(f"s_lshl_b32 s{sOO}, s{sTT}, 15")
    a(f"s_lshl_b32 s{sT}, s{sKH}, 14")
    a(f"s_add_u32 s{sOO}, s{sOO}, s{sT}")
    a(f"s_add_u32 s{sOO}, s{sOO}, {OF}")
    a(f"v_bfe_u32 v{vT}, v{vL}, 4, 1")
    a(f"v_lshlrev_b32 v{vT}, 2, v{vT}")
    a(f"v_and_b32 v{vT2}, 7, v{vL}")
    a(f"v_xor_b32 v{vT}, v{vT}, v{vT2}")
    a(f"v_lshlrev_b32 v{vT}, 4, v{vT}")
    a(f"v_lshrrev_b32 v{vT2}, 3, v{vL}")
    a(f"v_lshl_add_u32 v{vW}, v{vT2}, 10, v{vT}")
    a(f"s_lshl_b32 s{sT}, s{sKH}, 8")
    a(f"s_lshl_b32 s{sT2}, s{sTS}, 5")
    a(f"s_add_u32 s{sT}, s{sT}, s{sT2}")
    a(f"s_lshl_b32 s{sM0}, s{sT}, 7")
    a(f"s_lshl_b32 s{sWO}, s{sT}, 10")
    a(f"s_lshl_b32 s{sT2}, s{sCB}, 7")
    a(f"s_add_u32 s{sWO}, s{sWO}, s{sT2}")
    stamp(a, 8)
    a("s_waitcnt lgkmcnt(0)")
    stamp(a, 9)
    for g in range(4):
        if g: stamp(a, 9 + g)
        a(f"s_add_u32 s26, s{sCB}, {g}")
        a(f"s_and_b32 s26, s26, 3")
        a(f"s_lshl_b32 s27, s26, 12")
        a(f"s_add_u32 s{sT}, s{sOO}, s27")
        for q in range(4):
            a(f"buffer_load_dwordx4 {vr(OFR+16*g+4*q,4)}, v{vL16}, s[{SWS}:{SWS+3}], s{sT} offen offset:{1024*q} {OPT.get('ld_k3','')}")
        a(f"s_add_u32 m0, s{sM0}, {g*8192}")
        a(f"s_lshl_b32 s27, s26, 16")
        a(f"s_add_u32 s27, s27, s{sWO}")
        for q in range(4):
            a(f"s_add_u32 s{sT}, s27, {q*7168}")
            a(f"buffer_load_dwordx4 v{vW}, s[{SW}:{SW+3}], s{sT} offen offset:{1024*q} {OPT.get('ld_k3','')} lds")
        for q in range(0):
            a(f"buffer_load_dwordx4 {vr(OFR+16*g+4*q,4)}, v{vL16}, s[{SWS}:{SWS+3}], s{sT} offen offset:{1024*q} {OPT.get('ld_k3','')}")
    YR, vYL, vYS, sY = 172, 180, 181, 28
    a(f"v_and_b32 v{vT}, 31, v{vL}")
    a(f"v_lshrrev_b32 v{vT2}, 5, v{vL}")
    a(f"v_lshlrev_b32 v{vYL}, 13, v{vT}")
    a(f"v_lshl_add_u32 v{vYL}, v{vT2}, 4, v{vYL}")
    a(f"s_lshr_b32 s26, s{sTT}, 5")
    a(f"s_lshl_b32 s{sT}, s{sCB}, 6")
    a(f"s_add_u32 s{sT}, s{sT}, s26")
    a(f"s_lshl2_add_u32 s{sT}, s{sT}, s{sWV}")
    a(f"s_bfe_u32 s26, s{sTT}, {1 | (4 << 16)}")
    a(f"s_lshl4_add_u32 s{sT}, s{sT}, s26")
    a(f"s_lshl_b32 s{sT}, s{sT}, 6")
    a(f"s_add_u32 s{sT}, s{sT}, {YT}")
    for i in range(2):
        a(f"buffer_load_dwordx4 {vr(YR+4*i,4)}, v{vYL}, s[{SWS}:{SWS+3}], s{sT} offen offset:{32*i}")
    a(f"v_lshlrev_b32 v{vYS}, 2, v{vT}")
    a(f"v_lshl_add_u32 v{vYS}, v{vT2}, 13, v{vYS}")
    a(f"s_lshr_b32 s26, s{sTT}, 1")
    a(f"s_lshl3_add_u32 s26, s26, s{sWV}")
    a(f"s_lshl_b32 s26, s26, 7")
    a(f"s_add_u32 s26, s26, s{sCB}")
    a(f"s_lshl_b32 s{sY}, s26, 7")
    a(f"s_add_u32 s{sY+1}, s{sY}, 4096")
    a(f"s_add_u32 s{sY+2}, s{sY}, 65536")
    a(f"s_add_u32 s{sY+3}, s{sY}, {65536+4096}")
    yst = [f"buffer_store_dword v{YR+k}, v{vYS}, s[{SO}:{SO+3}], s{sY+(k>>1)} offen offset:{2048*(k&1)} {OPT.get('st_y3', 'sc1')}" for k in range(8)]
    stamp(a, 13)
    a(f"v_lshrrev_b32 v{vT}, 5, v{vL}")
    a(f"v_lshlrev_b32 v{vT}, 10, v{vT}")
    a(f"v_bfe_u32 v{vT2}, v{vL}, 2, 2")
    a(f"v_lshl_add_u32 v{vT}, v{vT2}, 7, v{vT}")
    a(f"v_bfe_u32 v{vT2}, v{vL}, 3, 1")
    a(f"v_lshl_add_u32 v{vT}, v{vT2}, 6, v{vT}")
    a(f"v_bfe_u32 v{vT2}, v{vL}, 4, 1")
    a(f"v_lshl_add_u32 v{vT}, v{vT2}, 5, v{vT}")
    a(f"v_and_b32 v{vT2}, 1, v{vL}")
    a(f"v_lshl_add_u32 v{vT}, v{vT2}, 4, v{vT}")
    a(f"v_bfe_u32 v{vT2}, v{vL}, 1, 1")
    a(f"v_lshl_add_u32 v{vT}, v{vT2}, 3, v{vT}")
    a(f"s_mul_i32 s{sT}, s{sKH}, {32768+64}")
    a(f"v_xor_b32 v{vA0}, s{sT}, v{vT}")
    a(f"v_xor_b32 v{vA1}, 64, v{vA0}")
    a(f"s_lshl_b32 s{sT}, s{sWV}, 12")
    a(f"s_add_u32 s{sT}, s{sT}, 65536")
    a(f"v_add_u32 v{vXW}, s{sT}, v{vL16}")
    a(f"s_xor_b32 s{sT}, s{sT}, 8192")
    a(f"v_add_u32 v{vXR}, s{sT}, v{vL16}")
    W64 = OPT.get("w64", 1)
    a(f"v_and_b32 v{vT}, {15 if W64 else 31}, v{vL}")
    a(f"v_lshlrev_b32 v{vT}, 11, v{vT}")
    a(f"v_lshrrev_b32 v{vT2}, 5, v{vL}")
    a(f"v_lshl_add_u32 v{vST}, v{vT2}, 4, v{vT}")
    if W64:
        a(f"v_and_b32 v{vT}, 16, v{vL}")
        a(f"v_lshl_add_u32 v{vST}, v{vT}, 1, v{vST}")
    a(f"s_lshl_b32 s{sOO}, s{sTT}, 16")
    a(f"s_lshl_b32 s{sT}, s{sCB}, 7")
    a(f"s_add_u32 s{sOO}, s{sOO}, s{sT}")
    a(f"s_lshl_b32 s{sT}, s{sKH}, 6")
    a(f"s_add_u32 s{sOO}, s{sOO}, s{sT}")
    def reads(g):
        o = []; b = WF + 32 * (g & 1)
        for ks in range(4):
            for ct, va in enumerate((vA0, vA1)):
                for h in range(2):
                    o.append(f"ds_read_b64_tr_b16 {vr(b+8*ks+4*ct+2*h,2)}, v{va} offset:{g*8192+ks*2048+h*512}")
        return o
    def mfmas(g):
        o = []; b = WF + 32 * (g & 1)
        for ks in range(4):
            for ct in (1, 0):
                cc = "0" if (g == 0 and ks == 0) else vr(D[ct], 16)
                o.append(f"{MF} {vr(D[ct],16)}, {vr(b+8*ks+4*ct,4)}, {vr(OFR+16*g+4*ks,4)}, {cc}")
        return o
    stamp(a, 1)
    a("s_waitcnt vmcnt(26)")
    a("s_barrier")
    stamp(a, 2)
    for x in reads(0): a(x)
    for g in range(4):
        if g < 3:
            a(f"s_waitcnt lgkmcnt(0) vmcnt({8*(2-g)+2})")
            a("s_barrier")
            stamp(a, 3 + g)
            for x in merge(mfmas(g), reads(g + 1)): a(x)
        else:
            a("s_waitcnt lgkmcnt(0) vmcnt(0)")
            for x in merge(mfmas(g), yst): a(x)
    for k in range(4):
        a(f"ds_write_b128 v{vXW}, {vr(D[1]+4*k,4)} offset:{1024*k}")
    a("s_waitcnt lgkmcnt(0)")
    a("s_barrier")
    stamp(a, 6)
    for k in range(4):
        a(f"ds_read_b128 {vr(D[1]+4*k,4)}, v{vXR} offset:{1024*k}")
    a("s_waitcnt lgkmcnt(0)")
    for k in range(8):
        a(f"v_pk_add_f32 {vr(D[0]+2*k,2)}, {vr(D[0]+2*k,2)}, {vr(D[1]+2*k,2)}")
    for k in (0, 4, 1, 5, 2, 6, 3, 7):
        a(f"v_cvt_pk_bf16_f32 v{OFR+k}, v{D[0]+2*k}, v{D[0]+2*k+1}")
    if W64:
        a(f"s_add_u32 s{sT}, s{sOO}, 32768")
        for k in range(4): a(f"v_permlane16_swap_b32 v{OFR+k}, v{OFR+4+k}")
        a(f"buffer_store_dwordx4 {vr(OFR,4)}, v{vST}, s[{SO}:{SO+3}], s{sOO} offen offset:1024 {OPT['st_k3']}")
        a(f"buffer_store_dwordx4 {vr(OFR+4,4)}, v{vST}, s[{SO}:{SO+3}], s{sT} offen offset:1024 {OPT['st_k3']}")
    else:
        a(f"buffer_store_dwordx4 {vr(OFR,4)}, v{vST}, s[{SO}:{SO+3}], s{sOO} offen offset:1024 {OPT['st_k3']}")
        a(f"buffer_store_dwordx4 {vr(OFR+4,4)}, v{vST}, s[{SO}:{SO+3}], s{sOO} offen offset:1056 {OPT['st_k3']}")
    stamp(a, 7)
    stamp_out(a, 2, SWS, sWV)
    a.label("L_k3_end")
    a("s_endpgm")
    return a.l, 182

def build(path, extra_empty=0):
    ref = open(f"cdna_kernels/{NAME}.s.ref").read().split("\n")
    head = [l for l in ref if l.startswith(";") and "@launch" not in l]
    ks = [("qkv_kgen_kernel", gen_k1, 512, K1_LDS), ("attn_conv_kernel", gen_k2, 768, K2_LDS), (f"{NAME}_kernel", gen_k3, 256, K3_LDS)]
    out = list(head)
    for n, g, blk, lds in ks:
        out.append(f"; @launch kernel={n} grid=(256,1,1) block=({blk},1,1) lds={lds}")
    for i in range(extra_empty):
        out.append(f"; @launch kernel=empty_kernel grid=(256,1,1) block=(256,1,1) lds=0")
    out += ['.amdgcn_target "amdgcn-amd-amdhsa--gfx950"', ".text"]
    kds = []
    if extra_empty:
        ks = ks + [("empty_kernel", lambda: (["s_endpgm"], 8), 256, 0)]
    for n, g, blk, lds in ks:
        lines, nv = g()
        lines = pad(lines)
        out += [f".globl {n}", ".p2align 8", f".type {n},@function", f"{n}:"]
        out += [l if l.endswith(":") else "    " + l for l in lines]
        nv4 = (nv + 7) // 8 * 8
        kds += [".p2align 6", f".amdhsa_kernel {n}", f"  .amdhsa_next_free_vgpr {nv4}", "  .amdhsa_next_free_sgpr 102",
                f"  .amdhsa_accum_offset {nv4}", "  .amdhsa_group_segment_fixed_size 0", "  .amdhsa_kernarg_size 120",
                "  .amdhsa_user_sgpr_count 2", "  .amdhsa_user_sgpr_kernarg_segment_ptr 1",
                "  .amdhsa_system_sgpr_workgroup_id_x 1", ".end_amdhsa_kernel"]
    out += ['.section .rodata,"a"'] + kds
    open(path, "w").write("\n".join(out) + "\n")

if __name__ == "__main__":
    build(f"cdna_kernels/{NAME}.s")
```
